```python
import torch

def _softmax(x, axis=-1):
    return torch.softmax(x, dim=axis)
def _gelu(x):
    return torch.nn.functional.gelu(x, approximate="tanh")
def _silu(x):
    return torch.nn.functional.silu(x)
def _sigmoid(x):
    return torch.sigmoid(x)
def _layernorm(x, axis=-1, eps=1e-5):
    m = x.mean(dim=axis, keepdim=True)
    v = x.var(dim=axis, keepdim=True, unbiased=False)
    return (x - m) / torch.sqrt(v + eps)
def _scatter_add(tgt, idx, src, axis=0):
    return tgt.clone().index_add_(axis, idx, src)
def _segment_sum(src, seg, n):
    out = torch.zeros((n,) + src.shape[1:], dtype=src.dtype)
    return out.index_add_(0, seg, src)
def _pad(x, pw):
    flat = tuple(v for pair in reversed(pw) for v in pair)
    return torch.nn.functional.pad(x, flat)

kernel_name = 'parallel_sum__spectral_gfnet__glu_gated_reglu__prompt'

def setup_inputs():

    _w = (lambda a: (lambda t: t.to(torch.bfloat16) if t.is_floating_point() else t)(torch.as_tensor(a)))
    def _A_setup():
        B, S, D = 1, 2048, 448
        Df = D // 2 + 1
        return {
            "x": _w((lambda *s: torch.randn(*s, dtype=torch.bfloat16) * 0.05)(B, S, D)),
            "w_r": _w((lambda *s: torch.randn(*s, dtype=torch.bfloat16) * 0.4)(S, Df) * 0.02),
            "w_i": _w((lambda *s: torch.randn(*s, dtype=torch.bfloat16) * 0.4)(S, Df) * 0.02),
        }
    _A_in = _A_setup()

    def _B_setup():
        B, S, D, F = 1, 2048, 448, 1792
        return {
            "x": _w((lambda *s: torch.randn(*s, dtype=torch.bfloat16) * 0.05)(B, S, D)),
            "W_gate": _w((lambda *s: torch.randn(*s, dtype=torch.bfloat16) * 0.2)(D, F) * (2.0 / D) ** 0.5),
            "W_up": _w((lambda *s: torch.randn(*s, dtype=torch.bfloat16) * 0.2)(D, F) * (2.0 / D) ** 0.5),
            "W_down": _w((lambda *s: torch.randn(*s, dtype=torch.bfloat16) * 0.2)(F, D) * (1.0 / F) ** 0.5),
        }
    _B_in = _B_setup()

    return {
        "A_x": _A_in["x"],
        "A_w_r": _A_in["w_r"],
        "A_w_i": _A_in["w_i"],
        "B_x": _B_in["x"],
        "B_W_gate": _B_in["W_gate"],
        "B_W_up": _B_in["W_up"],
        "B_W_down": _B_in["W_down"],
    }

def reference(A_x, A_w_r, A_w_i, B_x, B_W_gate, B_W_up, B_W_down):
    def _A_ref(x, w_r, w_i):
        B, S, D = x.shape
        X = (lambda x, axes=(-2,-1): torch.fft.rfft2(x.float(), dim=axes))(x, axes=(-2, -1))
        W = w_r + 1j * w_i
        X = X * W
        y = (lambda x, s, axes=(-2,-1): torch.fft.irfft2(x, s=s, dim=axes).to(torch.bfloat16))(X, (S, D), axes=(-2, -1))
        return y

    def _B_ref(x, W_gate, W_up, W_down):
        gate = torch.einsum("bsd,df->bsf", x, W_gate)
        up = torch.einsum("bsd,df->bsf", x, W_up)
        gate = gate * (lambda x, dt: x.to(dt))(gate > 0, gate.dtype)
        h = gate * up
        return torch.einsum("bsf,fd->bsd", h, W_down)

    x = A_x
    xn = _layernorm(x, axis=-1)
    return x + _A_ref(xn, A_w_r, A_w_i) + _B_ref(xn, B_W_gate, B_W_up, B_W_down)
```

```python
import struct
S, D, F = 2048, 448, 1792
SZ_X = S * D * 2
SZ_WR = S * 225 * 2
SZ_WG = D * F * 2
SZ_HF = 64 * 112 * 1024
SZ_WF = 14 * 112 * 1024
SZ_GF = 14 * 28 * 1024
SZ_Z1 = 224 * 8192
SZ_WT = 225 * 8192
SZ_Z3 = 224 * 8192
SZ_FL = 4096
OFF_HF = 0
OFF_WF = OFF_HF + SZ_HF
OFF_GF = OFF_WF + SZ_WF
OFF_Z1 = OFF_GF + SZ_GF
OFF_WT = OFF_Z1 + SZ_Z1
OFF_Z3 = OFF_WT + SZ_WT
OFF_FL = OFF_Z3 + SZ_Z3

def f2u(x):
    return struct.unpack('<I', struct.pack('<f', x))[0]
def fh(x):
    return '0x%08x' % f2u(x)

def srd(a, d, base, off, size):
    if off == 0:
        a.e(f's_mov_b32 s{d}, s{base}\ns_mov_b32 s{d+1}, s{base+1}')
    else:
        a.e(f's_add_u32 s{d}, s{base}, {off}\ns_addc_u32 s{d+1}, s{base+1}, 0')
    a.e(f's_mov_b32 s{d+2}, {size}\ns_mov_b32 s{d+3}, 0x00020000')

def kd(name, vgpr, sgpr, accum):
    return f""".p2align 6
.amdhsa_kernel {name}
  .amdhsa_next_free_vgpr {vgpr}
  .amdhsa_next_free_sgpr {sgpr}
  .amdhsa_accum_offset {accum}
  .amdhsa_group_segment_fixed_size 0
  .amdhsa_kernarg_size 80
  .amdhsa_user_sgpr_count 2
  .amdhsa_user_sgpr_kernarg_segment_ptr 1
  .amdhsa_system_sgpr_workgroup_id_x 1
.end_amdhsa_kernel
"""
```

```python
import re

TRANS = ('v_exp_f32','v_log_f32','v_rcp_f32','v_rsq_f32','v_sqrt_f32','v_sin_f32','v_cos_f32')
REG_RE = re.compile(r'\b([vas])(?:\[(\d+):(\d+)\]|(\d+))')

def regs_of(op):
    out = []
    for m in REG_RE.finditer(op):
        k = m.group(1)
        if m.group(2) is not None:
            out += [(k, i) for i in range(int(m.group(2)), int(m.group(3)) + 1)]
        else:
            out.append((k, int(m.group(4))))
    if re.search(r'\bvcc\b', op): out += [('s', 106), ('s', 107)]
    if re.search(r'\bm0\b', op): out += [('s', 124)]
    if re.search(r'\bexec\b', op): out += [('s', 126), ('s', 127)]
    return out

def split_ops(s):
    ops, depth, cur = [], 0, ''
    for ch in s:
        if ch == '[': depth += 1
        if ch == ']': depth -= 1
        if ch == ',' and depth == 0:
            ops.append(cur.strip()); cur = ''
        else:
            cur += ch
    if cur.strip(): ops.append(cur.strip())
    return ops

class Ins:
    __slots__ = ('text','mn','dst','src','kind','passes','srcC','srcAB','states')
    def __init__(self, text):
        self.text = text
        t = text.split(';')[0].strip()
        parts = t.split(None, 1)
        mn = parts[0]
        self.mn = mn
        rest = parts[1] if len(parts) > 1 else ''
        ops = split_ops(rest)
        self.dst, self.src, self.srcC, self.srcAB = [], [], [], []
        self.passes = 0
        self.states = 1
        if mn == 's_nop':
            self.kind = 'nop'; self.states = int(ops[0], 0) + 1; return
        if mn.startswith('v_mfma'):
            self.kind = 'mfma'
            self.passes = 8 if '32x32' in mn else 4
            self.dst = regs_of(ops[0]); self.srcAB = regs_of(ops[1]) + regs_of(ops[2]); self.srcC = regs_of(ops[3].split()[0])
            self.src = self.srcAB + self.srcC
        elif mn.startswith('v_cmp'):
            self.kind = 'valu'; self.dst = regs_of(ops[0]); self.src = sum((regs_of(o) for o in ops[1:]), [])
        elif (mn.startswith('v_permlane') and 'swap' in mn) or mn == 'v_swap_b32':
            self.kind = 'valu'; self.dst = regs_of(ops[0]) + regs_of(ops[1]); self.src = list(self.dst)
        elif mn.startswith('v_'):
            self.kind = 'valu'
            self.dst = regs_of(ops[0]); self.src = sum((regs_of(o) for o in ops[1:]), [])
            if mn.startswith(('v_fmac','v_dot2c','v_pk_fmac')): self.src += self.dst
            if mn.startswith(('v_add_co','v_sub_co','v_addc_co')): self.dst += regs_of(ops[1])
            if mn == 'v_cndmask_b32' and len(ops) == 3: self.src += [('s',106),('s',107)]
        elif mn.startswith(('buffer_store','global_store','buffer_atomic','global_atomic')):
            self.kind = 'vmem_st'; self.src = sum((regs_of(o) for o in ops), [])
        elif mn.startswith(('buffer_load','global_load')):
            self.kind = 'vmem_ld'
            if ' lds' in (' ' + rest + ' ').replace(',', ' ') + ' ' or 'load_lds' in mn:
                self.kind = 'dma'; self.src = sum((regs_of(o) for o in ops), []) + [('s',124)]
            else:
                self.dst = regs_of(ops[0]); self.src = sum((regs_of(o) for o in ops[1:]), [])
                if 'd16' in mn: self.src += self.dst
        elif mn.startswith('ds_write'):
            self.kind = 'ds'; self.src = sum((regs_of(o) for o in ops), [])
        elif mn.startswith('ds_'):
            self.kind = 'ds'; self.dst = regs_of(ops[0]); self.src = sum((regs_of(o) for o in ops[1:]), [])
            if 'd16' in mn: self.src += self.dst
        elif mn.startswith('s_'):
            self.kind = 'salu'
            if mn.startswith(('s_cmp','s_cbranch','s_branch','s_waitcnt','s_barrier','s_endpgm','s_setprio','s_sleep','s_setpc')):
                self.src = sum((regs_of(o) for o in ops), [])
            else:
                self.dst = regs_of(ops[0]) if ops else []; self.src = sum((regs_of(o) for o in ops[1:]), [])
        elif mn.startswith('buffer_'):
            self.kind = 'other'
        else:
            raise ValueError('unknown instr ' + text)

def need(p, c):
    n = 0
    pd = set(p.dst); cs = set(c.src); cd = set(c.dst)
    if p.kind == 'valu':
        vd = {r for r in pd if r[0] in 'va'}
        sd = {r for r in pd if r[0] == 's'}
        if c.kind == 'mfma' and vd & cs: n = max(n, 2)
        if p.mn.startswith(TRANS) and c.kind in ('valu','mfma') and vd & cs: n = max(n, 1)
        if c.kind == 'valu' and ('dpp' in c.mn or 'quad_perm' in c.text or 'row_' in c.text or c.mn.startswith('v_permlane')) and vd & cs: n = max(n, 2)
        if c.mn.startswith(('v_readfirstlane','v_readlane')) and vd & cs: n = max(n, 1)
        if p.mn.startswith('v_dot2'):
            if c.mn == p.mn:
                ops = split_ops(c.text.split(';')[0].strip().split(None,1)[1])
                ab = set(regs_of(ops[1]) + regs_of(ops[2]))
                if vd & ab: n = max(n, 3)
            elif vd & (cs | cd): n = max(n, 3)
        if sd:
            if c.kind == 'valu' and sd & cs: n = max(n, 4 if c.mn.startswith(('v_readlane','v_writelane')) else 2)
            if c.kind in ('vmem_ld','vmem_st','dma') and sd & cs: n = max(n, 5)
    if p.kind == 'mfma':
        big = 12 if p.passes == 8 else 8
        if c.kind == 'mfma':
            if pd & set(c.srcAB): n = max(n, big)
            cc = set(c.srcC)
            if pd & cc:
                if not (cc == pd and c.passes == p.passes): n = max(n, big - 2)
            elif pd & cd: n = max(n, big)
        elif c.kind in ('valu','vmem_ld','vmem_st','ds','dma'):
            if pd & (cs | cd): n = max(n, big)
            if c.kind == 'valu' and set(p.srcC) & cd: n = max(n, 7 if p.passes == 8 else 3)
    if p.kind == 'vmem_st' and ('x4' in p.mn or 'x3' in p.mn):
        data = set(regs_of(split_ops(p.text.split(';')[0].strip().split(None,1)[1])[0 if p.mn.startswith('buffer') else 1]))
        if data & cd: n = max(n, 2 if c.kind in ('valu','mfma') else 1)
    if p.kind == 'salu' and ('s',124) in pd and c.kind == 'dma': n = max(n, 1)
    return n

class Asm:
    def __init__(self):
        self.out = []
        self.hist = []
        self.nops = 0
    def raw(self, s):
        self.out.append(s)
    def label(self, l):
        self.out.append(l + ':')
    def fence(self, n=0):
        self.hist = []
    def e(self, text):
        for line in text.strip().split('\n'):
            line = line.strip()
            if not line or line.startswith(';'):
                if line: self.out.append('  ' + line)
                continue
            ins = Ins(line)
            dist = 0; req = 0
            for p in reversed(self.hist):
                r = need(p, ins)
                if r > dist: req = max(req, r - dist)
                dist += p.states
                if dist >= 20: break
            while req > 0:
                k = min(req, 16)
                nop = Ins(f's_nop {k-1}')
                self.out.append(f'  s_nop {k-1}')
                self.hist.append(nop); self.nops += 1
                req -= k
            self.out.append('  ' + line)
            self.hist.append(ins)
            if len(self.hist) > 40: self.hist = self.hist[-30:]
    def text(self):
        return '\n'.join(self.out) + '\n'

def interleave(main, fill, start=0, per=1):
    out = []
    fi = 0
    for i, m in enumerate(main):
        out.append(m)
        if i >= start:
            for _ in range(per):
                if fi < len(fill):
                    out.append(fill[fi]); fi += 1
    out += fill[fi:]
    return out
```

```python
from dsl import *
from common import *

XRING = 131072

def q(b): return f'v[{b}:{b+3}]'

def acc(i, t): return 128 + 16 * (i * 4 + t)

def compute(a, dft):
    tag = 'k1_cd' if dft else 'k1_cg'
    a.e(f'''
    v_and_b32 v1, 31, v0                 ; l31
    v_lshrrev_b32 v3, 5, v0              ; h
    ''')
    for ksl in range(4):
        a.e(f'''
        v_add_u32 v8, {2*ksl}, v3
        v_xor_b32 v8, v8, v1
        v_lshlrev_b32 v8, 4, v8
        v_lshl_add_u32 v8, v3, 9, v8
        v_add_u32 v{4+ksl}, {XRING + ksl*4096}, v8
        ''')
    if not dft:
        a.e(f'''
        v_bfe_u32 v8, v0, 2, 2               ; r
        v_lshl_add_u32 v9, v3, 3, v8         ; 8h + r
        v_lshlrev_b32 v2, 8, v9
        v_xor_b32 v8, s63, v8
        v_lshl_add_u32 v2, v8, 6, v2
        v_bfe_u32 v8, v0, 4, 1
        v_lshl_add_u32 v2, v8, 5, v2
        v_and_b32 v8, 3, v0
        v_lshl_add_u32 v2, v8, 3, v2
        ''')
    else:
        a.e(f'''
        s_lshl_b32 s64, s61, 3
        s_lshl_b32 s65, s63, 1
        s_add_u32 s64, s64, s65              ; mt0
        s_lshl_b32 s65, s64, 4               ; 16*mt0
        v_lshrrev_b32 v8, 1, v1
        v_add_u32 v8, s65, v8                ; p (i=0)
        v_and_b32 v9, 1, v1                  ; c
        v_cvt_f32_u32 v10, v9
        v_mul_f32 v10, 0x3e800000, v10       ; phase = c/4
        v_lshlrev_b32 v11, 3, v3
        v_cvt_f32_u32 v11, v11               ; 8h
        s_mov_b32 s66, {fh(1.0/448)}
        ''')
        for i in range(2):
            if i == 0:
                a.e(f'''
                v_cmp_eq_u32 vcc, 1, v1              ; l31==1
                v_cmp_eq_u32 s[68:69], 0, v8         ; p==0
                s_and_b64 vcc, vcc, s[68:69]
                v_mov_b32 v14, 224
                v_cndmask_b32 v12, v8, v14, vcc
                v_cvt_f32_u32 v12, v12
                v_cndmask_b32 v13, v10, 0, vcc
                ''')
            else:
                a.e(f'''
                v_add_u32 v12, 16, v8
                v_cvt_f32_u32 v12, v12
                v_mov_b32 v13, v10
                ''')
            a.e(f'''
            v_mul_f32 v14, v12, v11              ; freq*8h
            v_mul_f32 v15, 0x41800000, v12       ; freq*16
            v_mul_f32 v16, s66, v15
            v_cos_f32 v16, v16
            v_add_f32 v{112+i}, v16, v16         ; C2
            v_sub_f32 v15, v14, v15              ; freq*(8h-16)
            ''')
            for j in range(8):
                P = 80 + 8*i + j; Q = 96 + 8*i + j
                a.e(f'''
                v_fma_f32 v{P}, v14, s66, v13
                v_fma_f32 v{Q}, v15, s66, v13
                v_cos_f32 v{P}, v{P}
                v_cos_f32 v{Q}, v{Q}
                v_add_f32 v14, v14, v12
                v_add_f32 v15, v15, v12
                ''')
        for i in range(2):
            for jj in range(4):
                a.e(f'v_cvt_pk_bf16_f32 v{32+4*i+jj}, v{80+8*i+2*jj}, v{80+8*i+2*jj+1}')
    for r in range(128, 256):
        a.e(f'v_mov_b32 v{r}, 0')

    def reads(ksl, buf):
        L = []
        cc, kk = ksl >> 1, ksl & 1
        XB = [f'ds_read_b128 {q(48+16*buf+4*t)}, v{4+ksl} offset:{t*1024}' for t in range(4)]
        if not dft:
            WA = []
            for i in range(2):
                for rho in range(2):
                    d = 32 + 8*buf + 4*i + 2*rho
                    WA.append(f'ds_read_b64_tr_b16 v[{d}:{d+1}], v2 offset:{cc*16384 + i*8192 + kk*4096 + rho*1024}')
            L = [WA[0], WA[1], XB[0], WA[2], WA[3], XB[1], XB[2], XB[3]]
        else:
            L = XB
        return L
    def gen(ksl, buf):
        L = []
        cur, prv = (80, 96) if (ksl & 1) == 1 else (96, 80)
        for i in range(2):
            for j in range(8):
                L.append(f'v_fma_f32 v{prv+8*i+j}, v{112+i}, v{cur+8*i+j}, -v{prv+8*i+j}')
            for jj in range(4):
                L.append(f'v_cvt_pk_bf16_f32 v{32+8*buf+4*i+jj}, v{prv+8*i+2*jj}, v{prv+8*i+2*jj+1}')
        return L
    def mfmas(buf):
        return [f'v_mfma_f32_32x32x16_bf16 v[{acc(i,t)}:{acc(i,t)+15}], {q(32+8*buf+4*i)}, {q(48+16*buf+4*t)}, v[{acc(i,t)}:{acc(i,t)+15}]'
                for t in range(4) for i in range(2)]
    a.e('s_mov_b32 s70, 0')
    a.e('s_barrier')
    for l in reads(0, 0): a.e(l)
    a.e('s_nop 1')
    a.fence()
    a.label(f'{tag}_loop')
    for ksl in range(4):
        buf = ksl & 1
        nk = (ksl + 1) & 3
        M = mfmas(buf)
        a.e('s_waitcnt lgkmcnt(0)')
        pre = []
        if ksl & 1:
            a.e(M[0]); M = M[1:]
            a.e('s_barrier')
            if ksl == 3:
                if not dft:
                    pre += ['v_add_u32 v2, 0x8000, v2', 'v_and_b32 v2, 0x1ffff, v2']
                pre += [f'v_xor_b32 v{4+k}, 0x4000, v{4+k}' for k in range(4)]
                pre += ['s_add_u32 s70, s70, 1']
        R = reads(nk, buf ^ 1)
        if not dft:
            for l in pre: a.e(l)
            seq = interleave(M, R, 0, 2) if not (ksl & 1) else R[:2] + interleave(M, R[2:], 0, 2)
        else:
            G = gen(nk, buf ^ 1)
            for l in pre: a.e(l)
            fill = R + G
            seq = interleave(M, fill, 0, 4) if not (ksl & 1) else fill[:4] + interleave(M, fill[4:], 0, 4)
        for l in seq: a.e(l)
    a.e(f's_cmp_lt_u32 s70, 7\ns_cbranch_scc1 {tag}_loop')
    a.e('s_nop 7\ns_nop 7')
    a.fence()
    if not dft:
        srd(a, 32, 18, OFF_HF, SZ_HF)
        a.e(f'''
        s_mul_i32 s64, s62, {4*112}
        s_lshl_b32 s65, s61, 3
        s_add_u32 s64, s64, s65
        s_lshl_b32 s65, s63, 1
        s_add_u32 s64, s64, s65
        s_lshl_b32 s64, s64, 10
        v_lshlrev_b32 v1, 4, v0
        ''')
        n = 0
        for t in range(4):
            for jp in range(2):
                o = 32 + 4 * (n % 4); n += 1
                for dd in range(4):
                    g0 = acc(0, t) + 8*jp + 2*dd; u0 = acc(1, t) + 8*jp + 2*dd
                    a.e(f'''
                    v_max_f32 v{g0}, 0, v{g0}
                    v_max_f32 v{g0+1}, 0, v{g0+1}
                    v_mul_f32 v{g0}, v{g0}, v{u0}
                    v_mul_f32 v{g0+1}, v{g0+1}, v{u0+1}
                    v_cvt_pk_bf16_f32 v{o+dd}, v{g0}, v{g0+1}
                    ''')
                a.e(f'buffer_store_dwordx4 {q(o)}, v1, s[32:35], s64 offen offset:{jp*1024}')
            if t < 3: a.e(f's_add_u32 s64, s64, {112*1024}')
    else:
        srd(a, 32, 18, OFF_Z1, SZ_Z1)
        a.e(f'''
        s_lshl_b32 s65, s64, 17              ; mt0*16*8192
        s_lshl_b32 s66, s62, 9
        s_add_u32 s65, s65, s66
        v_lshlrev_b32 v1, 4, v1
        v_lshl_add_u32 v1, v3, 14, v1
        ''')
        n = 0
        for i in range(2):
            for aa in range(8):
                o = 32 + 4 * (n % 4); n += 1
                for t in range(4):
                    r = acc(i, t) + 2*aa
                    a.e(f'v_cvt_pk_bf16_f32 v{o+t}, v{r}, v{r+1}')
                a.e(f's_add_u32 s66, s65, {(16*i + 4*(aa>>1) + (aa&1)) * 8192}')
                a.e(f'buffer_store_dwordx4 {q(o)}, v1, s[32:35], s66 offen')
    a.e('s_endpgm')

XB = 128
def xr(g, c): return XB + (g * 7 + c) * 4

def helper(a, dft):
    tag = 'k1_hd' if dft else 'k1_hg'
    srd(a, 20, 4, 0, SZ_X)
    a.e(f'''
    s_lshl_b32 s64, s62, 2
    s_add_u32 s64, s64, s63
    s_mul_i32 s64, s64, {32*896}
    s_add_u32 s65, s64, 7168
    s_add_u32 s66, s64, {2*7168}
    s_add_u32 s67, s64, {3*7168}
    v_lshrrev_b32 v3, 3, v0              ; l>>3
    v_and_b32 v4, 7, v0                  ; l&7
    v_mul_u32_u24 v1, 896, v3
    v_lshl_add_u32 v1, v4, 4, v1
    ''')
    for g in range(4):
        for c in range(7):
            a.e(f'buffer_load_dwordx4 {q(xr(g,c))}, v1, s[20:23], s{64+g} offen offset:{c*128}')
    nafter = 0
    def dma_chunk(c):
        slot = c % 8
        L = []
        for e in range(2):
            L.append(f's_add_u32 s69, s68, {c*114688 + e*14336}')
            for mat in range(2):
                L.append(f's_add_u32 m0, s71, {slot*16384 + mat*8192 + e*1024}')
                L.append(f'buffer_load_dwordx4 v2, s[{24+4*mat}:{27+4*mat}], s69 offen lds')
        return L
    side = []
    if not dft:
        a.e(f'''
        s_lshl_b32 s69, s61, 8               ; ct*256
        s_sub_u32 s70, {SZ_WG}, s69
        ''')
        srd(a, 24, 12, 's69', 's70')
        srd(a, 28, 14, 's69', 's70')
        a.e(f'''
        s_mul_i32 s68, s63, 28672
        s_lshl_b32 s71, s63, 11
        v_lshrrev_b32 v5, 4, v0
        v_lshlrev_b32 v6, 2, v5
        v_and_b32 v7, 15, v0
        v_xor_b32 v6, v6, v7
        v_mul_u32_u24 v2, 3584, v5
        v_lshl_add_u32 v2, v6, 4, v2
        ''')
        for c in range(8):
            for l in dma_chunk(c): a.e(l)
        nafter = 32
    else:
        srd(a, 24, 6, 0, SZ_WR)
        srd(a, 28, 8, 0, SZ_WR)
        srd(a, 36, 16, 0, SZ_WG)
        a.e(f'''
        s_lshl_b32 s72, s60, 2
        s_add_u32 s72, s72, s63              ; wi
        s_mul_i32 s68, s72, 7200
        s_add_u32 s69, s68, 4096
        s_lshl_b32 s71, s63, 14              ; region A
        v_lshlrev_b32 v2, 4, v0
        ''')
        for mat in range(2):
            for hh in range(2):
                a.e(f's_add_u32 m0, s71, {mat*8192 + hh*4096}')
                for n in range(4):
                    a.e(f'buffer_load_dwordx4 v2, s[{24+4*mat}:{27+4*mat}], s{68+hh} offen offset:{n*1024} lds')
        a.e(f's_mul_i32 s68, s72, 14336')
        for hh in range(4):
            a.e(f's_add_u32 m0, s71, {65536 + hh*4096}')
            a.e(f's_add_u32 s69, s68, {hh*4096}')
            for n in range(4 if hh < 3 else 2):
                a.e(f'buffer_load_dwordx4 v2, s[36:39], s69 offen offset:{n*1024} lds')
        nafter = 30
        srd(a, 48, 18, OFF_GF, SZ_GF)
        srd(a, 52, 18, OFF_FL, SZ_FL)
        SC = 2.0 / (448 * 2048)
        a.e(f'''
        s_mul_i32 s73, s72, 147
        s_lshr_b32 s73, s73, 10
        s_mul_i32 s74, s73, 7
        s_sub_u32 s74, s72, s74              ; wi%7
        s_lshl_b32 s74, s74, 5               ; 8*ks0 = 32*(wi%7)
        s_lshl_b32 s73, s73, 5               ; 32 dt
        v_and_b32 v5, 31, v0
        v_add_u32 v5, s73, v5                ; d
        v_lshrrev_b32 v6, 5, v0
        v_lshlrev_b32 v6, 2, v6
        v_add_u32 v6, s74, v6                ; p0 = 8ks0 + 4h
        v_cvt_f32_u32 v7, v5                 ; d float
        v_cvt_f32_u32 v8, v6
        v_mul_f32 v8, v8, v7                 ; p0*d
        s_mov_b32 s75, {fh(1.0/448)}
        s_mov_b32 s76, {fh(SC)}
        v_lshlrev_b32 v9, 31, v5
        v_xor_b32 v9, {fh(SC/2)}, v9         ; alt_hi
        v_cmp_eq_u32 s[78:79], 0, v6
        v_mul_f32 v18, 4.0, v7
        s_lshl_b32 s77, s72, 12
        v_mov_b32 v20, 0
        v_mov_b32 v21, 0
        v_mov_b32 v22, 0
        v_mov_b32 v23, 0
        s_lshl_b32 s80, s72, 10
        buffer_store_dwordx4 v[20:23], v2, s[52:55], s80 offen
        ''')
        for n in range(4):
            o = 24 + 4 * n
            for j in range(4):
                a.e(f'''
                v_mul_f32 v10, s75, v8
                v_fract_f32 v10, v10
                v_cos_f32 v11, v10
                v_sin_f32 v12, v10
                v_add_f32 v8, v8, v7
                v_mul_f32 v11, s76, v11
                v_mul_f32 v12, s76, v12
                ''')
                if n == 0 and j == 0:
                    a.e(f'''
                    v_mov_b32 v13, {fh(SC/2)}
                    v_cndmask_b32 v11, v11, v13, s[78:79]
                    v_cndmask_b32 v12, v12, v9, s[78:79]
                    ''')
                a.e(f'v_cvt_pk_bf16_f32 v{o+j}, v11, v12')
            a.e(f'v_add_f32 v8, v8, v18')
            a.e(f'buffer_store_dwordx4 {q(o)}, v2, s[48:51], s77 offen offset:{n*1024}')
        nafter += 5
        srd(a, 40, 18, OFF_WF, SZ_WF)
        srd(a, 44, 18, OFF_WT, SZ_WT)
        a.e(f'''
        v_and_b32 v5, 3, v0                  ; c
        v_lshrrev_b32 v6, 2, v0              ; kl
        v_mul_u32_u24 v40, 1800, v5
        v_lshl_add_u32 v40, v6, 1, v40
        v_add_u32 v40, s71, v40
        v_lshlrev_b32 v41, 13, v6
        v_lshl_add_u32 v41, v5, 4, v41
        v_bfe_u32 v7, v0, 2, 2               ; r
        v_lshrrev_b32 v8, 5, v0              ; h
        v_lshl_add_u32 v7, v8, 2, v7         ; 4h + r
        v_mul_u32_u24 v42, 896, v7
        v_bfe_u32 v7, v0, 4, 1
        v_lshl_add_u32 v42, v7, 5, v42
        v_lshl_add_u32 v42, v5, 3, v42
        v_add_u32 v42, s71, v42
        v_add_u32 v42, 0x10000, v42
        s_lshl_b32 s81, s72, 6               ; wi*64
        s_lshl_b32 s82, s72, 10              ; kb*1024
        ''')
        for it in range(15):
            o = 44 + 4 * (it % 3)
            blk = []
            for j in range(4):
                blk.append(f'ds_read_u16 v{o+j}, v40 offset:{j*450 + 32*it}')
                blk.append(f'ds_read_u16 v{56+j}, v40 offset:{8192 + j*450 + 32*it}')
            blk.append(f's_add_u32 s83, s81, {it*131072}')
            blk.append('s_waitcnt lgkmcnt(0)')
            for j in range(4):
                blk.append(f'v_lshl_or_b32 v{o+j}, v{56+j}, 16, v{o+j}')
            blk.append(f'buffer_store_dwordx4 {q(o)}, v41, s[44:47], s83 offen')
            side.append(blk)
    a.e('v_mov_b32 v9, 0x3f803f80')
    for g in range(4):
        a.e(f'v_mov_b32 v{10+g}, 0\nv_mov_b32 v{14+g}, 0')
    for g in range(4):
        for c in range(7):
            idx = g * 7 + c
            a.e(f's_waitcnt vmcnt({27 - idx + nafter})')
            for dd in range(4):
                r = xr(g, c) + dd
                a.e(f'v_dot2c_f32_bf16 v{10+g}, v{r}, v9\nv_dot2c_f32_bf16 v{14+g}, v{r}, v{r}')
    for mod in ('quad_perm:[1,0,3,2]', 'quad_perm:[2,3,0,1]', 'row_half_mirror'):
        for r in range(10, 18):
            a.e(f'v_add_f32_dpp v{r}, v{r}, v{r} {mod} row_mask:0xf bank_mask:0xf')
    a.e(f's_mov_b32 s84, {fh(1.0/448)}\ns_mov_b32 s85, 0xffff0000')
    steps = [
        'v_mul_f32 v{m}, s84, v{m}',
        'v_mul_f32 v{t}, v{m}, v{m}',
        'v_fma_f32 v{v}, v{v}, s84, -v{t}',
        'v_max_f32 v{v}, 0, v{v}',
        'v_cvt_pk_bf16_f32 v{t}, v{m}, v{v}',
        'v_lshlrev_b32 v{m}, 16, v{t}',
        'v_and_b32 v{v}, s85, v{t}',
        'v_add_f32 v{v}, 0x3727c5ac, v{v}',
        'v_cvt_pk_bf16_f32 v{v}, v{v}, v{v}',
        'v_and_b32 v{v}, s85, v{v}',
        'v_sqrt_f32 v{v}, v{v}',
        'v_cvt_pk_bf16_f32 v{v}, v{v}, v{v}',
        'v_and_b32 v{v}, s85, v{v}',
        'v_rcp_f32 v{v}, v{v}',
        'v_mul_f32 v{m}, v{m}, v{v}',
    ]
    for st in steps:
        for g in range(4):
            a.e(st.format(m=10+g, v=14+g, t=18+g))
    a.e(f'''
    v_lshrrev_b32 v5, 1, v4
    v_lshlrev_b32 v8, 12, v5
    v_and_b32 v5, 1, v4
    v_lshl_add_u32 v8, v5, 9, v8
    v_xor_b32 v5, v3, v4
    v_lshl_add_u32 v8, v5, 4, v8
    s_lshl_b32 s86, s63, 10
    s_add_u32 s86, s86, {XRING}
    v_add_u32 v8, s86, v8
    ''')
    def norm(u):
        for g in range(4):
            for dd in range(4):
                r = xr(g, u) + dd
                t0 = 24 + 2 * dd
                a.e(f'''
                v_lshlrev_b32 v{t0}, 16, v{r}
                v_and_b32 v{t0+1}, s85, v{r}
                v_fma_f32 v{t0}, v{t0}, v{14+g}, -v{10+g}
                v_fma_f32 v{t0+1}, v{t0+1}, v{14+g}, -v{10+g}
                v_cvt_pk_bf16_f32 v{r}, v{t0}, v{t0+1}
                ''')
            a.e(f'ds_write_b128 v8, {q(xr(g,u))} offset:{(u&1)*16384 + g*128}')
    norm(0)
    si = 0
    for c in range(15):
        if not dft:
            if c <= 7:
                later = (7 - c) + max(0, min(c - 1, 6))
                a.e(f's_waitcnt vmcnt({4*later}) lgkmcnt(0)')
            elif c <= 13:
                a.e(f's_waitcnt vmcnt({4*(13-c)}) lgkmcnt(0)')
        else:
            a.e('s_waitcnt lgkmcnt(0)')
        a.e('s_barrier')
        if c == 0: norm(1)
        if not dft and 1 <= c <= 6:
            for l in dma_chunk(c + 7): a.e(l)
        if c >= 2 and c % 2 == 0 and c // 2 + 1 <= 6: norm(c // 2 + 1)
        if dft:
            if c == 1:
                a.e('s_waitcnt vmcnt(0)')
                a.e(f's_cmp_ge_u32 s72, 112\ns_cbranch_scc1 {tag}_skipB')
                for dt in range(14):
                    o = 60 + 4 * dt
                    a.e(f'ds_read_b64_tr_b16 v[{o}:{o+1}], v42 offset:{dt*64}')
                    a.e(f'ds_read_b64_tr_b16 v[{o+2}:{o+3}], v42 offset:{7168 + dt*64}')
                for dt in range(14):
                    o = 60 + 4 * dt
                    a.e(f's_add_u32 s83, s82, {dt*114688}')
                    a.e(f's_waitcnt lgkmcnt({min(15, 2*(13-dt))})')
                    a.e(f'buffer_store_dwordx4 {q(o)}, v2, s[40:43], s83 offen')
                a.label(f'{tag}_skipB')
                a.fence()
            if c in (3, 5, 7, 9, 11):
                for blk in side[si:si+3]:
                    for l in blk: a.e(l)
                si += 3
    a.e('s_endpgm')

def gen_k1(a):
    a.raw('.p2align 8')
    a.label('k1_kernel')
    a.e(f'''
    s_cmp_ge_u32 s2, 256
    s_cbranch_scc1 k1_end
    s_load_dwordx8 s[4:11], s[0:1], 0
    s_load_dwordx4 s[12:15], s[0:1], 32
    s_load_dwordx2 s[16:17], s[0:1], 48
    s_load_dwordx2 s[18:19], s[0:1], 72
    v_lshrrev_b32 v1, 6, v0
    v_and_b32 v0, 63, v0
    v_readfirstlane_b32 s3, v1
    s_and_b32 s56, s2, 7
    s_lshr_b32 s57, s2, 3
    s_and_b32 s58, s56, 1
    s_lshl_b32 s58, s58, 3
    s_lshr_b32 s59, s56, 1
    s_and_b32 s63, s3, 3
    s_cmp_ge_u32 s57, 28
    s_cbranch_scc1 k1_dft
    s_mul_i32 s60, s59, 28
    s_add_u32 s60, s60, s57
    s_lshr_b32 s61, s60, 3
    s_and_b32 s62, s60, 7
    s_add_u32 s62, s62, s58
    s_waitcnt lgkmcnt(0)
    s_cmp_ge_u32 s3, 4
    s_cbranch_scc1 k1_gu_helper
    ''')
    a.fence(); compute(a, False)
    a.label('k1_gu_helper'); a.fence(); helper(a, False)
    a.label('k1_dft'); a.fence()
    a.e(f'''
    s_sub_u32 s57, s57, 28
    s_lshl_b32 s62, s59, 1
    s_add_u32 s62, s62, s58
    s_lshr_b32 s60, s57, 1
    s_add_u32 s62, s62, s60
    s_and_b32 s61, s57, 1
    s_lshl_b32 s60, s56, 2
    s_add_u32 s60, s60, s57
    s_waitcnt lgkmcnt(0)
    s_cmp_ge_u32 s3, 4
    s_cbranch_scc1 k1_dft_helper
    ''')
    a.fence(); compute(a, True)
    a.label('k1_dft_helper'); a.fence(); helper(a, True)
    a.label('k1_end')
    a.e('s_endpgm')
```

```python
from dsl import *
from common import *

def q(b, k='v'): return f'{k}[{b}:{b+3}]'

class VM:
    def __init__(self, a): self.a = a; self.ops = []; self.done = 0
    def issue(self, text, tag):
        assert len(self.ops) - self.done < 63, 'too many outstanding'
        self.a.e(text); self.ops.append(tag)
    def wait(self, tag):
        idx = max(i for i, t in enumerate(self.ops) if t == tag)
        if idx < self.done: return
        n = len(self.ops) - 1 - idx
        self.a.e(f's_waitcnt vmcnt({n})'); self.done = idx + 1
    def outstanding(self): return len(self.ops) - self.done

XA = 32; WV = 64; C64R = 72; C64I = 88; C32R = 104; C32I = 120; TW1 = 136; TW2 = 152
DR = 168; DI = 176; ER = 184; EI = 192; PK = 200
ACC = 192
NR = 15

def gen_k2(a, name, mode):
    do_fft = mode in ('fft', 'both'); do_gemm = mode in ('gemm', 'both'); both = mode == 'both'
    SC1 = ' sc0 sc1' if both else ''
    nwg = 225 if do_fft else 224
    a.raw('.p2align 8'); a.label(name); a.fence()
    vm = VM(a)
    a.e(f'''
    s_cmp_ge_u32 s2, {nwg}
    s_cbranch_scc1 {name}_end
    s_load_dwordx2 s[4:5], s[0:1], 0
    s_load_dwordx2 s[6:7], s[0:1], 56
    s_load_dwordx2 s[8:9], s[0:1], 72
    v_lshrrev_b32 v1, 6, v0
    v_and_b32 v0, 63, v0
    v_readfirstlane_b32 s3, v1
    v_and_b32 v1, 15, v0                 ; l15
    v_lshrrev_b32 v2, 4, v0              ; q
    v_lshlrev_b32 v3, 4, v0              ; lane*16
    s_and_b32 s50, s2, 7
    s_lshr_b32 s51, s2, 3
    s_mul_i32 s52, s51, 37
    s_lshr_b32 s52, s52, 8               ; j/7
    s_mul_i32 s53, s52, 7
    s_sub_u32 s53, s51, s53              ; dt64
    s_lshl_b32 s50, s50, 2
    s_add_u32 s52, s52, s50              ; st64
    s_cmp_eq_u32 s2, 224
    s_cselect_b32 s54, 0, s2             ; p
    s_waitcnt lgkmcnt(0)
    ''')
    if do_fft:
        srd(a, 24, 8, OFF_Z1, SZ_Z1)
        srd(a, 28, 8, OFF_WT, SZ_WT)
        a.e(f'''
        s_lshl_b32 s55, s54, 13              ; p*8192
        s_add_u32 s56, s55, 4096
        v_lshlrev_b32 v4, 4, v1
        v_lshl_add_u32 v4, v2, 9, v4         ; q*512 + l15*16
        s_lshl_b32 s57, s2, 13
        s_lshl_b32 s58, s3, 6
        s_add_u32 s57, s57, s58              ; k*8192 + w*64
        s_add_u32 s58, s57, 4096
        v_lshlrev_b32 v5, 2, v1
        v_lshl_add_u32 v5, v2, 10, v5        ; q*1024 + l15*4
        ''')
        for u in range(4):
            for t in range(2):
                vm.issue(f'buffer_load_dwordx4 {q(XA+16*t+4*u)}, v4, s[24:27], s{55+(u>>1)} offen offset:{(u&1)*2048 + t*256}', 'xa')
        for tm in range(2):
            for i in range(4):
                vm.issue(f'buffer_load_dword v{WV+4*tm+i}, v5, s[28:31], s{57+tm} offen offset:{i*256}', 'wv')
    issued = [0]
    def issue_k(i):
        r = 16 * (i % NR)
        if i < 28:
            o = (i & 3) * 1024
            vm.issue(f'buffer_load_dwordx4 {q(r,"a")}, v3, s[16:19], s62 offen offset:{o}', ('k', i))
            vm.issue(f'buffer_load_dwordx4 {q(r+8,"a")}, v3, s[12:15], s60 offen offset:{o}', ('k', i))
            vm.issue(f'buffer_load_dwordx4 {q(r+4,"a")}, v3, s[16:19], s63 offen offset:{o}', ('k', i))
            vm.issue(f'buffer_load_dwordx4 {q(r+12,"a")}, v3, s[12:15], s61 offen offset:{o}', ('k', i))
            if (i & 3) == 3:
                for s in (60, 61, 62, 63): a.e(f's_add_u32 s{s}, s{s}, 4096')
        else:
            ii = i - 28
            o = (ii & 3) * 1024
            vm.issue(f'buffer_load_dwordx4 {q(r,"a")}, v3, s[20:23], s64 offen offset:{o}', ('k', i))
            vm.issue(f'buffer_load_dwordx4 {q(r+4,"a")}, v3, s[20:23], s65 offen offset:{o}', ('k', i))
            if ii == 3:
                for s in (64, 65): a.e(f's_add_u32 s{s}, s{s}, 4096')
        issued[0] = i + 1
    extra = []
    gf_ready = [False]
    def pump(i, reserve=0):
        while True:
            n = issued[0]
            if extra and vm.outstanding() + 1 + reserve <= 63:
                pre, text, tag = extra.pop(0)
                if pre: a.e(pre)
                vm.issue(text, tag); continue
            if n < 35 and n - NR <= i and (n < 28 or gf_ready[0]) and vm.outstanding() + (4 if n < 28 else 2) + reserve <= 63:
                issue_k(n); continue
            break
    if do_gemm:
        if both:
            a.e(f's_cmp_eq_u32 s2, 224\ns_cbranch_scc1 {name}_fftonly')
        srd(a, 12, 8, OFF_HF, SZ_HF)
        srd(a, 16, 8, OFF_WF, SZ_WF)
        a.e(f'''
        s_mul_i32 s66, s3, 28
        s_mul_i32 s60, s52, 224
        s_add_u32 s60, s60, s66
        s_lshl_b32 s60, s60, 10
        s_add_u32 s61, s60, 114688
        s_mul_i32 s62, s53, 224
        s_add_u32 s62, s62, s66
        s_lshl_b32 s62, s62, 10
        s_add_u32 s63, s62, 114688
        ''')
        pump(-1)
        srd(a, 20, 8, OFF_GF, SZ_GF)
        srd(a, 40, 4, 0, SZ_X)
        srd(a, 44, 6, 0, SZ_X)
        a.e(f'''
        s_mul_i32 s66, s3, 7
        s_mul_i32 s64, s53, 56
        s_add_u32 s64, s64, s66
        s_lshl_b32 s64, s64, 10
        s_add_u32 s65, s64, {28*1024}
        ''')
        gf_ready[0] = True
    srd(a, 32, 8, OFF_Z3, SZ_Z3)
    if both: srd(a, 36, 8, OFF_FL, SZ_FL)

    def fft_body(vm, tag, more_prefetch):
        a.e(f'''
        s_lshl_b32 s67, s3, 4
        v_add_u32 v8, s67, v1                ; 16w + l15
        v_cvt_f32_u32 v8, v8
        v_lshlrev_b32 v9, 2, v2
        v_cvt_f32_u32 v9, v9                 ; 4q
        v_cvt_f32_u32 v10, v1                ; l15
        v_mul_f32 v11, {fh(1/64)}, v8        ; a/64
        v_mul_f32 v12, v11, v9               ; arg
        v_mul_f32 v13, {fh(12.0)}, v11
        ''')
        def cs_pack(arg, dr, di):
            a.e(f'''
            v_cos_f32 v14, v{arg}
            v_sin_f32 v15, v{arg}
            ''')
            return f'''
            v_cvt_pk_bf16_f32 v{dr}, v14, v15
            v_cvt_pk_bf16_f32 v{di}, -v15, v14
            '''
        for u in range(4):
            for j in range(4):
                post = cs_pack(12, C64R+4*u+j, C64I+4*u+j)
                a.e('v_add_f32 v12, v12, v11')
                a.e(post)
            if u < 3: a.e('v_add_f32 v12, v12, v13')
        for t in range(2):
            a.e(f'''
            v_add_f32 v11, {fh(16.0*t)}, v10
            v_mul_f32 v11, {fh(1/32)}, v11
            v_mul_f32 v12, v11, v9
            v_mul_f32 v13, {fh(12.0)}, v11
            ''')
            for u in range(2):
                for j in range(4):
                    post = cs_pack(12, C32R+8*t+4*u+j, C32I+8*t+4*u+j)
                    a.e('v_add_f32 v12, v12, v11')
                    a.e(post)
                if u < 1: a.e('v_add_f32 v12, v12, v13')
        a.e(f'''
        v_mul_f32 v11, {fh(1/2048)}, v8
        v_mul_f32 v12, v11, v9
        v_mul_f32 v13, {fh(12.0)}, v11
        ''')
        for t in range(2):
            for i in range(4):
                a.e(f'v_cos_f32 v{TW1+2*(4*t+i)}, v12\nv_sin_f32 v{TW1+2*(4*t+i)+1}, v12\nv_add_f32 v12, v12, v11')
            if t < 1: a.e('v_add_f32 v12, v12, v13')
        a.e(f'''
        v_cvt_f32_u32 v16, s67
        v_add_f32 v16, v16, v9               ; 16w+4q
        ''')
        for t in range(2):
            a.e(f'''
            v_add_f32 v11, {fh(16.0*t)}, v10
            v_mul_f32 v11, {fh(1/2048)}, v11
            v_mul_f32 v12, v11, v16
            ''')
            for i in range(4):
                a.e(f'v_cos_f32 v{TW2+2*(4*t+i)}, v12\nv_sin_f32 v{TW2+2*(4*t+i)+1}, v12\nv_add_f32 v12, v12, v11')
        vm.wait('xa')
        a.e(f's_cmp_lg_u32 s54, 0\ns_cbranch_scc1 {tag}_nofix')
        a.e(f's_cmp_eq_u32 s2, 224\ns_cselect_b32 s68, 16, 0')
        for r in range(XA, XA+32):
            a.e(f'v_lshrrev_b32 v{r}, s68, v{r}\nv_and_b32 v{r}, 0xffff, v{r}')
        a.e('s_nop 1')
        a.label(f'{tag}_nofix'); a.fence()
        def mm(d, A, B, first):
            c = '0' if first else q(d)
            a.e(f'v_mfma_f32_16x16x32_bf16 {q(d)}, {q(A)}, {q(B)}, {c}')
        for u in range(4):
            for t in range(2):
                mm(DR+4*t, XA+16*t+4*u, C64R+4*u, u == 0)
                mm(DI+4*t, XA+16*t+4*u, C64I+4*u, u == 0)
        more_prefetch()
        def twiddle(R, I, TW, out):
            for t in range(2):
                for i in range(4):
                    c = TW + 2*(4*t+i); s = c + 1
                    r = R + 4*t + i; im = I + 4*t + i
                    t0 = 8 + 2*i
                    a.e(f'''
                    v_mul_f32 v{t0}, v{r}, v{c}
                    v_mul_f32 v{t0+1}, v{im}, v{c}
                    v_fmac_f32 v{t0}, v{im}, v{s}
                    v_fma_f32 v{t0+1}, -v{r}, v{s}, v{t0+1}
                    v_cvt_pk_bf16_f32 v{out+4*t+i}, v{t0}, v{t0+1}
                    ''')
        twiddle(DR, DI, TW1, PK)
        for t in range(2):
            for tm in range(2):
                mm(ER+4*tm, C32R+8*tm+4*t, PK+4*t, t == 0)
                mm(EI+4*tm, C32I+8*tm+4*t, PK+4*t, t == 0)
        vm.wait('wv')
        for n in range(8):
            a.e(f'v_lshlrev_b32 v{16+n}, 16, v{WV+n}\nv_and_b32 v{24+n}, 0xffff0000, v{WV+n}')
        for tm in range(2):
            for i in range(4):
                n = 4*tm + i
                xr_ = ER + n; xi = EI + n; wr = 16 + n; wi = 24 + n
                t0 = 8 + 2*i
                a.e(f'''
                v_mul_f32 v{t0}, v{xr_}, v{wr}
                v_mul_f32 v{t0+1}, v{xr_}, v{wi}
                v_fma_f32 v{t0}, -v{xi}, v{wi}, v{t0}
                v_fmac_f32 v{t0+1}, v{xi}, v{wr}
                v_cvt_pk_bf16_f32 v{PK+n}, v{t0}, -v{t0+1}
                ''')
        for tm in range(2):
            for tn in range(2):
                mm(DR+4*tn, PK+4*tm, C32R+8*tn+4*tm, tm == 0)
                mm(DI+4*tn, PK+4*tm, C32I+8*tn+4*tm, tm == 0)
        a.e('s_lshl_b32 s68, s3, 11\nv_add_u32 v6, s68, v3')
        twiddle(DR, DI, TW2, PK)
        a.e(f'''
        ds_write_b128 v6, {q(PK)}
        ds_write_b128 v6, {q(PK+4)} offset:1024
        s_waitcnt lgkmcnt(0)
        s_barrier
        ''')
        for u in range(4):
            for tn in range(2):
                a.e(f'ds_read_b128 {q(XA+16*tn+4*u)}, v3 offset:{(2*u+tn)*1024}')
        a.e(f'''
        v_lshlrev_b32 v6, 3, v1
        v_lshl_add_u32 v6, v2, 9, v6
        s_lshl_b32 s68, s3, 11
        s_add_u32 s68, s68, s55
        ''')
        for u in range(4):
            a.e(f's_waitcnt lgkmcnt({6-2*u})')
            for tn in range(2):
                mm(ER+4*tn, C64R+4*u, XA+16*tn+4*u, u == 0)
                mm(EI+4*tn, C64I+4*u, XA+16*tn+4*u, u == 0)
        for n in range(8):
            a.e(f'v_cvt_pk_bf16_f32 v{PK+n}, v{ER+n}, v{EI+n}')
        a.e(f's_cmp_lg_u32 s54, 0\ns_cbranch_scc1 {tag}_st32')
        a.e(f's_cmp_eq_u32 s2, 224\ns_cselect_b32 s69, 2, 0\ns_add_u32 s68, s68, s69')
        for tn in range(2):
            for i in range(4):
                a.e(f'buffer_store_short v{PK+4*tn+i}, v6, s[32:35], s68 offen offset:{(i>>1)*256 + tn*128 + (i&1)*4}{SC1}')
        a.e('s_waitcnt vmcnt(0)')
        a.e(f's_branch {tag}_stdone')
        a.label(f'{tag}_st32'); a.fence()
        for tn in range(2):
            for e in range(2):
                vm.issue(f'buffer_store_dwordx2 v[{PK+4*tn+2*e}:{PK+4*tn+2*e+1}], v6, s[32:35], s68 offen offset:{e*256 + tn*128}{SC1}', 'z3st')
        a.label(f'{tag}_stdone'); a.fence()

    def send_flag():
        a.e(f'''
        s_lshl_b32 s68, s3, 10
        s_lshl_b32 s69, s2, 2
        s_add_u32 s68, s68, s69
        v_lshlrev_b32 v7, 12, v0
        v_mov_b32 v8, 1
        ''')

    if do_fft:
        def more():
            if both: pump(-1, reserve=4)
        fft_body(vm, name, more)
        if not both:
            a.e('s_endpgm')
    if do_gemm:
        a.e(f'''
        v_and_b32 v4, 31, v0                 ; l31
        v_lshrrev_b32 v5, 5, v0              ; h
        s_and_b32 s70, s3, 1
        s_lshr_b32 s71, s3, 1
        s_lshl_b32 s72, s52, 1
        s_add_u32 s72, s72, s70              ; st32
        s_mul_i32 s72, s72, {32*896}
        s_lshl_b32 s73, s53, 1
        s_add_u32 s73, s73, s71
        s_lshl_b32 s73, s73, 6
        s_add_u32 s72, s72, s73
        v_mul_u32_u24 v9, 896, v4
        v_lshl_add_u32 v10, v5, 3, v9
        v_lshl_add_u32 v11, v5, 4, v9
        ; z3 voffsets v12..v15 = (4h + j)*8192 + l31*8
        v_lshlrev_b32 v12, 3, v4
        v_lshl_add_u32 v12, v5, 15, v12
        v_add_u32 v13, 0x2000, v12
        v_add_u32 v14, 0x4000, v12
        v_add_u32 v15, 0x6000, v12
        s_mul_i32 s74, s3, {56*8192}
        s_lshl_b32 s75, s52, 8
        s_add_u32 s74, s74, s75
        ''')
        if both: send_flag()
        def mf(i, first, Bregs=None):
            r = 16 * (i % NR)
            for aa in range(2):
                for b in range(2):
                    d = ACC + 16 * (2*b + aa)
                    c = '0' if first else f'v[{d}:{d+15}]'
                    B = q(r+8+4*aa, 'a') if Bregs is None else q(Bregs + 4*aa)
                    a.e(f'v_mfma_f32_32x32x16_bf16 v[{d}:{d+15}], {q(r+4*b,"a")}, {B}, {c}')
        ZL = 32
        ZF = 96
        def z3_loads():
            for ii in range(7):
                for j in range(4):
                    r = ZL + 8*ii + 2*j
                    extra.append((f's_add_u32 s75, s74, {ii*65536}' if j == 0 else None,
                                  f'buffer_load_dwordx2 v[{r}:{r+1}], v{12+j}, s[32:35], s75 offen{" sc1" if both else ""}', ('z', ii)))
        for i in range(28):
            vm.wait(('k', i))
            mf(i, i == 0)
            if both and i == FLAG_AT:
                vm.wait('z3st')
                extra.append((None, f'buffer_store_dword v8, v7, s[36:39], s68 offen sc0 sc1', 'flag'))
            if i == XRES_AT:
                for g in range(4):
                    extra.append((None, f'buffer_load_dwordx2 v[{16+2*g}:{17+2*g}], v10, s[40:43], s72 offen offset:{16*g}', 'xres'))
            if both and i == POLL_AT:
                a.e(f'''
                s_lshr_b32 s76, s52, 3
                s_lshl_b32 s76, s76, 10
                s_mul_i32 s77, s3, 56
                v_min_u32 v24, 55, v0
                v_add_u32 v24, s77, v24
                v_cmp_eq_u32 vcc, 56, v0
                v_mov_b32 v25, 224
                v_cndmask_b32 v24, v24, v25, vcc
                v_lshlrev_b32 v24, 2, v24
                ''')
                extra.append((None, 'buffer_load_dword v25, v24, s[36:39], s76 offen sc0 sc1', 'poll'))
            if i == Z3_AT:
                if both:
                    vm.wait('poll')
                    a.label(f'{name}_chk'); a.fence()
                    a.e(f'''
                    v_cmp_ne_u32 vcc, 0, v25
                    s_nop 1
                    s_cmp_eq_u64 vcc, exec
                    s_cbranch_scc1 {name}_ready
                    s_sleep 2
                    buffer_load_dword v25, v24, s[36:39], s76 offen sc0 sc1
                    s_waitcnt vmcnt(0)
                    s_branch {name}_chk
                    ''')
                    a.label(f'{name}_ready'); a.fence()
                z3_loads()
            pump(i)
        for ii in range(7):
            pump(27 + ii)
            vm.wait(('k', 28 + ii)); vm.wait(('z', ii))
            for j in range(4):
                for aa in range(2):
                    a.e(f'v_mov_b32 v{ZF+8*ii+4*aa+j}, v{ZL+8*ii+2*j+aa}')
            mf(28 + ii, False, ZF + 8*ii)
        a.e(f'''
        s_lshl_b32 s76, s3, 12
        v_add_u32 v6, s76, v3
        s_lshl_b32 s76, s3, 14
        v_add_u32 v7, s76, v3
        s_barrier
        ''')
        for tl in range(4):
            for c in range(4):
                a.e(f'ds_write_b128 v6, {q(ACC+16*tl+4*c)} offset:{tl*16384 + c*1024}')
        a.e('s_waitcnt lgkmcnt(0)\ns_barrier')
        for sw in range(4):
            for c in range(4):
                a.e(f'ds_read_b128 {q(32+16*sw+4*c)}, v7 offset:{sw*4096 + c*1024}')
        vm.wait('xres')
        for g in range(4):
            for c in range(2):
                a.e(f'v_lshlrev_b32 v{96+4*g+2*c}, 16, v{16+2*g+c}\nv_and_b32 v{96+4*g+2*c+1}, 0xffff0000, v{16+2*g+c}')
        for sw in range(4):
            a.e(f's_waitcnt lgkmcnt({12-4*sw})')
            for r in range(16):
                a.e(f'v_add_f32 v{96+r}, v{96+r}, v{32+16*sw+r}')
        for g in range(4):
            for c in range(2):
                a.e(f'v_cvt_pk_bf16_f32 v{112+2*g+c}, v{96+4*g+2*c}, v{96+4*g+2*c+1}')
        for g in (0, 2):
            for c in range(2):
                a.e(f'v_permlane32_swap_b32 v{112+2*g+c}, v{112+2*g+2+c}')
        for g in (0, 2):
            a.e(f'buffer_store_dwordx4 {q(112+2*g)}, v11, s[44:47], s72 offen offset:{16*g}')
        a.e('s_endpgm')
        if both:
            a.label(f'{name}_fftonly'); a.fence()
            srd(a, 32, 8, OFF_Z3, SZ_Z3)
            srd(a, 36, 8, OFF_FL, SZ_FL)
            vm2 = VM(a); vm2.ops = ['xa']*8 + ['wv']*8
            fft_body(vm2, name + '_f', lambda: None)
            send_flag()
            a.e('s_waitcnt vmcnt(0)\nbuffer_store_dword v8, v7, s[36:39], s68 offen sc0 sc1\ns_endpgm')
    a.label(f'{name}_end')
    a.e('s_endpgm')

FLAG_AT = 0
XRES_AT = 14
POLL_AT = 16
Z3_AT = 21
```

```python
import sys
sys.path.insert(0, 'gen')
from dsl import *
from common import *
import k1, k2
mode = sys.argv[1] if len(sys.argv) > 1 else 'split'
out = sys.argv[2] if len(sys.argv) > 2 else 'cur.s'
hdr = open('parallel_sum__spectral_gfnet__glu_gated_reglu__prompt.s.ref').read().split('\n')
hdr = [l for l in hdr if l.startswith(';') and '@launch' not in l and 'Override' not in l and 'grid=ceil' not in l]
a = Asm()
L = ['; @launch kernel=k1_kernel grid=(256,1,1) block=(512,1,1) lds=163840']
if mode == 'split':
    L += ['; @launch kernel=k2f_kernel grid=(225,1,1) block=(256,1,1) lds=65536',
          '; @launch kernel=k2g_kernel grid=(224,1,1) block=(256,1,1) lds=65536']
else:
    L += ['; @launch kernel=k2_kernel grid=(225,1,1) block=(256,1,1) lds=65536']
for l in hdr + L: a.raw(l)
a.raw('.amdgcn_target "amdgcn-amd-amdhsa--gfx950"')
a.raw('.text')
k1.NK = 3 if mode == 'split' else 2
k1.gen_k1(a)
names = []
if mode == 'split':
    k2.gen_k2(a, 'k2f_kernel', 'fft'); k2.gen_k2(a, 'k2g_kernel', 'gemm'); names = ['k2f_kernel', 'k2g_kernel']
else:
    k2.gen_k2(a, 'k2_kernel', 'both'); names = ['k2_kernel']
a.raw('.section .rodata,"a"')
a.raw(kd('k1_kernel', 256, 102, 256))
for n in names: a.raw(kd(n, 512, 102, 256))
open(out, 'w').write(a.text())
print('nops inserted', a.nops, 'lines', len(a.out))
```

```python
import struct
S, D, F = 2048, 448, 1792
SZ_X = S * D * 2
SZ_WR = S * 225 * 2
SZ_WG = D * F * 2
SZ_HF = 64 * 112 * 1024
SZ_WF = 14 * 112 * 1024
SZ_GF = 14 * 28 * 1024
SZ_Z1 = 224 * 8192
SZ_WT = 225 * 8192
SZ_Z3 = 224 * 8192
SZ_FL = 4096
OFF_HF = 0
OFF_WF = OFF_HF + SZ_HF
OFF_GF = OFF_WF + SZ_WF
OFF_Z1 = OFF_GF + SZ_GF
OFF_WT = OFF_Z1 + SZ_Z1
OFF_Z3 = OFF_WT + SZ_WT
OFF_FL = OFF_Z3 + SZ_Z3

def f2u(x):
    return struct.unpack('<I', struct.pack('<f', x))[0]
def fh(x):
    return '0x%08x' % f2u(x)

def srd(a, d, base, off, size):
    if off == 0:
        a.e(f's_mov_b32 s{d}, s{base}\ns_mov_b32 s{d+1}, s{base+1}')
    else:
        a.e(f's_add_u32 s{d}, s{base}, {off}\ns_addc_u32 s{d+1}, s{base+1}, 0')
    a.e(f's_mov_b32 s{d+2}, {size}\ns_mov_b32 s{d+3}, 0x00020000')

def kd(name, vgpr, sgpr, accum):
    return f""".p2align 6
.amdhsa_kernel {name}
  .amdhsa_next_free_vgpr {vgpr}
  .amdhsa_next_free_sgpr {sgpr}
  .amdhsa_accum_offset {accum}
  .amdhsa_group_segment_fixed_size 0
  .amdhsa_kernarg_size 80
  .amdhsa_user_sgpr_count 2
  .amdhsa_user_sgpr_kernarg_segment_ptr 1
  .amdhsa_system_sgpr_workgroup_id_x 1
.end_amdhsa_kernel
"""

import os
DIAG = int(os.environ.get('DIAG', '0'))
def diag_start(a):
    if not DIAG: return
    a.e('''
    s_memrealtime s[90:91]
    s_memtime s[92:93]
    s_load_dwordx2 s[88:89], s[0:1], 64
    ''')
def diag_mark(a, kidx, slot):
    pass
def endpgm(a, kidx, sub=0):
    if DIAG:
        a.e(f'''
        s_waitcnt vmcnt(0)
        s_memrealtime s[94:95]
        s_memtime s[84:85]
        s_waitcnt lgkmcnt(0)
        s_sub_u32 s88, s88, {512*kidx}
        s_subb_u32 s89, s89, 0
        s_mov_b64 exec, 1
        s_not_b32 s86, s90
        s_sub_u32 s84, s84, s92
        s_sub_u32 s85, s94, s90
        v_mov_b32 v0, 0
        v_mov_b32 v1, s86
        v_mov_b32 v2, s94
        v_mov_b32 v3, s84
        v_mov_b32 v4, s85
        global_atomic_umax v0, v1, s[88:89] offset:{16*kidx}
        global_atomic_umax v0, v2, s[88:89] offset:{16*kidx+4}
        global_atomic_umax v0, v3, s[88:89] offset:{16*kidx+8}
        global_atomic_umax v0, v4, s[88:89] offset:{16*kidx+12}
        global_atomic_umax v0, v4, s[88:89] offset:{48+4*sub}
        ''')
    a.e('s_endpgm')
```

```python
from dsl import *
from common import *

XRING = 131072

def q(b): return f'v[{b}:{b+3}]'

def acc(i, t): return 128 + 16 * (i * 4 + t)

def compute(a, dft):
    tag = 'k1_cd' if dft else 'k1_cg'
    a.e(f'''
    v_and_b32 v1, 31, v0                 ; l31
    v_lshrrev_b32 v3, 5, v0              ; h
    ''')
    for ksl in range(4):
        a.e(f'''
        v_add_u32 v8, {2*ksl}, v3
        v_xor_b32 v8, v8, v1
        v_lshlrev_b32 v8, 4, v8
        v_lshl_add_u32 v8, v3, 9, v8
        v_add_u32 v{4+ksl}, {XRING + ksl*4096}, v8
        ''')
    if not dft:
        a.e(f'''
        v_bfe_u32 v8, v0, 2, 2               ; r
        v_lshl_add_u32 v9, v3, 3, v8         ; 8h + r
        v_lshlrev_b32 v2, 8, v9
        v_xor_b32 v8, s63, v8
        v_lshl_add_u32 v2, v8, 6, v2
        v_bfe_u32 v8, v0, 4, 1
        v_lshl_add_u32 v2, v8, 5, v2
        v_and_b32 v8, 3, v0
        v_lshl_add_u32 v2, v8, 3, v2
        ''')
    else:
        a.e(f'''
        s_lshl_b32 s64, s61, 3
        s_lshl_b32 s65, s63, 1
        s_add_u32 s64, s64, s65              ; mt0
        s_lshl_b32 s65, s64, 4               ; 16*mt0
        v_lshrrev_b32 v8, 1, v1
        v_add_u32 v8, s65, v8                ; p (i=0)
        v_and_b32 v9, 1, v1                  ; c
        v_cvt_f32_u32 v10, v9
        v_mul_f32 v10, 0x3e800000, v10       ; phase = c/4
        v_lshlrev_b32 v11, 3, v3
        v_cvt_f32_u32 v11, v11               ; 8h
        s_mov_b32 s66, {fh(1.0/448)}
        ''')
        for i in range(2):
            if i == 0:
                a.e(f'''
                v_cmp_eq_u32 vcc, 1, v1              ; l31==1
                v_cmp_eq_u32 s[68:69], 0, v8         ; p==0
                s_and_b64 vcc, vcc, s[68:69]
                v_mov_b32 v14, 224
                v_cndmask_b32 v12, v8, v14, vcc
                v_cvt_f32_u32 v12, v12
                v_cndmask_b32 v13, v10, 0, vcc
                ''')
            else:
                a.e(f'''
                v_add_u32 v12, 16, v8
                v_cvt_f32_u32 v12, v12
                v_mov_b32 v13, v10
                ''')
            a.e(f'''
            v_mul_f32 v14, v12, v11              ; freq*8h
            v_mul_f32 v15, 0x41800000, v12       ; freq*16
            v_mul_f32 v16, s66, v15
            v_cos_f32 v16, v16
            v_add_f32 v{112+i}, v16, v16         ; C2
            v_sub_f32 v15, v14, v15              ; freq*(8h-16)
            ''')
            for j in range(8):
                P = 80 + 8*i + j; Q = 96 + 8*i + j
                a.e(f'''
                v_fma_f32 v{P}, v14, s66, v13
                v_fma_f32 v{Q}, v15, s66, v13
                v_cos_f32 v{P}, v{P}
                v_cos_f32 v{Q}, v{Q}
                v_add_f32 v14, v14, v12
                v_add_f32 v15, v15, v12
                ''')
        for i in range(2):
            for jj in range(4):
                a.e(f'v_cvt_pk_bf16_f32 v{32+4*i+jj}, v{80+8*i+2*jj}, v{80+8*i+2*jj+1}')
    for r in range(128, 256):
        a.e(f'v_mov_b32 v{r}, 0')

    def reads(ksl, buf):
        L = []
        cc, kk = ksl >> 1, ksl & 1
        XB = [f'ds_read_b128 {q(48+16*buf+4*t)}, v{4+ksl} offset:{t*1024}' for t in range(4)]
        if not dft:
            WA = []
            for i in range(2):
                for rho in range(2):
                    d = 32 + 8*buf + 4*i + 2*rho
                    WA.append(f'ds_read_b64_tr_b16 v[{d}:{d+1}], v2 offset:{cc*16384 + i*8192 + kk*4096 + rho*1024}')
            L = [WA[0], WA[1], XB[0], WA[2], WA[3], XB[1], XB[2], XB[3]]
        else:
            L = XB
        return L
    def gen(ksl, buf):
        L = []
        cur, prv = (80, 96) if (ksl & 1) == 1 else (96, 80)
        for i in range(2):
            for j in range(8):
                L.append(f'v_fma_f32 v{prv+8*i+j}, v{112+i}, v{cur+8*i+j}, -v{prv+8*i+j}')
            for jj in range(4):
                L.append(f'v_cvt_pk_bf16_f32 v{32+8*buf+4*i+jj}, v{prv+8*i+2*jj}, v{prv+8*i+2*jj+1}')
        return L
    def mfmas(buf):
        return [f'v_mfma_f32_32x32x16_bf16 v[{acc(i,t)}:{acc(i,t)+15}], {q(32+8*buf+4*i)}, {q(48+16*buf+4*t)}, v[{acc(i,t)}:{acc(i,t)+15}]'
                for t in range(4) for i in range(2)]
    a.e('s_mov_b32 s70, 0')
    a.e('s_barrier')
    for l in reads(0, 0): a.e(l)
    a.e('s_nop 1')
    a.fence()
    a.label(f'{tag}_loop')
    for ksl in range(4):
        buf = ksl & 1
        nk = (ksl + 1) & 3
        M = mfmas(buf)
        a.e('s_waitcnt lgkmcnt(0)')
        pre = []
        if ksl & 1:
            a.e(M[0]); M = M[1:]
            a.e('s_barrier')
            if ksl == 3:
                if not dft:
                    pre += ['v_add_u32 v2, 0x8000, v2', 'v_and_b32 v2, 0x1ffff, v2']
                pre += [f'v_xor_b32 v{4+k}, 0x4000, v{4+k}' for k in range(4)]
                pre += ['s_add_u32 s70, s70, 1']
        R = reads(nk, buf ^ 1)
        if not dft:
            for l in pre: a.e(l)
            seq = interleave(M, R, 0, 2) if not (ksl & 1) else R[:2] + interleave(M, R[2:], 0, 2)
        else:
            G = gen(nk, buf ^ 1)
            for l in pre: a.e(l)
            fill = R + G
            seq = interleave(M, fill, 0, 4) if not (ksl & 1) else fill[:4] + interleave(M, fill[4:], 0, 4)
        for l in seq: a.e(l)
    a.e(f's_cmp_lt_u32 s70, 7\ns_cbranch_scc1 {tag}_loop')
    a.e('s_nop 7\ns_nop 7')
    a.fence()
    if not dft:
        srd(a, 32, 18, OFF_HF, SZ_HF)
        a.e(f'''
        s_mul_i32 s64, s62, {4*112}
        s_lshl_b32 s65, s61, 3
        s_add_u32 s64, s64, s65
        s_lshl_b32 s65, s63, 1
        s_add_u32 s64, s64, s65
        s_lshl_b32 s64, s64, 10
        v_lshlrev_b32 v1, 4, v0
        ''')
        n = 0
        for t in range(4):
            for jp in range(2):
                o = 32 + 4 * (n % 4); n += 1
                for dd in range(4):
                    g0 = acc(0, t) + 8*jp + 2*dd; u0 = acc(1, t) + 8*jp + 2*dd
                    a.e(f'''
                    v_max_f32 v{g0}, 0, v{g0}
                    v_max_f32 v{g0+1}, 0, v{g0+1}
                    v_mul_f32 v{g0}, v{g0}, v{u0}
                    v_mul_f32 v{g0+1}, v{g0+1}, v{u0+1}
                    v_cvt_pk_bf16_f32 v{o+dd}, v{g0}, v{g0+1}
                    ''')
                a.e(f'buffer_store_dwordx4 {q(o)}, v1, s[32:35], s64 offen offset:{jp*1024}')
            if t < 3: a.e(f's_add_u32 s64, s64, {112*1024}')
    else:
        srd(a, 32, 18, OFF_Z1, SZ_Z1)
        a.e(f'''
        s_lshl_b32 s65, s64, 17              ; mt0*16*8192
        s_lshl_b32 s66, s62, 9
        s_add_u32 s65, s65, s66
        v_lshlrev_b32 v1, 4, v1
        v_lshl_add_u32 v1, v3, 14, v1
        ''')
        n = 0
        for i in range(2):
            for aa in range(8):
                o = 32 + 4 * (n % 4); n += 1
                for t in range(4):
                    r = acc(i, t) + 2*aa
                    a.e(f'v_cvt_pk_bf16_f32 v{o+t}, v{r}, v{r+1}')
                a.e(f's_add_u32 s66, s65, {(16*i + 4*(aa>>1) + (aa&1)) * 8192}')
                a.e(f'buffer_store_dwordx4 {q(o)}, v1, s[32:35], s66 offen')
    endpgm(a, 0, 1 if dft else 0)

XB = 128
def xr(g, c): return XB + (g * 7 + c) * 4

def helper(a, dft):
    tag = 'k1_hd' if dft else 'k1_hg'
    srd(a, 20, 4, 0, SZ_X)
    a.e(f'''
    s_lshl_b32 s64, s62, 2
    s_add_u32 s64, s64, s63
    s_mul_i32 s64, s64, {32*896}
    s_add_u32 s65, s64, 7168
    s_add_u32 s66, s64, {2*7168}
    s_add_u32 s67, s64, {3*7168}
    v_lshrrev_b32 v3, 3, v0              ; l>>3
    v_and_b32 v4, 7, v0                  ; l&7
    v_mul_u32_u24 v1, 896, v3
    v_lshl_add_u32 v1, v4, 4, v1
    ''')
    for g in range(4):
        for c in range(7):
            a.e(f'buffer_load_dwordx4 {q(xr(g,c))}, v1, s[20:23], s{64+g} offen offset:{c*128}')
    nafter = 0
    def dma_chunk(c):
        slot = c % 8
        L = []
        for e in range(2):
            L.append(f's_add_u32 s69, s68, {c*114688 + e*14336}')
            for mat in range(2):
                L.append(f's_add_u32 m0, s71, {slot*16384 + mat*8192 + e*1024}')
                L.append(f'buffer_load_dwordx4 v2, s[{24+4*mat}:{27+4*mat}], s69 offen lds')
        return L
    side = []
    if not dft:
        a.e(f'''
        s_lshl_b32 s69, s61, 8               ; ct*256
        s_sub_u32 s70, {SZ_WG}, s69
        ''')
        srd(a, 24, 12, 's69', 's70')
        srd(a, 28, 14, 's69', 's70')
        a.e(f'''
        s_mul_i32 s68, s63, 28672
        s_lshl_b32 s71, s63, 11
        v_lshrrev_b32 v5, 4, v0
        v_lshlrev_b32 v6, 2, v5
        v_and_b32 v7, 15, v0
        v_xor_b32 v6, v6, v7
        v_mul_u32_u24 v2, 3584, v5
        v_lshl_add_u32 v2, v6, 4, v2
        ''')
        for c in range(8):
            for l in dma_chunk(c): a.e(l)
        nafter = 32
    else:
        srd(a, 24, 6, 0, SZ_WR)
        srd(a, 28, 8, 0, SZ_WR)
        srd(a, 36, 16, 0, SZ_WG)
        a.e(f'''
        s_lshl_b32 s72, s60, 2
        s_add_u32 s72, s72, s63              ; wi
        s_mul_i32 s68, s72, 7200
        s_add_u32 s69, s68, 4096
        s_lshl_b32 s71, s63, 14              ; region A
        v_lshlrev_b32 v2, 4, v0
        ''')
        for mat in range(2):
            for hh in range(2):
                a.e(f's_add_u32 m0, s71, {mat*8192 + hh*4096}')
                for n in range(4):
                    a.e(f'buffer_load_dwordx4 v2, s[{24+4*mat}:{27+4*mat}], s{68+hh} offen offset:{n*1024} lds')
        a.e(f's_mul_i32 s68, s72, 14336')
        for hh in range(4):
            a.e(f's_add_u32 m0, s71, {65536 + hh*4096}')
            a.e(f's_add_u32 s69, s68, {hh*4096}')
            for n in range(4 if hh < 3 else 2):
                a.e(f'buffer_load_dwordx4 v2, s[36:39], s69 offen offset:{n*1024} lds')
        nafter = 30
        srd(a, 48, 18, OFF_GF, SZ_GF)
        srd(a, 52, 18, OFF_FL, SZ_FL)
        SC = 2.0 / (448 * 2048)
        a.e(f'''
        s_mul_i32 s73, s72, 147
        s_lshr_b32 s73, s73, 10
        s_mul_i32 s74, s73, 7
        s_sub_u32 s74, s72, s74              ; wi%7
        s_lshl_b32 s74, s74, 5               ; 8*ks0 = 32*(wi%7)
        s_lshl_b32 s73, s73, 5               ; 32 dt
        v_and_b32 v5, 31, v0
        v_add_u32 v5, s73, v5                ; d
        v_lshrrev_b32 v6, 5, v0
        v_lshlrev_b32 v6, 2, v6
        v_add_u32 v6, s74, v6                ; p0 = 8ks0 + 4h
        v_cvt_f32_u32 v7, v5                 ; d float
        v_cvt_f32_u32 v8, v6
        v_mul_f32 v8, v8, v7                 ; p0*d
        s_mov_b32 s75, {fh(1.0/448)}
        s_mov_b32 s76, {fh(SC)}
        v_lshlrev_b32 v9, 31, v5
        v_xor_b32 v9, {fh(SC/2)}, v9         ; alt_hi
        v_cmp_eq_u32 s[78:79], 0, v6
        v_mul_f32 v18, 4.0, v7
        s_lshl_b32 s77, s72, 12
        v_mov_b32 v20, 0
        v_mov_b32 v21, 0
        v_mov_b32 v22, 0
        v_mov_b32 v23, 0
        s_lshl_b32 s80, s72, 10
        buffer_store_dwordx4 v[20:23], v2, s[52:55], s80 offen
        ''')
        for n in range(4):
            o = 24 + 4 * n
            for j in range(4):
                a.e(f'''
                v_mul_f32 v10, s75, v8
                v_fract_f32 v10, v10
                v_cos_f32 v11, v10
                v_sin_f32 v12, v10
                v_add_f32 v8, v8, v7
                v_mul_f32 v11, s76, v11
                v_mul_f32 v12, s76, v12
                ''')
                if n == 0 and j == 0:
                    a.e(f'''
                    v_mov_b32 v13, {fh(SC/2)}
                    v_cndmask_b32 v11, v11, v13, s[78:79]
                    v_cndmask_b32 v12, v12, v9, s[78:79]
                    ''')
                a.e(f'v_cvt_pk_bf16_f32 v{o+j}, v11, v12')
            a.e(f'v_add_f32 v8, v8, v18')
            a.e(f'buffer_store_dwordx4 {q(o)}, v2, s[48:51], s77 offen offset:{n*1024}')
        nafter += 5
        srd(a, 40, 18, OFF_WF, SZ_WF)
        srd(a, 44, 18, OFF_WT, SZ_WT)
        a.e(f'''
        v_and_b32 v5, 3, v0                  ; c
        v_lshrrev_b32 v6, 2, v0              ; kl
        v_mul_u32_u24 v40, 1800, v5
        v_lshl_add_u32 v40, v6, 1, v40
        v_add_u32 v40, s71, v40
        v_lshlrev_b32 v41, 13, v6
        v_lshl_add_u32 v41, v5, 4, v41
        v_bfe_u32 v7, v0, 2, 2               ; r
        v_lshrrev_b32 v8, 5, v0              ; h
        v_lshl_add_u32 v7, v8, 2, v7         ; 4h + r
        v_mul_u32_u24 v42, 896, v7
        v_bfe_u32 v7, v0, 4, 1
        v_lshl_add_u32 v42, v7, 5, v42
        v_lshl_add_u32 v42, v5, 3, v42
        v_add_u32 v42, s71, v42
        v_add_u32 v42, 0x10000, v42
        s_lshl_b32 s81, s72, 6               ; wi*64
        s_lshl_b32 s82, s72, 10              ; kb*1024
        ''')
        for it in range(15):
            o = 44 + 4 * (it % 3)
            blk = []
            for j in range(4):
                blk.append(f'ds_read_u16 v{o+j}, v40 offset:{j*450 + 32*it}')
                blk.append(f'ds_read_u16 v{56+j}, v40 offset:{8192 + j*450 + 32*it}')
            blk.append(f's_add_u32 s83, s81, {it*131072}')
            blk.append('s_waitcnt lgkmcnt(0)')
            for j in range(4):
                blk.append(f'v_lshl_or_b32 v{o+j}, v{56+j}, 16, v{o+j}')
            blk.append(f'buffer_store_dwordx4 {q(o)}, v41, s[44:47], s83 offen')
            side.append(blk)
    a.e('v_mov_b32 v9, 0x3f803f80')
    for g in range(4):
        a.e(f'v_mov_b32 v{10+g}, 0\nv_mov_b32 v{14+g}, 0')
    for g in range(4):
        for c in range(7):
            idx = g * 7 + c
            a.e(f's_waitcnt vmcnt({27 - idx + nafter})')
            for dd in range(4):
                r = xr(g, c) + dd
                a.e(f'v_dot2c_f32_bf16 v{10+g}, v{r}, v9\nv_dot2c_f32_bf16 v{14+g}, v{r}, v{r}')
    for mod in ('quad_perm:[1,0,3,2]', 'quad_perm:[2,3,0,1]', 'row_half_mirror'):
        for r in range(10, 18):
            a.e(f'v_add_f32_dpp v{r}, v{r}, v{r} {mod} row_mask:0xf bank_mask:0xf')
    a.e(f's_mov_b32 s84, {fh(1.0/448)}\ns_mov_b32 s85, 0xffff0000')
    steps = [
        'v_mul_f32 v{m}, s84, v{m}',
        'v_mul_f32 v{t}, v{m}, v{m}',
        'v_fma_f32 v{v}, v{v}, s84, -v{t}',
        'v_max_f32 v{v}, 0, v{v}',
        'v_cvt_pk_bf16_f32 v{t}, v{m}, v{v}',
        'v_lshlrev_b32 v{m}, 16, v{t}',
        'v_and_b32 v{v}, s85, v{t}',
        'v_add_f32 v{v}, 0x3727c5ac, v{v}',
        'v_cvt_pk_bf16_f32 v{v}, v{v}, v{v}',
        'v_and_b32 v{v}, s85, v{v}',
        'v_sqrt_f32 v{v}, v{v}',
        'v_cvt_pk_bf16_f32 v{v}, v{v}, v{v}',
        'v_and_b32 v{v}, s85, v{v}',
        'v_rcp_f32 v{v}, v{v}',
        'v_mul_f32 v{m}, v{m}, v{v}',
    ]
    for st in steps:
        for g in range(4):
            a.e(st.format(m=10+g, v=14+g, t=18+g))
    a.e(f'''
    v_lshrrev_b32 v5, 1, v4
    v_lshlrev_b32 v8, 12, v5
    v_and_b32 v5, 1, v4
    v_lshl_add_u32 v8, v5, 9, v8
    v_xor_b32 v5, v3, v4
    v_lshl_add_u32 v8, v5, 4, v8
    s_lshl_b32 s86, s63, 10
    s_add_u32 s86, s86, {XRING}
    v_add_u32 v8, s86, v8
    ''')
    def norm(u):
        for g in range(4):
            for dd in range(4):
                r = xr(g, u) + dd
                t0 = 24 + 2 * dd
                a.e(f'''
                v_lshlrev_b32 v{t0}, 16, v{r}
                v_and_b32 v{t0+1}, s85, v{r}
                v_fma_f32 v{t0}, v{t0}, v{14+g}, -v{10+g}
                v_fma_f32 v{t0+1}, v{t0+1}, v{14+g}, -v{10+g}
                v_cvt_pk_bf16_f32 v{r}, v{t0}, v{t0+1}
                ''')
            a.e(f'ds_write_b128 v8, {q(xr(g,u))} offset:{(u&1)*16384 + g*128}')
    norm(0)
    si = 0
    for c in range(15):
        if not dft:
            if c <= 7:
                later = (7 - c) + max(0, min(c - 1, 6))
                a.e(f's_waitcnt vmcnt({4*later}) lgkmcnt(0)')
            elif c <= 13:
                a.e(f's_waitcnt vmcnt({4*(13-c)}) lgkmcnt(0)')
        else:
            a.e('s_waitcnt lgkmcnt(0)')
        a.e('s_barrier')
        if c == 0: norm(1)
        if not dft and 1 <= c <= 6:
            for l in dma_chunk(c + 7): a.e(l)
        if c >= 2 and c % 2 == 0 and c // 2 + 1 <= 6: norm(c // 2 + 1)
        if dft:
            if c == 1:
                a.e('s_waitcnt vmcnt(0)')
                a.e(f's_cmp_ge_u32 s72, 112\ns_cbranch_scc1 {tag}_skipB')
                for dt in range(14):
                    o = 60 + 4 * dt
                    a.e(f'ds_read_b64_tr_b16 v[{o}:{o+1}], v42 offset:{dt*64}')
                    a.e(f'ds_read_b64_tr_b16 v[{o+2}:{o+3}], v42 offset:{7168 + dt*64}')
                for dt in range(14):
                    o = 60 + 4 * dt
                    a.e(f's_add_u32 s83, s82, {dt*114688}')
                    a.e(f's_waitcnt lgkmcnt({min(15, 2*(13-dt))})')
                    a.e(f'buffer_store_dwordx4 {q(o)}, v2, s[40:43], s83 offen')
                a.label(f'{tag}_skipB')
                a.fence()
            if c in (3, 5, 7, 9, 11):
                for blk in side[si:si+3]:
                    for l in blk: a.e(l)
                si += 3
    endpgm(a, 0, 3 if dft else 2)

def gen_k1(a):
    a.raw('.p2align 8')
    a.label('k1_kernel')
    a.e(f'''
    s_cmp_ge_u32 s2, 256
    s_cbranch_scc1 k1_end
    ''')
    diag_start(a)
    a.e(f'''
    s_load_dwordx8 s[4:11], s[0:1], 0
    s_load_dwordx4 s[12:15], s[0:1], 32
    s_load_dwordx2 s[16:17], s[0:1], 48
    s_load_dwordx2 s[18:19], s[0:1], 72
    v_lshrrev_b32 v1, 6, v0
    v_and_b32 v0, 63, v0
    v_readfirstlane_b32 s3, v1
    s_and_b32 s56, s2, 7
    s_lshr_b32 s57, s2, 3
    s_and_b32 s58, s56, 1
    s_lshl_b32 s58, s58, 3
    s_lshr_b32 s59, s56, 1
    s_and_b32 s63, s3, 3
    s_cmp_ge_u32 s57, 28
    s_cbranch_scc1 k1_dft
    s_mul_i32 s60, s59, 28
    s_add_u32 s60, s60, s57
    s_lshr_b32 s61, s60, 3
    s_and_b32 s62, s60, 7
    s_add_u32 s62, s62, s58
    s_waitcnt lgkmcnt(0)
    s_cmp_ge_u32 s3, 4
    s_cbranch_scc1 k1_gu_helper
    ''')
    a.fence(); compute(a, False)
    a.label('k1_gu_helper'); a.fence(); helper(a, False)
    a.label('k1_dft'); a.fence()
    a.e(f'''
    s_sub_u32 s57, s57, 28
    s_lshl_b32 s62, s59, 1
    s_add_u32 s62, s62, s58
    s_lshr_b32 s60, s57, 1
    s_add_u32 s62, s62, s60
    s_and_b32 s61, s57, 1
    s_lshl_b32 s60, s56, 2
    s_add_u32 s60, s60, s57
    s_waitcnt lgkmcnt(0)
    s_cmp_ge_u32 s3, 4
    s_cbranch_scc1 k1_dft_helper
    ''')
    a.fence(); compute(a, True)
    a.label('k1_dft_helper'); a.fence(); helper(a, True)
    a.label('k1_end')
    a.e('s_endpgm')
```

```python
from dsl import *
from common import *

def q(b, k='v'): return f'{k}[{b}:{b+3}]'

class VM:
    def __init__(self, a): self.a = a; self.ops = []; self.done = 0
    def issue(self, text, tag):
        assert len(self.ops) - self.done < 63, 'too many outstanding'
        self.a.e(text); self.ops.append(tag)
    def wait(self, tag):
        idx = max(i for i, t in enumerate(self.ops) if t == tag)
        if idx < self.done: return
        n = len(self.ops) - 1 - idx
        self.a.e(f's_waitcnt vmcnt({n})'); self.done = idx + 1
    def outstanding(self): return len(self.ops) - self.done

XA = 32; WV = 64; C64R = 72; C64I = 88; C32R = 104; C32I = 120; TW1 = 136; TW2 = 152
DR = 168; DI = 176; ER = 184; EI = 192; PK = 200
ACC = 192
NR = 15

def gen_k2(a, name, mode):
    do_fft = mode in ('fft', 'both'); do_gemm = mode in ('gemm', 'both'); both = mode == 'both'
    SC1 = ' sc0 sc1' if both else ''
    nwg = 225 if do_fft else 224
    a.raw('.p2align 8'); a.label(name); a.fence()
    vm = VM(a)
    a.e(f'''
    s_cmp_ge_u32 s2, {nwg}
    s_cbranch_scc1 {name}_end
    ''')
    diag_start(a)
    kidx = 2 if mode == 'gemm' else 1
    a.e(f'''
    s_load_dwordx2 s[4:5], s[0:1], 0
    s_load_dwordx2 s[6:7], s[0:1], 56
    s_load_dwordx2 s[8:9], s[0:1], 72
    v_lshrrev_b32 v1, 6, v0
    v_and_b32 v0, 63, v0
    v_readfirstlane_b32 s3, v1
    v_and_b32 v1, 15, v0                 ; l15
    v_lshrrev_b32 v2, 4, v0              ; q
    v_lshlrev_b32 v3, 4, v0              ; lane*16
    s_and_b32 s50, s2, 7
    s_lshr_b32 s51, s2, 3
    s_mul_i32 s52, s51, 37
    s_lshr_b32 s52, s52, 8               ; j/7
    s_mul_i32 s53, s52, 7
    s_sub_u32 s53, s51, s53              ; dt64
    s_lshl_b32 s50, s50, 2
    s_add_u32 s52, s52, s50              ; st64
    s_cmp_eq_u32 s2, 224
    s_cselect_b32 s54, 0, s2             ; p
    s_waitcnt lgkmcnt(0)
    ''')
    if do_fft:
        srd(a, 24, 8, OFF_Z1, SZ_Z1)
        srd(a, 28, 8, OFF_WT, SZ_WT)
        a.e(f'''
        s_lshl_b32 s55, s54, 13              ; p*8192
        s_add_u32 s56, s55, 4096
        v_lshlrev_b32 v4, 4, v1
        v_lshl_add_u32 v4, v2, 9, v4         ; q*512 + l15*16
        s_lshl_b32 s57, s2, 13
        s_lshl_b32 s58, s3, 6
        s_add_u32 s57, s57, s58              ; k*8192 + w*64
        s_add_u32 s58, s57, 4096
        v_lshlrev_b32 v5, 2, v1
        v_lshl_add_u32 v5, v2, 10, v5        ; q*1024 + l15*4
        ''')
        for u in range(4):
            for t in range(2):
                vm.issue(f'buffer_load_dwordx4 {q(XA+16*t+4*u)}, v4, s[24:27], s{55+(u>>1)} offen offset:{(u&1)*2048 + t*256}', 'xa')
        for tm in range(2):
            for i in range(4):
                vm.issue(f'buffer_load_dword v{WV+4*tm+i}, v5, s[28:31], s{57+tm} offen offset:{i*256}', 'wv')
    issued = [0]
    def issue_k(i):
        r = 16 * (i % NR)
        if i < 28:
            o = (i & 3) * 1024
            vm.issue(f'buffer_load_dwordx4 {q(r,"a")}, v3, s[16:19], s62 offen offset:{o}', ('k', i))
            vm.issue(f'buffer_load_dwordx4 {q(r+8,"a")}, v3, s[12:15], s60 offen offset:{o}', ('k', i))
            vm.issue(f'buffer_load_dwordx4 {q(r+4,"a")}, v3, s[16:19], s63 offen offset:{o}', ('k', i))
            vm.issue(f'buffer_load_dwordx4 {q(r+12,"a")}, v3, s[12:15], s61 offen offset:{o}', ('k', i))
            if (i & 3) == 3:
                for s in (60, 61, 62, 63): a.e(f's_add_u32 s{s}, s{s}, 4096')
        else:
            ii = i - 28
            o = (ii & 3) * 1024
            vm.issue(f'buffer_load_dwordx4 {q(r,"a")}, v3, s[20:23], s64 offen offset:{o}', ('k', i))
            vm.issue(f'buffer_load_dwordx4 {q(r+4,"a")}, v3, s[20:23], s65 offen offset:{o}', ('k', i))
            if ii == 3:
                for s in (64, 65): a.e(f's_add_u32 s{s}, s{s}, 4096')
        issued[0] = i + 1
    extra = []
    gf_ready = [False]
    def pump(i, reserve=0):
        while True:
            n = issued[0]
            if extra and vm.outstanding() + 1 + reserve <= 63:
                pre, text, tag = extra.pop(0)
                if pre: a.e(pre)
                vm.issue(text, tag); continue
            if n < 35 and n - NR <= i and (n < 28 or gf_ready[0]) and vm.outstanding() + (4 if n < 28 else 2) + reserve <= 63:
                issue_k(n); continue
            break
    if do_gemm:
        if both:
            a.e(f's_cmp_eq_u32 s2, 224\ns_cbranch_scc1 {name}_fftonly')
        srd(a, 12, 8, OFF_HF, SZ_HF)
        srd(a, 16, 8, OFF_WF, SZ_WF)
        a.e(f'''
        s_mul_i32 s66, s3, 28
        s_mul_i32 s60, s52, 224
        s_add_u32 s60, s60, s66
        s_lshl_b32 s60, s60, 10
        s_add_u32 s61, s60, 114688
        s_mul_i32 s62, s53, 224
        s_add_u32 s62, s62, s66
        s_lshl_b32 s62, s62, 10
        s_add_u32 s63, s62, 114688
        ''')
        pump(-1)
        srd(a, 20, 8, OFF_GF, SZ_GF)
        srd(a, 40, 4, 0, SZ_X)
        srd(a, 44, 6, 0, SZ_X)
        a.e(f'''
        s_mul_i32 s66, s3, 7
        s_mul_i32 s64, s53, 56
        s_add_u32 s64, s64, s66
        s_lshl_b32 s64, s64, 10
        s_add_u32 s65, s64, {28*1024}
        ''')
        gf_ready[0] = True
    srd(a, 32, 8, OFF_Z3, SZ_Z3)
    if both: srd(a, 36, 8, OFF_FL, SZ_FL)

    def fft_body(vm, tag, more_prefetch):
        a.e(f'''
        s_lshl_b32 s67, s3, 4
        v_add_u32 v8, s67, v1                ; 16w + l15
        v_cvt_f32_u32 v8, v8
        v_lshlrev_b32 v9, 2, v2
        v_cvt_f32_u32 v9, v9                 ; 4q
        v_cvt_f32_u32 v10, v1                ; l15
        v_mul_f32 v11, {fh(1/64)}, v8        ; a/64
        v_mul_f32 v12, v11, v9               ; arg
        v_mul_f32 v13, {fh(12.0)}, v11
        ''')
        def cs_pack(arg, dr, di):
            a.e(f'''
            v_cos_f32 v14, v{arg}
            v_sin_f32 v15, v{arg}
            ''')
            return f'''
            v_cvt_pk_bf16_f32 v{dr}, v14, v15
            v_cvt_pk_bf16_f32 v{di}, -v15, v14
            '''
        for u in range(4):
            for j in range(4):
                post = cs_pack(12, C64R+4*u+j, C64I+4*u+j)
                a.e('v_add_f32 v12, v12, v11')
                a.e(post)
            if u < 3: a.e('v_add_f32 v12, v12, v13')
        for t in range(2):
            a.e(f'''
            v_add_f32 v11, {fh(16.0*t)}, v10
            v_mul_f32 v11, {fh(1/32)}, v11
            v_mul_f32 v12, v11, v9
            v_mul_f32 v13, {fh(12.0)}, v11
            ''')
            for u in range(2):
                for j in range(4):
                    post = cs_pack(12, C32R+8*t+4*u+j, C32I+8*t+4*u+j)
                    a.e('v_add_f32 v12, v12, v11')
                    a.e(post)
                if u < 1: a.e('v_add_f32 v12, v12, v13')
        a.e(f'''
        v_mul_f32 v11, {fh(1/2048)}, v8
        v_mul_f32 v12, v11, v9
        v_mul_f32 v13, {fh(12.0)}, v11
        ''')
        for t in range(2):
            for i in range(4):
                a.e(f'v_cos_f32 v{TW1+2*(4*t+i)}, v12\nv_sin_f32 v{TW1+2*(4*t+i)+1}, v12\nv_add_f32 v12, v12, v11')
            if t < 1: a.e('v_add_f32 v12, v12, v13')
        a.e(f'''
        v_cvt_f32_u32 v16, s67
        v_add_f32 v16, v16, v9               ; 16w+4q
        ''')
        for t in range(2):
            a.e(f'''
            v_add_f32 v11, {fh(16.0*t)}, v10
            v_mul_f32 v11, {fh(1/2048)}, v11
            v_mul_f32 v12, v11, v16
            ''')
            for i in range(4):
                a.e(f'v_cos_f32 v{TW2+2*(4*t+i)}, v12\nv_sin_f32 v{TW2+2*(4*t+i)+1}, v12\nv_add_f32 v12, v12, v11')
        vm.wait('xa')
        a.e(f's_cmp_lg_u32 s54, 0\ns_cbranch_scc1 {tag}_nofix')
        a.e(f's_cmp_eq_u32 s2, 224\ns_cselect_b32 s68, 16, 0')
        for r in range(XA, XA+32):
            a.e(f'v_lshrrev_b32 v{r}, s68, v{r}\nv_and_b32 v{r}, 0xffff, v{r}')
        a.e('s_nop 1')
        a.label(f'{tag}_nofix'); a.fence()
        def mm(d, A, B, first):
            c = '0' if first else q(d)
            a.e(f'v_mfma_f32_16x16x32_bf16 {q(d)}, {q(A)}, {q(B)}, {c}')
        for u in range(4):
            for t in range(2):
                mm(DR+4*t, XA+16*t+4*u, C64R+4*u, u == 0)
                mm(DI+4*t, XA+16*t+4*u, C64I+4*u, u == 0)
        more_prefetch()
        def twiddle(R, I, TW, out):
            for t in range(2):
                for i in range(4):
                    c = TW + 2*(4*t+i); s = c + 1
                    r = R + 4*t + i; im = I + 4*t + i
                    t0 = 8 + 2*i
                    a.e(f'''
                    v_mul_f32 v{t0}, v{r}, v{c}
                    v_mul_f32 v{t0+1}, v{im}, v{c}
                    v_fmac_f32 v{t0}, v{im}, v{s}
                    v_fma_f32 v{t0+1}, -v{r}, v{s}, v{t0+1}
                    v_cvt_pk_bf16_f32 v{out+4*t+i}, v{t0}, v{t0+1}
                    ''')
        twiddle(DR, DI, TW1, PK)
        for t in range(2):
            for tm in range(2):
                mm(ER+4*tm, C32R+8*tm+4*t, PK+4*t, t == 0)
                mm(EI+4*tm, C32I+8*tm+4*t, PK+4*t, t == 0)
        vm.wait('wv')
        for n in range(8):
            a.e(f'v_lshlrev_b32 v{16+n}, 16, v{WV+n}\nv_and_b32 v{24+n}, 0xffff0000, v{WV+n}')
        for tm in range(2):
            for i in range(4):
                n = 4*tm + i
                xr_ = ER + n; xi = EI + n; wr = 16 + n; wi = 24 + n
                t0 = 8 + 2*i
                a.e(f'''
                v_mul_f32 v{t0}, v{xr_}, v{wr}
                v_mul_f32 v{t0+1}, v{xr_}, v{wi}
                v_fma_f32 v{t0}, -v{xi}, v{wi}, v{t0}
                v_fmac_f32 v{t0+1}, v{xi}, v{wr}
                v_cvt_pk_bf16_f32 v{PK+n}, v{t0}, -v{t0+1}
                ''')
        for tm in range(2):
            for tn in range(2):
                mm(DR+4*tn, PK+4*tm, C32R+8*tn+4*tm, tm == 0)
                mm(DI+4*tn, PK+4*tm, C32I+8*tn+4*tm, tm == 0)
        a.e('s_lshl_b32 s68, s3, 11\nv_add_u32 v6, s68, v3')
        twiddle(DR, DI, TW2, PK)
        a.e(f'''
        ds_write_b128 v6, {q(PK)}
        ds_write_b128 v6, {q(PK+4)} offset:1024
        s_waitcnt lgkmcnt(0)
        s_barrier
        ''')
        for u in range(4):
            for tn in range(2):
                a.e(f'ds_read_b128 {q(XA+16*tn+4*u)}, v3 offset:{(2*u+tn)*1024}')
        a.e(f'''
        v_lshlrev_b32 v6, 3, v1
        v_lshl_add_u32 v6, v2, 9, v6
        s_lshl_b32 s68, s3, 11
        s_add_u32 s68, s68, s55
        ''')
        for u in range(4):
            a.e(f's_waitcnt lgkmcnt({6-2*u})')
            for tn in range(2):
                mm(ER+4*tn, C64R+4*u, XA+16*tn+4*u, u == 0)
                mm(EI+4*tn, C64I+4*u, XA+16*tn+4*u, u == 0)
        for n in range(8):
            a.e(f'v_cvt_pk_bf16_f32 v{PK+n}, v{ER+n}, v{EI+n}')
        a.e(f's_cmp_lg_u32 s54, 0\ns_cbranch_scc1 {tag}_st32')
        a.e(f's_cmp_eq_u32 s2, 224\ns_cselect_b32 s69, 2, 0\ns_add_u32 s68, s68, s69')
        for tn in range(2):
            for i in range(4):
                a.e(f'buffer_store_short v{PK+4*tn+i}, v6, s[32:35], s68 offen offset:{(i>>1)*256 + tn*128 + (i&1)*4}{SC1}')
        a.e('s_waitcnt vmcnt(0)')
        a.e(f's_branch {tag}_stdone')
        a.label(f'{tag}_st32'); a.fence()
        for tn in range(2):
            for e in range(2):
                vm.issue(f'buffer_store_dwordx2 v[{PK+4*tn+2*e}:{PK+4*tn+2*e+1}], v6, s[32:35], s68 offen offset:{e*256 + tn*128}{SC1}', 'z3st')
        a.label(f'{tag}_stdone'); a.fence()

    def send_flag():
        a.e(f'''
        s_lshl_b32 s68, s3, 10
        s_lshl_b32 s69, s2, 2
        s_add_u32 s68, s68, s69
        v_lshlrev_b32 v7, 12, v0
        v_mov_b32 v8, 1
        ''')

    if do_fft:
        def more():
            if both: pump(-1, reserve=4)
        fft_body(vm, name, more)
        if not both:
            endpgm(a, kidx, 4)
    if do_gemm:
        a.e(f'''
        v_and_b32 v4, 31, v0                 ; l31
        v_lshrrev_b32 v5, 5, v0              ; h
        s_and_b32 s70, s3, 1
        s_lshr_b32 s71, s3, 1
        s_lshl_b32 s72, s52, 1
        s_add_u32 s72, s72, s70              ; st32
        s_mul_i32 s72, s72, {32*896}
        s_lshl_b32 s73, s53, 1
        s_add_u32 s73, s73, s71
        s_lshl_b32 s73, s73, 6
        s_add_u32 s72, s72, s73
        v_mul_u32_u24 v9, 896, v4
        v_lshl_add_u32 v10, v5, 3, v9
        v_lshl_add_u32 v11, v5, 4, v9
        ; z3 voffsets v12..v15 = (4h + j)*8192 + l31*8
        v_lshlrev_b32 v12, 3, v4
        v_lshl_add_u32 v12, v5, 15, v12
        v_add_u32 v13, 0x2000, v12
        v_add_u32 v14, 0x4000, v12
        v_add_u32 v15, 0x6000, v12
        s_mul_i32 s74, s3, {56*8192}
        s_lshl_b32 s75, s52, 8
        s_add_u32 s74, s74, s75
        ''')
        if both: send_flag()
        def mf(i, first, Bregs=None):
            r = 16 * (i % NR)
            for aa in range(2):
                for b in range(2):
                    d = ACC + 16 * (2*b + aa)
                    c = '0' if first else f'v[{d}:{d+15}]'
                    B = q(r+8+4*aa, 'a') if Bregs is None else q(Bregs + 4*aa)
                    a.e(f'v_mfma_f32_32x32x16_bf16 v[{d}:{d+15}], {q(r+4*b,"a")}, {B}, {c}')
        ZL = 32
        ZF = 96
        def z3_loads():
            for ii in range(7):
                for j in range(4):
                    r = ZL + 8*ii + 2*j
                    extra.append((f's_add_u32 s75, s74, {ii*65536}' if j == 0 else None,
                                  f'buffer_load_dwordx2 v[{r}:{r+1}], v{12+j}, s[32:35], s75 offen{" sc1" if both else ""}', ('z', ii)))
        for i in range(28):
            vm.wait(('k', i))
            mf(i, i == 0)
            if both and i == FLAG_AT:
                vm.wait('z3st')
                extra.append((None, f'buffer_store_dword v8, v7, s[36:39], s68 offen sc0 sc1', 'flag'))
            if i == XRES_AT:
                for g in range(4):
                    extra.append((None, f'buffer_load_dwordx2 v[{16+2*g}:{17+2*g}], v10, s[40:43], s72 offen offset:{16*g}', 'xres'))
            if both and i == POLL_AT:
                a.e(f'''
                s_lshr_b32 s76, s52, 3
                s_lshl_b32 s76, s76, 10
                s_mul_i32 s77, s3, 56
                v_min_u32 v24, 55, v0
                v_add_u32 v24, s77, v24
                v_cmp_eq_u32 vcc, 56, v0
                v_mov_b32 v25, 224
                v_cndmask_b32 v24, v24, v25, vcc
                v_lshlrev_b32 v24, 2, v24
                ''')
                extra.append((None, 'buffer_load_dword v25, v24, s[36:39], s76 offen sc0 sc1', 'poll'))
            if i == Z3_AT:
                if both:
                    vm.wait('poll')
                    a.label(f'{name}_chk'); a.fence()
                    a.e(f'''
                    v_cmp_ne_u32 vcc, 0, v25
                    s_nop 1
                    s_cmp_eq_u64 vcc, exec
                    s_cbranch_scc1 {name}_ready
                    s_sleep 2
                    buffer_load_dword v25, v24, s[36:39], s76 offen sc0 sc1
                    s_waitcnt vmcnt(0)
                    s_branch {name}_chk
                    ''')
                    a.label(f'{name}_ready'); a.fence()
                z3_loads()
            pump(i)
        for ii in range(7):
            pump(27 + ii)
            vm.wait(('k', 28 + ii)); vm.wait(('z', ii))
            for j in range(4):
                for aa in range(2):
                    a.e(f'v_mov_b32 v{ZF+8*ii+4*aa+j}, v{ZL+8*ii+2*j+aa}')
            mf(28 + ii, False, ZF + 8*ii)
        a.e(f'''
        s_lshl_b32 s76, s3, 12
        v_add_u32 v6, s76, v3
        s_lshl_b32 s76, s3, 14
        v_add_u32 v7, s76, v3
        s_barrier
        ''')
        for tl in range(4):
            for c in range(4):
                a.e(f'ds_write_b128 v6, {q(ACC+16*tl+4*c)} offset:{tl*16384 + c*1024}')
        a.e('s_waitcnt lgkmcnt(0)\ns_barrier')
        for sw in range(4):
            for c in range(4):
                a.e(f'ds_read_b128 {q(32+16*sw+4*c)}, v7 offset:{sw*4096 + c*1024}')
        vm.wait('xres')
        for g in range(4):
            for c in range(2):
                a.e(f'v_lshlrev_b32 v{96+4*g+2*c}, 16, v{16+2*g+c}\nv_and_b32 v{96+4*g+2*c+1}, 0xffff0000, v{16+2*g+c}')
        for sw in range(4):
            a.e(f's_waitcnt lgkmcnt({12-4*sw})')
            for r in range(16):
                a.e(f'v_add_f32 v{96+r}, v{96+r}, v{32+16*sw+r}')
        for g in range(4):
            for c in range(2):
                a.e(f'v_cvt_pk_bf16_f32 v{112+2*g+c}, v{96+4*g+2*c}, v{96+4*g+2*c+1}')
        for g in (0, 2):
            for c in range(2):
                a.e(f'v_permlane32_swap_b32 v{112+2*g+c}, v{112+2*g+2+c}')
        for g in (0, 2):
            a.e(f'buffer_store_dwordx4 {q(112+2*g)}, v11, s[44:47], s72 offen offset:{16*g}')
        endpgm(a, kidx, 4)
        if both:
            a.label(f'{name}_fftonly'); a.fence()
            srd(a, 32, 8, OFF_Z3, SZ_Z3)
            srd(a, 36, 8, OFF_FL, SZ_FL)
            vm2 = VM(a); vm2.ops = ['xa']*8 + ['wv']*8
            fft_body(vm2, name + '_f', lambda: None)
            send_flag()
            a.e('s_waitcnt vmcnt(0)\nbuffer_store_dword v8, v7, s[36:39], s68 offen sc0 sc1\ns_endpgm')
    a.label(f'{name}_end')
    a.e('s_endpgm')

FLAG_AT = 0
XRES_AT = 14
POLL_AT = 16
Z3_AT = 21
```

```python
import struct
S, D, F = 2048, 448, 1792
SZ_X = S * D * 2
SZ_WR = S * 225 * 2
SZ_WG = D * F * 2
SZ_HF = 64 * 112 * 1024
SZ_WF = 14 * 112 * 1024
SZ_GF = 14 * 28 * 1024
SZ_Z1 = 224 * 8192
SZ_WT = 225 * 8192
SZ_Z3 = 224 * 8192
SZ_FL = 4096
OFF_HF = 0
OFF_WF = OFF_HF + SZ_HF
OFF_GF = OFF_WF + SZ_WF
OFF_Z1 = OFF_GF + SZ_GF
OFF_WT = OFF_Z1 + SZ_Z1
OFF_Z3 = OFF_WT + SZ_WT
OFF_FL = OFF_Z3 + SZ_Z3

def f2u(x):
    return struct.unpack('<I', struct.pack('<f', x))[0]
def fh(x):
    return '0x%08x' % f2u(x)

def srd(a, d, base, off, size):
    if off == 0:
        a.e(f's_mov_b32 s{d}, s{base}\ns_mov_b32 s{d+1}, s{base+1}')
    else:
        a.e(f's_add_u32 s{d}, s{base}, {off}\ns_addc_u32 s{d+1}, s{base+1}, 0')
    a.e(f's_mov_b32 s{d+2}, {size}\ns_mov_b32 s{d+3}, 0x00020000')

def kd(name, vgpr, sgpr, accum):
    return f""".p2align 6
.amdhsa_kernel {name}
  .amdhsa_next_free_vgpr {vgpr}
  .amdhsa_next_free_sgpr {sgpr}
  .amdhsa_accum_offset {accum}
  .amdhsa_group_segment_fixed_size 0
  .amdhsa_kernarg_size 80
  .amdhsa_user_sgpr_count 2
  .amdhsa_user_sgpr_kernarg_segment_ptr 1
  .amdhsa_system_sgpr_workgroup_id_x 1
.end_amdhsa_kernel
"""

import os
DIAG = int(os.environ.get('DIAG', '0'))
OFF_DIAG = 64 << 20
def diag_start(a):
    if not DIAG: return
    a.e('''
    s_memrealtime s[100:101]
    s_memtime s[88:89]
    ''')
    for i in range(1, 5): a.e(f's_mov_b64 s[{88+2*i}:{89+2*i}], 0')
def mark(a, i):
    if DIAG: a.e(f's_memtime s[{88+2*i}:{89+2*i}]')
def endpgm(a, kidx, wsb, wave='s3', nlast=0):
    if DIAG:
        a.e(f'''
        s_waitcnt vmcnt(0)
        s_memtime s[98:99]
        s_memrealtime s[84:85]
        s_load_dwordx2 s[80:81], s[0:1], 64
        s_getreg_b32 s86, hwreg(HW_REG_XCC_ID)
        s_getreg_b32 s87, hwreg(HW_REG_HW_ID)
        s_waitcnt lgkmcnt(0)
        s_mov_b64 exec, 1
        s_lshl_b32 s86, s86, 24
        s_and_b32 s87, s87, 0xffffff
        s_or_b32 s86, s86, s87
        s_sub_u32 s90, s90, s88
        s_sub_u32 s92, s92, s88
        s_sub_u32 s94, s94, s88
        s_sub_u32 s96, s96, s88
        s_sub_u32 s98, s98, s88
        s_lshl_b32 s82, s2, 3
        s_add_u32 s82, s82, {wave}
        s_lshl_b32 s82, s82, 5
        s_add_u32 s82, s82, {OFF_DIAG + kidx*(1<<17)}
        v_mov_b32 v0, s82
        v_mov_b32 v4, s100
        v_mov_b32 v5, s90
        v_mov_b32 v6, s92
        v_mov_b32 v7, s94
        v_mov_b32 v8, s96
        v_mov_b32 v9, s98
        v_mov_b32 v10, s84
        v_mov_b32 v11, s86
        global_store_dwordx4 v0, v[4:7], s[{wsb}:{wsb+1}]
        global_store_dwordx4 v0, v[8:11], s[{wsb}:{wsb+1}] offset:16
        s_cmp_lg_u32 s82, {OFF_DIAG + kidx*(1<<17) + 5*256}
        s_cbranch_scc1 diag_end_{_lab[0]}
        s_nop 2
        v_mov_b32 v0, {512*nlast + 16*kidx}
        v_mov_b32 v8, s100
        global_store_dwordx4 v0, v[8:11], s[80:81]
        ''')
        a.label(f'diag_end_{_lab[0]}'); _lab[0] += 1
    a.e('s_endpgm')
_lab = [0]
```

```python
from dsl import *
from common import *

XRING = 131072
NK = 3

def q(b): return f'v[{b}:{b+3}]'

def acc(i, t): return 128 + 16 * (i * 4 + t)

def compute(a, dft):
    tag = 'k1_cd' if dft else 'k1_cg'
    a.e(f'''
    v_and_b32 v1, 31, v0                 ; l31
    v_lshrrev_b32 v3, 5, v0              ; h
    ''')
    for ksl in range(4):
        a.e(f'''
        v_add_u32 v8, {2*ksl}, v3
        v_xor_b32 v8, v8, v1
        v_lshlrev_b32 v8, 4, v8
        v_lshl_add_u32 v8, v3, 9, v8
        v_add_u32 v{4+ksl}, {XRING + ksl*4096}, v8
        ''')
    if not dft:
        a.e(f'''
        v_bfe_u32 v8, v0, 2, 2               ; r
        v_lshl_add_u32 v9, v3, 3, v8         ; 8h + r
        v_lshlrev_b32 v2, 8, v9
        v_xor_b32 v8, s63, v8
        v_lshl_add_u32 v2, v8, 6, v2
        v_bfe_u32 v8, v0, 4, 1
        v_lshl_add_u32 v2, v8, 5, v2
        v_and_b32 v8, 3, v0
        v_lshl_add_u32 v2, v8, 3, v2
        ''')
    else:
        a.e(f'''
        s_lshl_b32 s64, s61, 3
        s_lshl_b32 s65, s63, 1
        s_add_u32 s64, s64, s65              ; mt0
        s_lshl_b32 s65, s64, 4               ; 16*mt0
        v_lshrrev_b32 v8, 1, v1
        v_add_u32 v8, s65, v8                ; p (i=0)
        v_and_b32 v9, 1, v1                  ; c
        v_cvt_f32_u32 v10, v9
        v_mul_f32 v10, 0x3e800000, v10       ; phase = c/4
        v_lshlrev_b32 v11, 3, v3
        v_cvt_f32_u32 v11, v11               ; 8h
        s_mov_b32 s66, {fh(1.0/448)}
        ''')
        for i in range(2):
            if i == 0:
                a.e(f'''
                v_cmp_eq_u32 vcc, 1, v1              ; l31==1
                v_cmp_eq_u32 s[68:69], 0, v8         ; p==0
                s_and_b64 vcc, vcc, s[68:69]
                v_mov_b32 v14, 224
                v_cndmask_b32 v12, v8, v14, vcc
                v_cvt_f32_u32 v12, v12
                v_cndmask_b32 v13, v10, 0, vcc
                ''')
            else:
                a.e(f'''
                v_add_u32 v12, 16, v8
                v_cvt_f32_u32 v12, v12
                v_mov_b32 v13, v10
                ''')
            a.e(f'''
            v_mul_f32 v14, v12, v11              ; freq*8h
            v_mul_f32 v15, 0x41800000, v12       ; freq*16
            v_mul_f32 v16, s66, v15
            v_cos_f32 v16, v16
            v_add_f32 v{112+i}, v16, v16         ; C2
            v_sub_f32 v15, v14, v15              ; freq*(8h-16)
            ''')
            for j in range(8):
                P = 80 + 8*i + j; Q = 96 + 8*i + j
                a.e(f'''
                v_fma_f32 v{P}, v14, s66, v13
                v_fma_f32 v{Q}, v15, s66, v13
                v_cos_f32 v{P}, v{P}
                v_cos_f32 v{Q}, v{Q}
                v_add_f32 v14, v14, v12
                v_add_f32 v15, v15, v12
                ''')
        for i in range(2):
            for jj in range(4):
                a.e(f'v_cvt_pk_bf16_f32 v{32+4*i+jj}, v{80+8*i+2*jj}, v{80+8*i+2*jj+1}')
    for r in range(128, 256):
        a.e(f'v_mov_b32 v{r}, 0')

    def reads(ksl, buf):
        L = []
        cc, kk = ksl >> 1, ksl & 1
        XB = [f'ds_read_b128 {q(48+16*buf+4*t)}, v{4+ksl} offset:{t*1024}' for t in range(4)]
        if not dft:
            WA = []
            for i in range(2):
                for rho in range(2):
                    d = 32 + 8*buf + 4*i + 2*rho
                    WA.append(f'ds_read_b64_tr_b16 v[{d}:{d+1}], v2 offset:{cc*16384 + i*8192 + kk*4096 + rho*1024}')
            L = [WA[0], WA[1], XB[0], WA[2], WA[3], XB[1], XB[2], XB[3]]
        else:
            L = XB
        return L
    def gen(ksl, buf):
        L = []
        cur, prv = (80, 96) if (ksl & 1) == 1 else (96, 80)
        for i in range(2):
            for j in range(8):
                L.append(f'v_fma_f32 v{prv+8*i+j}, v{112+i}, v{cur+8*i+j}, -v{prv+8*i+j}')
            for jj in range(4):
                L.append(f'v_cvt_pk_bf16_f32 v{32+8*buf+4*i+jj}, v{prv+8*i+2*jj}, v{prv+8*i+2*jj+1}')
        return L
    def mfmas(buf):
        return [f'v_mfma_f32_32x32x16_bf16 v[{acc(i,t)}:{acc(i,t)+15}], {q(32+8*buf+4*i)}, {q(48+16*buf+4*t)}, v[{acc(i,t)}:{acc(i,t)+15}]'
                for t in range(4) for i in range(2)]
    a.e('s_mov_b32 s70, 0')
    mark(a, 1)
    a.e('s_barrier')
    mark(a, 2)
    for l in reads(0, 0): a.e(l)
    a.e('s_nop 1')
    a.fence()
    a.label(f'{tag}_loop')
    for ksl in range(4):
        buf = ksl & 1
        nk = (ksl + 1) & 3
        M = mfmas(buf)
        a.e('s_waitcnt lgkmcnt(0)')
        pre = []
        if ksl & 1:
            a.e(M[0]); M = M[1:]
            a.e('s_barrier')
            if ksl == 3:
                if not dft:
                    pre += ['v_add_u32 v2, 0x8000, v2', 'v_and_b32 v2, 0x1ffff, v2']
                pre += [f'v_xor_b32 v{4+k}, 0x4000, v{4+k}' for k in range(4)]
                pre += ['s_add_u32 s70, s70, 1']
        R = reads(nk, buf ^ 1)
        if not dft:
            for l in pre: a.e(l)
            seq = interleave(M, R, 0, 2) if not (ksl & 1) else R[:2] + interleave(M, R[2:], 0, 2)
        else:
            G = gen(nk, buf ^ 1)
            for l in pre: a.e(l)
            fill = R + G
            seq = interleave(M, fill, 0, 4) if not (ksl & 1) else fill[:4] + interleave(M, fill[4:], 0, 4)
        for l in seq: a.e(l)
    a.e(f's_cmp_lt_u32 s70, 7\ns_cbranch_scc1 {tag}_loop')
    a.e('s_nop 7\ns_nop 7')
    mark(a, 3)
    a.fence()
    if not dft:
        srd(a, 32, 18, OFF_HF, SZ_HF)
        a.e(f'''
        s_mul_i32 s64, s62, {4*112}
        s_lshl_b32 s65, s61, 3
        s_add_u32 s64, s64, s65
        s_lshl_b32 s65, s63, 1
        s_add_u32 s64, s64, s65
        s_lshl_b32 s64, s64, 10
        v_lshlrev_b32 v1, 4, v0
        ''')
        n = 0
        for t in range(4):
            for jp in range(2):
                o = 32 + 4 * (n % 4); n += 1
                for dd in range(4):
                    g0 = acc(0, t) + 8*jp + 2*dd; u0 = acc(1, t) + 8*jp + 2*dd
                    a.e(f'''
                    v_max_f32 v{g0}, 0, v{g0}
                    v_max_f32 v{g0+1}, 0, v{g0+1}
                    v_mul_f32 v{g0}, v{g0}, v{u0}
                    v_mul_f32 v{g0+1}, v{g0+1}, v{u0+1}
                    v_cvt_pk_bf16_f32 v{o+dd}, v{g0}, v{g0+1}
                    ''')
                a.e(f'buffer_store_dwordx4 {q(o)}, v1, s[32:35], s64 offen offset:{jp*1024}')
            if t < 3: a.e(f's_add_u32 s64, s64, {112*1024}')
    else:
        srd(a, 32, 18, OFF_Z1, SZ_Z1)
        a.e(f'''
        s_lshl_b32 s65, s64, 17              ; mt0*16*8192
        s_lshl_b32 s66, s62, 9
        s_add_u32 s65, s65, s66
        v_lshlrev_b32 v1, 4, v1
        v_lshl_add_u32 v1, v3, 14, v1
        ''')
        n = 0
        for i in range(2):
            for aa in range(8):
                o = 32 + 4 * (n % 4); n += 1
                for t in range(4):
                    r = acc(i, t) + 2*aa
                    a.e(f'v_cvt_pk_bf16_f32 v{o+t}, v{r}, v{r+1}')
                a.e(f's_add_u32 s66, s65, {(16*i + 4*(aa>>1) + (aa&1)) * 8192}')
                a.e(f'buffer_store_dwordx4 {q(o)}, v1, s[32:35], s66 offen')
    endpgm(a, 0, 18, nlast=NK-1)

XB = 128
def xr(g, c): return XB + (g * 7 + c) * 4

def helper(a, dft):
    tag = 'k1_hd' if dft else 'k1_hg'
    srd(a, 20, 4, 0, SZ_X)
    a.e(f'''
    s_lshl_b32 s64, s62, 2
    s_add_u32 s64, s64, s63
    s_mul_i32 s64, s64, {32*896}
    s_add_u32 s65, s64, 7168
    s_add_u32 s66, s64, {2*7168}
    s_add_u32 s67, s64, {3*7168}
    v_lshrrev_b32 v3, 3, v0              ; l>>3
    v_and_b32 v4, 7, v0                  ; l&7
    v_mul_u32_u24 v1, 896, v3
    v_lshl_add_u32 v1, v4, 4, v1
    ''')
    for g in range(4):
        for c in range(7):
            a.e(f'buffer_load_dwordx4 {q(xr(g,c))}, v1, s[20:23], s{64+g} offen offset:{c*128}')
    nafter = 0
    def dma_chunk(c):
        slot = c % 8
        L = []
        for e in range(2):
            L.append(f's_add_u32 s69, s68, {c*114688 + e*14336}')
            for mat in range(2):
                L.append(f's_add_u32 m0, s71, {slot*16384 + mat*8192 + e*1024}')
                L.append(f'buffer_load_dwordx4 v2, s[{24+4*mat}:{27+4*mat}], s69 offen lds')
        return L
    side = []
    if not dft:
        a.e(f'''
        s_lshl_b32 s69, s61, 8               ; ct*256
        s_sub_u32 s70, {SZ_WG}, s69
        ''')
        srd(a, 24, 12, 's69', 's70')
        srd(a, 28, 14, 's69', 's70')
        a.e(f'''
        s_mul_i32 s68, s63, 28672
        s_lshl_b32 s71, s63, 11
        v_lshrrev_b32 v5, 4, v0
        v_lshlrev_b32 v6, 2, v5
        v_and_b32 v7, 15, v0
        v_xor_b32 v6, v6, v7
        v_mul_u32_u24 v2, 3584, v5
        v_lshl_add_u32 v2, v6, 4, v2
        ''')
        for c in range(8):
            for l in dma_chunk(c): a.e(l)
        nafter = 32
    else:
        srd(a, 24, 6, 0, SZ_WR)
        srd(a, 28, 8, 0, SZ_WR)
        srd(a, 36, 16, 0, SZ_WG)
        a.e(f'''
        s_lshl_b32 s72, s60, 2
        s_add_u32 s72, s72, s63              ; wi
        s_mul_i32 s68, s72, 7200
        s_add_u32 s69, s68, 4096
        s_lshl_b32 s71, s63, 14              ; region A
        v_lshlrev_b32 v2, 4, v0
        ''')
        for mat in range(2):
            for hh in range(2):
                a.e(f's_add_u32 m0, s71, {mat*8192 + hh*4096}')
                for n in range(4):
                    a.e(f'buffer_load_dwordx4 v2, s[{24+4*mat}:{27+4*mat}], s{68+hh} offen offset:{n*1024} lds')
        a.e(f's_mul_i32 s68, s72, 14336')
        for hh in range(4):
            a.e(f's_add_u32 m0, s71, {65536 + hh*4096}')
            a.e(f's_add_u32 s69, s68, {hh*4096}')
            for n in range(4 if hh < 3 else 2):
                a.e(f'buffer_load_dwordx4 v2, s[36:39], s69 offen offset:{n*1024} lds')
        nafter = 30
        srd(a, 48, 18, OFF_GF, SZ_GF)
        srd(a, 52, 18, OFF_FL, SZ_FL)
        SC = 2.0 / (448 * 2048)
        a.e(f'''
        s_mul_i32 s73, s72, 147
        s_lshr_b32 s73, s73, 10
        s_mul_i32 s74, s73, 7
        s_sub_u32 s74, s72, s74              ; wi%7
        s_lshl_b32 s74, s74, 5               ; 8*ks0 = 32*(wi%7)
        s_lshl_b32 s73, s73, 5               ; 32 dt
        v_and_b32 v5, 31, v0
        v_add_u32 v5, s73, v5                ; d
        v_lshrrev_b32 v6, 5, v0
        v_lshlrev_b32 v6, 2, v6
        v_add_u32 v6, s74, v6                ; p0 = 8ks0 + 4h
        v_cvt_f32_u32 v7, v5                 ; d float
        v_cvt_f32_u32 v8, v6
        v_mul_f32 v8, v8, v7                 ; p0*d
        s_mov_b32 s75, {fh(1.0/448)}
        s_mov_b32 s76, {fh(SC)}
        v_lshlrev_b32 v9, 31, v5
        v_xor_b32 v9, {fh(SC/2)}, v9         ; alt_hi
        v_cmp_eq_u32 s[78:79], 0, v6
        v_mul_f32 v18, 4.0, v7
        s_lshl_b32 s77, s72, 12
        v_mov_b32 v20, 0
        v_mov_b32 v21, 0
        v_mov_b32 v22, 0
        v_mov_b32 v23, 0
        s_lshl_b32 s80, s72, 10
        buffer_store_dwordx4 v[20:23], v2, s[52:55], s80 offen
        ''')
        for n in range(4):
            o = 24 + 4 * n
            for j in range(4):
                a.e(f'''
                v_mul_f32 v10, s75, v8
                v_fract_f32 v10, v10
                v_cos_f32 v11, v10
                v_sin_f32 v12, v10
                v_add_f32 v8, v8, v7
                v_mul_f32 v11, s76, v11
                v_mul_f32 v12, s76, v12
                ''')
                if n == 0 and j == 0:
                    a.e(f'''
                    v_mov_b32 v13, {fh(SC/2)}
                    v_cndmask_b32 v11, v11, v13, s[78:79]
                    v_cndmask_b32 v12, v12, v9, s[78:79]
                    ''')
                a.e(f'v_cvt_pk_bf16_f32 v{o+j}, v11, v12')
            a.e(f'v_add_f32 v8, v8, v18')
            a.e(f'buffer_store_dwordx4 {q(o)}, v2, s[48:51], s77 offen offset:{n*1024}')
        nafter += 5
        srd(a, 40, 18, OFF_WF, SZ_WF)
        srd(a, 44, 18, OFF_WT, SZ_WT)
        a.e(f'''
        v_and_b32 v5, 3, v0                  ; c
        v_lshrrev_b32 v6, 2, v0              ; kl
        v_mul_u32_u24 v40, 1800, v5
        v_lshl_add_u32 v40, v6, 1, v40
        v_add_u32 v40, s71, v40
        v_lshlrev_b32 v41, 13, v6
        v_lshl_add_u32 v41, v5, 4, v41
        v_bfe_u32 v7, v0, 2, 2               ; r
        v_lshrrev_b32 v8, 5, v0              ; h
        v_lshl_add_u32 v7, v8, 2, v7         ; 4h + r
        v_mul_u32_u24 v42, 896, v7
        v_bfe_u32 v7, v0, 4, 1
        v_lshl_add_u32 v42, v7, 5, v42
        v_lshl_add_u32 v42, v5, 3, v42
        v_add_u32 v42, s71, v42
        v_add_u32 v42, 0x10000, v42
        s_lshl_b32 s81, s72, 6               ; wi*64
        s_lshl_b32 s82, s72, 10              ; kb*1024
        ''')
        for it in range(15):
            o = 44 + 4 * (it % 3)
            blk = []
            for j in range(4):
                blk.append(f'ds_read_u16 v{o+j}, v40 offset:{j*450 + 32*it}')
                blk.append(f'ds_read_u16 v{56+j}, v40 offset:{8192 + j*450 + 32*it}')
            blk.append(f's_add_u32 s83, s81, {it*131072}')
            blk.append('s_waitcnt lgkmcnt(0)')
            for j in range(4):
                blk.append(f'v_lshl_or_b32 v{o+j}, v{56+j}, 16, v{o+j}')
            blk.append(f'buffer_store_dwordx4 {q(o)}, v41, s[44:47], s83 offen')
            side.append(blk)
    mark(a, 1)
    a.e('v_mov_b32 v9, 0x3f803f80')
    for g in range(4):
        a.e(f'v_mov_b32 v{10+g}, 0\nv_mov_b32 v{14+g}, 0')
    for g in range(4):
        for c in range(7):
            idx = g * 7 + c
            a.e(f's_waitcnt vmcnt({27 - idx + nafter})')
            for dd in range(4):
                r = xr(g, c) + dd
                a.e(f'v_dot2c_f32_bf16 v{10+g}, v{r}, v9\nv_dot2c_f32_bf16 v{14+g}, v{r}, v{r}')
    mark(a, 2)
    for mod in ('quad_perm:[1,0,3,2]', 'quad_perm:[2,3,0,1]', 'row_half_mirror'):
        for r in range(10, 18):
            a.e(f'v_add_f32_dpp v{r}, v{r}, v{r} {mod} row_mask:0xf bank_mask:0xf')
    a.e(f's_mov_b32 s84, {fh(1.0/448)}\ns_mov_b32 s85, 0xffff0000')
    steps = [
        'v_mul_f32 v{m}, s84, v{m}',
        'v_mul_f32 v{t}, v{m}, v{m}',
        'v_fma_f32 v{v}, v{v}, s84, -v{t}',
        'v_max_f32 v{v}, 0, v{v}',
        'v_cvt_pk_bf16_f32 v{t}, v{m}, v{v}',
        'v_lshlrev_b32 v{m}, 16, v{t}',
        'v_and_b32 v{v}, s85, v{t}',
        'v_add_f32 v{v}, 0x3727c5ac, v{v}',
        'v_cvt_pk_bf16_f32 v{v}, v{v}, v{v}',
        'v_and_b32 v{v}, s85, v{v}',
        'v_sqrt_f32 v{v}, v{v}',
        'v_cvt_pk_bf16_f32 v{v}, v{v}, v{v}',
        'v_and_b32 v{v}, s85, v{v}',
        'v_rcp_f32 v{v}, v{v}',
        'v_mul_f32 v{m}, v{m}, v{v}',
    ]
    for st in steps:
        for g in range(4):
            a.e(st.format(m=10+g, v=14+g, t=18+g))
    a.e(f'''
    v_lshrrev_b32 v5, 1, v4
    v_lshlrev_b32 v8, 12, v5
    v_and_b32 v5, 1, v4
    v_lshl_add_u32 v8, v5, 9, v8
    v_xor_b32 v5, v3, v4
    v_lshl_add_u32 v8, v5, 4, v8
    s_lshl_b32 s86, s63, 10
    s_add_u32 s86, s86, {XRING}
    v_add_u32 v8, s86, v8
    ''')
    def norm(u):
        for g in range(4):
            for dd in range(4):
                r = xr(g, u) + dd
                t0 = 24 + 2 * dd
                a.e(f'''
                v_lshlrev_b32 v{t0}, 16, v{r}
                v_and_b32 v{t0+1}, s85, v{r}
                v_fma_f32 v{t0}, v{t0}, v{14+g}, -v{10+g}
                v_fma_f32 v{t0+1}, v{t0+1}, v{14+g}, -v{10+g}
                v_cvt_pk_bf16_f32 v{r}, v{t0}, v{t0+1}
                ''')
            a.e(f'ds_write_b128 v8, {q(xr(g,u))} offset:{(u&1)*16384 + g*128}')
    norm(0)
    mark(a, 3)
    si = 0
    for c in range(15):
        if not dft:
            if c <= 7:
                later = (7 - c) + max(0, min(c - 1, 6))
                a.e(f's_waitcnt vmcnt({4*later}) lgkmcnt(0)')
            elif c <= 13:
                a.e(f's_waitcnt vmcnt({4*(13-c)}) lgkmcnt(0)')
        else:
            a.e('s_waitcnt lgkmcnt(0)')
        a.e('s_barrier')
        if c == 0: mark(a, 4)
        if c == 0: norm(1)
        if not dft and 1 <= c <= 6:
            for l in dma_chunk(c + 7): a.e(l)
        if c >= 2 and c % 2 == 0 and c // 2 + 1 <= 6: norm(c // 2 + 1)
        if dft:
            if c == 1:
                a.e('s_waitcnt vmcnt(0)')
                a.e(f's_cmp_ge_u32 s72, 112\ns_cbranch_scc1 {tag}_skipB')
                for dt in range(14):
                    o = 60 + 4 * dt
                    a.e(f'ds_read_b64_tr_b16 v[{o}:{o+1}], v42 offset:{dt*64}')
                    a.e(f'ds_read_b64_tr_b16 v[{o+2}:{o+3}], v42 offset:{7168 + dt*64}')
                for dt in range(14):
                    o = 60 + 4 * dt
                    a.e(f's_add_u32 s83, s82, {dt*114688}')
                    a.e(f's_waitcnt lgkmcnt({min(15, 2*(13-dt))})')
                    a.e(f'buffer_store_dwordx4 {q(o)}, v2, s[40:43], s83 offen')
                a.label(f'{tag}_skipB')
                a.fence()
            if c in (3, 5, 7, 9, 11):
                for blk in side[si:si+3]:
                    for l in blk: a.e(l)
                si += 3
    endpgm(a, 0, 18, nlast=NK-1)

def gen_k1(a):
    a.raw('.p2align 8')
    a.label('k1_kernel')
    a.e(f'''
    s_cmp_ge_u32 s2, 256
    s_cbranch_scc1 k1_end
    ''')
    diag_start(a)
    a.e(f'''
    s_load_dwordx8 s[4:11], s[0:1], 0
    s_load_dwordx4 s[12:15], s[0:1], 32
    s_load_dwordx2 s[16:17], s[0:1], 48
    s_load_dwordx2 s[18:19], s[0:1], 72
    v_lshrrev_b32 v1, 6, v0
    v_and_b32 v0, 63, v0
    v_readfirstlane_b32 s3, v1
    s_and_b32 s56, s2, 7
    s_lshr_b32 s57, s2, 3
    s_and_b32 s58, s56, 1
    s_lshl_b32 s58, s58, 3
    s_lshr_b32 s59, s56, 1
    s_and_b32 s63, s3, 3
    s_cmp_ge_u32 s57, 28
    s_cbranch_scc1 k1_dft
    s_mul_i32 s60, s59, 28
    s_add_u32 s60, s60, s57
    s_lshr_b32 s61, s60, 3
    s_and_b32 s62, s60, 7
    s_add_u32 s62, s62, s58
    s_waitcnt lgkmcnt(0)
    s_cmp_ge_u32 s3, 4
    s_cbranch_scc1 k1_gu_helper
    ''')
    a.fence(); compute(a, False)
    a.label('k1_gu_helper'); a.fence(); helper(a, False)
    a.label('k1_dft'); a.fence()
    a.e(f'''
    s_sub_u32 s57, s57, 28
    s_lshl_b32 s62, s59, 1
    s_add_u32 s62, s62, s58
    s_lshr_b32 s60, s57, 1
    s_add_u32 s62, s62, s60
    s_and_b32 s61, s57, 1
    s_lshl_b32 s60, s56, 2
    s_add_u32 s60, s60, s57
    s_waitcnt lgkmcnt(0)
    s_cmp_ge_u32 s3, 4
    s_cbranch_scc1 k1_dft_helper
    ''')
    a.fence(); compute(a, True)
    a.label('k1_dft_helper'); a.fence(); helper(a, True)
    a.label('k1_end')
    a.e('s_endpgm')
```

```python
from dsl import *
from common import *

def q(b, k='v'): return f'{k}[{b}:{b+3}]'

class VM:
    def __init__(self, a): self.a = a; self.ops = []; self.done = 0
    def issue(self, text, tag):
        assert len(self.ops) - self.done < 63, 'too many outstanding'
        self.a.e(text); self.ops.append(tag)
    def wait(self, tag):
        idx = max(i for i, t in enumerate(self.ops) if t == tag)
        if idx < self.done: return
        n = len(self.ops) - 1 - idx
        self.a.e(f's_waitcnt vmcnt({n})'); self.done = idx + 1
    def outstanding(self): return len(self.ops) - self.done

XA = 32; WV = 64; C64R = 72; C64I = 88; C32R = 104; C32I = 120; TW1 = 136; TW2 = 152
DR = 168; DI = 176; ER = 184; EI = 192; PK = 200
ACC = 192
NR = 15

def gen_k2(a, name, mode):
    do_fft = mode in ('fft', 'both'); do_gemm = mode in ('gemm', 'both'); both = mode == 'both'
    SC1 = ' sc0 sc1' if both else ''
    nwg = 225 if do_fft else 224
    a.raw('.p2align 8'); a.label(name); a.fence()
    vm = VM(a)
    a.e(f'''
    s_cmp_ge_u32 s2, {nwg}
    s_cbranch_scc1 {name}_end
    ''')
    diag_start(a)
    kidx = 2 if mode == 'gemm' else 1
    a.e(f'''
    s_load_dwordx2 s[4:5], s[0:1], 0
    s_load_dwordx2 s[6:7], s[0:1], 56
    s_load_dwordx2 s[8:9], s[0:1], 72
    v_lshrrev_b32 v1, 6, v0
    v_and_b32 v0, 63, v0
    v_readfirstlane_b32 s3, v1
    v_and_b32 v1, 15, v0                 ; l15
    v_lshrrev_b32 v2, 4, v0              ; q
    v_lshlrev_b32 v3, 4, v0              ; lane*16
    s_and_b32 s50, s2, 7
    s_lshr_b32 s51, s2, 3
    s_mul_i32 s52, s51, 37
    s_lshr_b32 s52, s52, 8               ; j/7
    s_mul_i32 s53, s52, 7
    s_sub_u32 s53, s51, s53              ; dt64
    s_lshl_b32 s50, s50, 2
    s_add_u32 s52, s52, s50              ; st64
    s_cmp_eq_u32 s2, 224
    s_cselect_b32 s54, 0, s2             ; p
    s_waitcnt lgkmcnt(0)
    ''')
    if do_fft:
        srd(a, 24, 8, OFF_Z1, SZ_Z1)
        srd(a, 28, 8, OFF_WT, SZ_WT)
        a.e(f'''
        s_lshl_b32 s55, s54, 13              ; p*8192
        s_add_u32 s56, s55, 4096
        v_lshlrev_b32 v4, 4, v1
        v_lshl_add_u32 v4, v2, 9, v4         ; q*512 + l15*16
        s_lshl_b32 s57, s2, 13
        s_lshl_b32 s58, s3, 6
        s_add_u32 s57, s57, s58              ; k*8192 + w*64
        s_add_u32 s58, s57, 4096
        v_lshlrev_b32 v5, 2, v1
        v_lshl_add_u32 v5, v2, 10, v5        ; q*1024 + l15*4
        ''')
        for u in range(4):
            for t in range(2):
                vm.issue(f'buffer_load_dwordx4 {q(XA+16*t+4*u)}, v4, s[24:27], s{55+(u>>1)} offen offset:{(u&1)*2048 + t*256}', 'xa')
        for tm in range(2):
            for i in range(4):
                vm.issue(f'buffer_load_dword v{WV+4*tm+i}, v5, s[28:31], s{57+tm} offen offset:{i*256}', 'wv')
    issued = [0]
    def issue_k(i):
        r = 16 * (i % NR)
        if i < 28:
            o = (i & 3) * 1024
            vm.issue(f'buffer_load_dwordx4 {q(r,"a")}, v3, s[16:19], s62 offen offset:{o}', ('k', i))
            vm.issue(f'buffer_load_dwordx4 {q(r+8,"a")}, v3, s[12:15], s60 offen offset:{o}', ('k', i))
            vm.issue(f'buffer_load_dwordx4 {q(r+4,"a")}, v3, s[16:19], s63 offen offset:{o}', ('k', i))
            vm.issue(f'buffer_load_dwordx4 {q(r+12,"a")}, v3, s[12:15], s61 offen offset:{o}', ('k', i))
            if (i & 3) == 3:
                for s in (60, 61, 62, 63): a.e(f's_add_u32 s{s}, s{s}, 4096')
        else:
            ii = i - 28
            o = (ii & 3) * 1024
            vm.issue(f'buffer_load_dwordx4 {q(r,"a")}, v3, s[20:23], s64 offen offset:{o}', ('k', i))
            vm.issue(f'buffer_load_dwordx4 {q(r+4,"a")}, v3, s[20:23], s65 offen offset:{o}', ('k', i))
            if ii == 3:
                for s in (64, 65): a.e(f's_add_u32 s{s}, s{s}, 4096')
        issued[0] = i + 1
    extra = []
    gf_ready = [False]
    def pump(i, reserve=0):
        while True:
            n = issued[0]
            if extra and vm.outstanding() + 1 + reserve <= 63:
                pre, text, tag = extra.pop(0)
                if pre: a.e(pre)
                vm.issue(text, tag); continue
            if n < 35 and n - NR <= i and (n < 28 or gf_ready[0]) and vm.outstanding() + (4 if n < 28 else 2) + reserve <= 63:
                issue_k(n); continue
            break
    if do_gemm:
        if both:
            a.e(f's_cmp_eq_u32 s2, 224\ns_cbranch_scc1 {name}_fftonly')
        srd(a, 12, 8, OFF_HF, SZ_HF)
        srd(a, 16, 8, OFF_WF, SZ_WF)
        a.e(f'''
        s_mul_i32 s66, s3, 28
        s_mul_i32 s60, s52, 224
        s_add_u32 s60, s60, s66
        s_lshl_b32 s60, s60, 10
        s_add_u32 s61, s60, 114688
        s_mul_i32 s62, s53, 224
        s_add_u32 s62, s62, s66
        s_lshl_b32 s62, s62, 10
        s_add_u32 s63, s62, 114688
        ''')
        pump(-1)
        srd(a, 20, 8, OFF_GF, SZ_GF)
        srd(a, 40, 4, 0, SZ_X)
        srd(a, 44, 6, 0, SZ_X)
        a.e(f'''
        s_mul_i32 s66, s3, 7
        s_mul_i32 s64, s53, 56
        s_add_u32 s64, s64, s66
        s_lshl_b32 s64, s64, 10
        s_add_u32 s65, s64, {28*1024}
        ''')
        gf_ready[0] = True
    srd(a, 32, 8, OFF_Z3, SZ_Z3)
    if both: srd(a, 36, 8, OFF_FL, SZ_FL)

    def fft_body(vm, tag, more_prefetch):
        a.e(f'''
        s_lshl_b32 s67, s3, 4
        v_add_u32 v8, s67, v1                ; 16w + l15
        v_cvt_f32_u32 v8, v8
        v_lshlrev_b32 v9, 2, v2
        v_cvt_f32_u32 v9, v9                 ; 4q
        v_cvt_f32_u32 v10, v1                ; l15
        v_mul_f32 v11, {fh(1/64)}, v8        ; a/64
        v_mul_f32 v12, v11, v9               ; arg
        v_mul_f32 v13, {fh(12.0)}, v11
        ''')
        def cs_pack(arg, dr, di):
            a.e(f'''
            v_cos_f32 v14, v{arg}
            v_sin_f32 v15, v{arg}
            ''')
            return f'''
            v_cvt_pk_bf16_f32 v{dr}, v14, v15
            v_cvt_pk_bf16_f32 v{di}, -v15, v14
            '''
        for u in range(4):
            for j in range(4):
                post = cs_pack(12, C64R+4*u+j, C64I+4*u+j)
                a.e('v_add_f32 v12, v12, v11')
                a.e(post)
            if u < 3: a.e('v_add_f32 v12, v12, v13')
        for t in range(2):
            a.e(f'''
            v_add_f32 v11, {fh(16.0*t)}, v10
            v_mul_f32 v11, {fh(1/32)}, v11
            v_mul_f32 v12, v11, v9
            v_mul_f32 v13, {fh(12.0)}, v11
            ''')
            for u in range(2):
                for j in range(4):
                    post = cs_pack(12, C32R+8*t+4*u+j, C32I+8*t+4*u+j)
                    a.e('v_add_f32 v12, v12, v11')
                    a.e(post)
                if u < 1: a.e('v_add_f32 v12, v12, v13')
        a.e(f'''
        v_mul_f32 v11, {fh(1/2048)}, v8
        v_mul_f32 v12, v11, v9
        v_mul_f32 v13, {fh(12.0)}, v11
        ''')
        for t in range(2):
            for i in range(4):
                a.e(f'v_cos_f32 v{TW1+2*(4*t+i)}, v12\nv_sin_f32 v{TW1+2*(4*t+i)+1}, v12\nv_add_f32 v12, v12, v11')
            if t < 1: a.e('v_add_f32 v12, v12, v13')
        a.e(f'''
        v_cvt_f32_u32 v16, s67
        v_add_f32 v16, v16, v9               ; 16w+4q
        ''')
        for t in range(2):
            a.e(f'''
            v_add_f32 v11, {fh(16.0*t)}, v10
            v_mul_f32 v11, {fh(1/2048)}, v11
            v_mul_f32 v12, v11, v16
            ''')
            for i in range(4):
                a.e(f'v_cos_f32 v{TW2+2*(4*t+i)}, v12\nv_sin_f32 v{TW2+2*(4*t+i)+1}, v12\nv_add_f32 v12, v12, v11')
        mark(a, 1)
        vm.wait('xa')
        mark(a, 2)
        a.e(f's_cmp_lg_u32 s54, 0\ns_cbranch_scc1 {tag}_nofix')
        a.e(f's_cmp_eq_u32 s2, 224\ns_cselect_b32 s68, 16, 0')
        for r in range(XA, XA+32):
            a.e(f'v_lshrrev_b32 v{r}, s68, v{r}\nv_and_b32 v{r}, 0xffff, v{r}')
        a.e('s_nop 1')
        a.label(f'{tag}_nofix'); a.fence()
        def mm(d, A, B, first):
            c = '0' if first else q(d)
            a.e(f'v_mfma_f32_16x16x32_bf16 {q(d)}, {q(A)}, {q(B)}, {c}')
        for u in range(4):
            for t in range(2):
                mm(DR+4*t, XA+16*t+4*u, C64R+4*u, u == 0)
                mm(DI+4*t, XA+16*t+4*u, C64I+4*u, u == 0)
        more_prefetch()
        def twiddle(R, I, TW, out):
            for t in range(2):
                for i in range(4):
                    c = TW + 2*(4*t+i); s = c + 1
                    r = R + 4*t + i; im = I + 4*t + i
                    t0 = 8 + 2*i
                    a.e(f'''
                    v_mul_f32 v{t0}, v{r}, v{c}
                    v_mul_f32 v{t0+1}, v{im}, v{c}
                    v_fmac_f32 v{t0}, v{im}, v{s}
                    v_fma_f32 v{t0+1}, -v{r}, v{s}, v{t0+1}
                    v_cvt_pk_bf16_f32 v{out+4*t+i}, v{t0}, v{t0+1}
                    ''')
        twiddle(DR, DI, TW1, PK)
        for t in range(2):
            for tm in range(2):
                mm(ER+4*tm, C32R+8*tm+4*t, PK+4*t, t == 0)
                mm(EI+4*tm, C32I+8*tm+4*t, PK+4*t, t == 0)
        vm.wait('wv')
        for n in range(8):
            a.e(f'v_lshlrev_b32 v{16+n}, 16, v{WV+n}\nv_and_b32 v{24+n}, 0xffff0000, v{WV+n}')
        for tm in range(2):
            for i in range(4):
                n = 4*tm + i
                xr_ = ER + n; xi = EI + n; wr = 16 + n; wi = 24 + n
                t0 = 8 + 2*i
                a.e(f'''
                v_mul_f32 v{t0}, v{xr_}, v{wr}
                v_mul_f32 v{t0+1}, v{xr_}, v{wi}
                v_fma_f32 v{t0}, -v{xi}, v{wi}, v{t0}
                v_fmac_f32 v{t0+1}, v{xi}, v{wr}
                v_cvt_pk_bf16_f32 v{PK+n}, v{t0}, -v{t0+1}
                ''')
        for tm in range(2):
            for tn in range(2):
                mm(DR+4*tn, PK+4*tm, C32R+8*tn+4*tm, tm == 0)
                mm(DI+4*tn, PK+4*tm, C32I+8*tn+4*tm, tm == 0)
        a.e('s_lshl_b32 s68, s3, 11\nv_add_u32 v6, s68, v3')
        twiddle(DR, DI, TW2, PK)
        a.e(f'''
        ds_write_b128 v6, {q(PK)}
        ds_write_b128 v6, {q(PK+4)} offset:1024
        s_waitcnt lgkmcnt(0)
        s_barrier
        ''')
        for u in range(4):
            for tn in range(2):
                a.e(f'ds_read_b128 {q(XA+16*tn+4*u)}, v3 offset:{(2*u+tn)*1024}')
        a.e(f'''
        v_lshlrev_b32 v6, 3, v1
        v_lshl_add_u32 v6, v2, 9, v6
        s_lshl_b32 s68, s3, 11
        s_add_u32 s68, s68, s55
        ''')
        for u in range(4):
            a.e(f's_waitcnt lgkmcnt({6-2*u})')
            for tn in range(2):
                mm(ER+4*tn, C64R+4*u, XA+16*tn+4*u, u == 0)
                mm(EI+4*tn, C64I+4*u, XA+16*tn+4*u, u == 0)
        for n in range(8):
            a.e(f'v_cvt_pk_bf16_f32 v{PK+n}, v{ER+n}, v{EI+n}')
        a.e(f's_cmp_lg_u32 s54, 0\ns_cbranch_scc1 {tag}_st32')
        a.e(f's_cmp_eq_u32 s2, 224\ns_cselect_b32 s69, 2, 0\ns_add_u32 s68, s68, s69')
        for tn in range(2):
            for i in range(4):
                a.e(f'buffer_store_short v{PK+4*tn+i}, v6, s[32:35], s68 offen offset:{(i>>1)*256 + tn*128 + (i&1)*4}{SC1}')
        a.e('s_waitcnt vmcnt(0)')
        a.e(f's_branch {tag}_stdone')
        a.label(f'{tag}_st32'); a.fence()
        for tn in range(2):
            for e in range(2):
                vm.issue(f'buffer_store_dwordx2 v[{PK+4*tn+2*e}:{PK+4*tn+2*e+1}], v6, s[32:35], s68 offen offset:{e*256 + tn*128}{SC1}', 'z3st')
        a.label(f'{tag}_stdone'); a.fence()
        mark(a, 3)

    def send_flag():
        a.e(f'''
        s_lshl_b32 s68, s3, 10
        s_lshl_b32 s69, s2, 2
        s_add_u32 s68, s68, s69
        v_lshlrev_b32 v7, 12, v0
        v_mov_b32 v8, 1
        ''')

    if do_fft:
        def more():
            if both: pump(-1, reserve=4)
        fft_body(vm, name, more)
        if not both:
            endpgm(a, kidx, 8, nlast=(1 if mode == 'fft' else 0))
    if do_gemm:
        a.e(f'''
        v_and_b32 v4, 31, v0                 ; l31
        v_lshrrev_b32 v5, 5, v0              ; h
        s_and_b32 s70, s3, 1
        s_lshr_b32 s71, s3, 1
        s_lshl_b32 s72, s52, 1
        s_add_u32 s72, s72, s70              ; st32
        s_mul_i32 s72, s72, {32*896}
        s_lshl_b32 s73, s53, 1
        s_add_u32 s73, s73, s71
        s_lshl_b32 s73, s73, 6
        s_add_u32 s72, s72, s73
        v_mul_u32_u24 v9, 896, v4
        v_lshl_add_u32 v10, v5, 3, v9
        v_lshl_add_u32 v11, v5, 4, v9
        ; z3 voffsets v12..v15 = (4h + j)*8192 + l31*8
        v_lshlrev_b32 v12, 3, v4
        v_lshl_add_u32 v12, v5, 15, v12
        v_add_u32 v13, 0x2000, v12
        v_add_u32 v14, 0x4000, v12
        v_add_u32 v15, 0x6000, v12
        s_mul_i32 s74, s3, {56*8192}
        s_lshl_b32 s75, s52, 8
        s_add_u32 s74, s74, s75
        ''')
        if both: send_flag()
        def mf(i, first, Bregs=None):
            r = 16 * (i % NR)
            for aa in range(2):
                for b in range(2):
                    d = ACC + 16 * (2*b + aa)
                    c = '0' if first else f'v[{d}:{d+15}]'
                    B = q(r+8+4*aa, 'a') if Bregs is None else q(Bregs + 4*aa)
                    a.e(f'v_mfma_f32_32x32x16_bf16 v[{d}:{d+15}], {q(r+4*b,"a")}, {B}, {c}')
        ZL = 32
        ZF = 96
        def z3_loads():
            for ii in range(7):
                for j in range(4):
                    r = ZL + 8*ii + 2*j
                    extra.append((f's_add_u32 s75, s74, {ii*65536}' if j == 0 else None,
                                  f'buffer_load_dwordx2 v[{r}:{r+1}], v{12+j}, s[32:35], s75 offen{" sc1" if both else ""}', ('z', ii)))
        for i in range(28):
            vm.wait(('k', i))
            if not both and i == 0: mark(a, 1)
            if not both and i == 14: mark(a, 2)
            if not both and i == 27: mark(a, 3)
            mf(i, i == 0)
            if both and i == FLAG_AT:
                vm.wait('z3st')
                extra.append((None, f'buffer_store_dword v8, v7, s[36:39], s68 offen sc0 sc1', 'flag'))
            if i == XRES_AT:
                for g in range(4):
                    extra.append((None, f'buffer_load_dwordx2 v[{16+2*g}:{17+2*g}], v10, s[40:43], s72 offen offset:{16*g}', 'xres'))
            if both and i == POLL_AT:
                a.e(f'''
                s_lshr_b32 s76, s52, 3
                s_lshl_b32 s76, s76, 10
                s_mul_i32 s77, s3, 56
                v_min_u32 v24, 55, v0
                v_add_u32 v24, s77, v24
                v_cmp_eq_u32 vcc, 56, v0
                v_mov_b32 v25, 224
                v_cndmask_b32 v24, v24, v25, vcc
                v_lshlrev_b32 v24, 2, v24
                ''')
                extra.append((None, 'buffer_load_dword v25, v24, s[36:39], s76 offen sc0 sc1', 'poll'))
            if i == Z3_AT:
                if both:
                    vm.wait('poll')
                    a.label(f'{name}_chk'); a.fence()
                    a.e(f'''
                    v_cmp_ne_u32 vcc, 0, v25
                    s_nop 1
                    s_cmp_eq_u64 vcc, exec
                    s_cbranch_scc1 {name}_ready
                    s_sleep 2
                    buffer_load_dword v25, v24, s[36:39], s76 offen sc0 sc1
                    s_waitcnt vmcnt(0)
                    s_branch {name}_chk
                    ''')
                    a.label(f'{name}_ready'); a.fence()
                z3_loads()
            pump(i)
        for ii in range(7):
            pump(27 + ii)
            vm.wait(('k', 28 + ii)); vm.wait(('z', ii))
            for j in range(4):
                for aa in range(2):
                    a.e(f'v_mov_b32 v{ZF+8*ii+4*aa+j}, v{ZL+8*ii+2*j+aa}')
            mf(28 + ii, False, ZF + 8*ii)
        mark(a, 4)
        a.e(f'''
        s_lshl_b32 s76, s3, 12
        v_add_u32 v6, s76, v3
        s_lshl_b32 s76, s3, 14
        v_add_u32 v7, s76, v3
        s_barrier
        ''')
        for tl in range(4):
            for c in range(4):
                a.e(f'ds_write_b128 v6, {q(ACC+16*tl+4*c)} offset:{tl*16384 + c*1024}')
        a.e('s_waitcnt lgkmcnt(0)\ns_barrier')
        for sw in range(4):
            for c in range(4):
                a.e(f'ds_read_b128 {q(32+16*sw+4*c)}, v7 offset:{sw*4096 + c*1024}')
        vm.wait('xres')
        for g in range(4):
            for c in range(2):
                a.e(f'v_lshlrev_b32 v{96+4*g+2*c}, 16, v{16+2*g+c}\nv_and_b32 v{96+4*g+2*c+1}, 0xffff0000, v{16+2*g+c}')
        for sw in range(4):
            a.e(f's_waitcnt lgkmcnt({12-4*sw})')
            for r in range(16):
                a.e(f'v_add_f32 v{96+r}, v{96+r}, v{32+16*sw+r}')
        for g in range(4):
            for c in range(2):
                a.e(f'v_cvt_pk_bf16_f32 v{112+2*g+c}, v{96+4*g+2*c}, v{96+4*g+2*c+1}')
        for g in (0, 2):
            for c in range(2):
                a.e(f'v_permlane32_swap_b32 v{112+2*g+c}, v{112+2*g+2+c}')
        for g in (0, 2):
            a.e(f'buffer_store_dwordx4 {q(112+2*g)}, v11, s[44:47], s72 offen offset:{16*g}')
        endpgm(a, kidx, 8, nlast=(1 if mode == 'fft' else 0))
        if both:
            a.label(f'{name}_fftonly'); a.fence()
            srd(a, 32, 8, OFF_Z3, SZ_Z3)
            srd(a, 36, 8, OFF_FL, SZ_FL)
            vm2 = VM(a); vm2.ops = ['xa']*8 + ['wv']*8
            fft_body(vm2, name + '_f', lambda: None)
            send_flag()
            a.e('s_waitcnt vmcnt(0)\nbuffer_store_dword v8, v7, s[36:39], s68 offen sc0 sc1\ns_endpgm')
    a.label(f'{name}_end')
    a.e('s_endpgm')

FLAG_AT = 0
XRES_AT = 14
POLL_AT = 16
Z3_AT = 21
```

```python
import struct
S, D, F = 2048, 448, 1792
SZ_X = S * D * 2
SZ_WR = S * 225 * 2
SZ_WG = D * F * 2
SZ_HF = 64 * 112 * 1024
SZ_WF = 14 * 112 * 1024
SZ_GF = 14 * 28 * 1024
import os
PAD = int(os.environ.get('PAD', '1'))
ZS1 = 8192 + 512 * PAD
WS = 8192 + 256 * PAD
ZS3 = 8192 + 256 * PAD
SZ_Z1 = 224 * ZS1
SZ_WT = 225 * WS
SZ_Z3 = 224 * ZS3
SZ_FL = 4096
OFF_HF = 0
OFF_WF = OFF_HF + SZ_HF
OFF_GF = OFF_WF + SZ_WF
OFF_Z1 = OFF_GF + SZ_GF
OFF_WT = OFF_Z1 + SZ_Z1
OFF_Z3 = OFF_WT + SZ_WT
OFF_FL = OFF_Z3 + SZ_Z3

def f2u(x):
    return struct.unpack('<I', struct.pack('<f', x))[0]
def fh(x):
    return '0x%08x' % f2u(x)

def srd(a, d, base, off, size):
    if off == 0:
        a.e(f's_mov_b32 s{d}, s{base}\ns_mov_b32 s{d+1}, s{base+1}')
    else:
        a.e(f's_add_u32 s{d}, s{base}, {off}\ns_addc_u32 s{d+1}, s{base+1}, 0')
    a.e(f's_mov_b32 s{d+2}, {size}\ns_mov_b32 s{d+3}, 0x00020000')

def kd(name, vgpr, sgpr, accum):
    return f""".p2align 6
.amdhsa_kernel {name}
  .amdhsa_next_free_vgpr {vgpr}
  .amdhsa_next_free_sgpr {sgpr}
  .amdhsa_accum_offset {accum}
  .amdhsa_group_segment_fixed_size 0
  .amdhsa_kernarg_size 80
  .amdhsa_user_sgpr_count 2
  .amdhsa_user_sgpr_kernarg_segment_ptr 1
  .amdhsa_system_sgpr_workgroup_id_x 1
.end_amdhsa_kernel
"""

import os
DIAG = int(os.environ.get('DIAG', '0'))
OFF_DIAG = 64 << 20
def diag_start(a):
    if not DIAG: return
    a.e('''
    s_memrealtime s[100:101]
    s_memtime s[88:89]
    ''')
    for i in range(1, 5): a.e(f's_mov_b64 s[{88+2*i}:{89+2*i}], 0')
def mark(a, i):
    if DIAG: a.e(f's_memtime s[{88+2*i}:{89+2*i}]')
def endpgm(a, kidx, wsb, wave='s3', nlast=0):
    if DIAG:
        a.e(f'''
        s_waitcnt vmcnt(0)
        s_memtime s[98:99]
        s_memrealtime s[84:85]
        s_load_dwordx2 s[80:81], s[0:1], 64
        s_getreg_b32 s86, hwreg(HW_REG_XCC_ID)
        s_getreg_b32 s87, hwreg(HW_REG_HW_ID)
        s_waitcnt lgkmcnt(0)
        s_mov_b64 exec, 1
        s_lshl_b32 s86, s86, 24
        s_and_b32 s87, s87, 0xffffff
        s_sub_u32 s86, 20000, s79
        s_sub_u32 s90, s90, s88
        s_sub_u32 s92, s92, s88
        s_sub_u32 s94, s94, s88
        s_sub_u32 s96, s96, s88
        s_sub_u32 s98, s98, s88
        s_lshl_b32 s82, s2, 3
        s_add_u32 s82, s82, {wave}
        s_lshl_b32 s82, s82, 5
        s_add_u32 s82, s82, {OFF_DIAG + kidx*(1<<17)}
        v_mov_b32 v0, s82
        v_mov_b32 v4, s100
        v_mov_b32 v5, s90
        v_mov_b32 v6, s92
        v_mov_b32 v7, s94
        v_mov_b32 v8, s96
        v_mov_b32 v9, s98
        v_mov_b32 v10, s84
        v_mov_b32 v11, s86
        global_store_dwordx4 v0, v[4:7], s[{wsb}:{wsb+1}]
        global_store_dwordx4 v0, v[8:11], s[{wsb}:{wsb+1}] offset:16
        s_cmp_lg_u32 s82, {OFF_DIAG + kidx*(1<<17) + 5*256}
        s_cbranch_scc1 diag_end_{_lab[0]}
        s_nop 2
        v_mov_b32 v0, {512*nlast + 16*kidx}
        v_mov_b32 v8, s100
        global_store_dwordx4 v0, v[8:11], s[80:81]
        ''')
        a.label(f'diag_end_{_lab[0]}'); _lab[0] += 1
    a.e('s_endpgm')
_lab = [0]
```

```python
from dsl import *
from common import *

XRING = 131072
XCH = XRING + 16384
XCNT = XCH + 8192
CH, CZ3, CZ1, CWT = 0, 128*128, 160*128, 168*128
SZ_FLG = 192 * 128
SC = 2.0 / (448 * 2048)
SS = ' sc0 sc1'
SLEEP = int(os.environ.get('SLEEP', '1'))
PS = os.environ.get('PS', ' sc0 sc1')

def q(b): return f'v[{b}:{b+3}]'
def d2(b): return f'v[{b}:{b+1}]'
def acc(i, t): return 128 + 16 * (i * 4 + t)

class VM:
    def __init__(self, a): self.a = a; self.ops = []; self.done = 0
    def note(self, tag):
        assert len(self.ops) - self.done < 63, 'too many outstanding'
        self.ops.append(tag)
    def issue(self, text, tag):
        self.note(tag); self.a.e(text)
    def cnt(self, tag):
        idx = max(i for i, t in enumerate(self.ops) if t == tag)
        if idx < self.done: return None
        self.done = idx + 1
        return len(self.ops) - 1 - idx
    def wait(self, tag):
        n = self.cnt(tag)
        if n is not None: self.a.e(f's_waitcnt vmcnt({n})')
    def all_done(self): self.done = len(self.ops)
    def outstanding(self): return len(self.ops) - self.done
    def copy(self):
        v = VM(self.a); v.ops = list(self.ops); v.done = self.done; return v

def m2(a, i, ph):
    if DIAG == ph: mark(a, i)

def poll(a, tag, vaddr, vd, vexp, vm=None):
    a.e('s_mov_b32 s77, 40000')
    a.label(f'{tag}_pl'); a.fence()
    a.e(f'''
    buffer_load_dword v{vd}, v{vaddr}, s[40:43], 0 offen sc1
    s_waitcnt vmcnt(0)
    v_cmp_ne_u32 vcc, {vexp}, v{vd}
    s_nop 1
    s_cbranch_vccz {tag}_ok
    s_sub_u32 s77, s77, 1
    s_cbranch_scc1 {tag}_ok
    s_sleep {SLEEP}
    s_branch {tag}_pl
    ''')
    a.label(f'{tag}_ok'); a.fence()
    if vm: vm.all_done()

def tag_issue(vm, vd, vz):
    vm.issue(f'buffer_load_dword v{vd}, v{vz}, s[52:55], 0 offen sc1', 'tag')

def tag_check(a, vm, tag, vd, vz):
    vm.wait('tag')
    a.e('s_mov_b32 s77, 40000')
    a.label(f'{tag}_tl'); a.fence()
    a.e(f'''
    v_readfirstlane_b32 s78, v{vd}
    s_cmp_lg_u32 s78, 0
    s_cbranch_scc1 {tag}_tok
    s_sub_u32 s77, s77, 1
    s_cbranch_scc1 {tag}_tok
    buffer_load_dword v{vd}, v{vz}, s[52:55], 0 offen sc1
    s_waitcnt vmcnt(0)
    s_branch {tag}_tl
    ''')
    a.label(f'{tag}_tok'); a.fence()

def flag_store(a, vm, soff, vt):
    a.e(f'''
    v_mov_b32 v{vt}, 1
    v_lshlrev_b32 v{vt+1}, 20, v0
    ''')
    t = f'buffer_atomic_add v{vt}, v{vt+1}, s[40:43], {soff} offen sc1'
    if vm: vm.issue(t, 'flag')
    else: a.e(t)

def zero_counters(a, t):
    a.e(f'''
    v_lshlrev_b32 v{t}, 7, v0
    v_mov_b32 v{t+1}, 0
    s_mov_b32 s77, 8192
    s_mov_b32 s78, 16384
    buffer_store_dword v{t+1}, v{t}, s[40:43], 0 offen{SS}
    buffer_store_dword v{t+1}, v{t}, s[40:43], s77 offen{SS}
    buffer_store_dword v{t+1}, v{t}, s[40:43], s78 offen{SS}
    s_waitcnt vmcnt(0)
    v_mov_b32 v{t+1}, 1
    buffer_store_dword v{t+1}, v{t}, s[52:55], 0 offen{SS}
    ''')

STAT_STEPS = [
    'v_mul_f32 v{m}, s84, v{m}',
    'v_mul_f32 v{t}, v{m}, v{m}',
    'v_fma_f32 v{v}, v{v}, s84, -v{t}',
    'v_max_f32 v{v}, 0, v{v}',
    'v_cvt_pk_bf16_f32 v{t}, v{m}, v{v}',
    'v_lshlrev_b32 v{m}, 16, v{t}',
    'v_and_b32 v{v}, s85, v{t}',
    'v_add_f32 v{v}, 0x3727c5ac, v{v}',
    'v_cvt_pk_bf16_f32 v{v}, v{v}, v{v}',
    'v_and_b32 v{v}, s85, v{v}',
    'v_sqrt_f32 v{v}, v{v}',
    'v_cvt_pk_bf16_f32 v{v}, v{v}, v{v}',
    'v_and_b32 v{v}, s85, v{v}',
    'v_rcp_f32 v{v}, v{v}',
    'v_mul_f32 v{m}, v{m}, v{v}',
]

def norm_list(xr, ng, u, M, R, T, vw):
    valu, wr = [], []
    for g in range(ng):
        for dd in range(4):
            r = xr(g, u) + dd
            t0 = T + 2 * dd
            valu += [f'v_lshlrev_b32 v{t0}, 16, v{r}',
                     f'v_and_b32 v{t0+1}, s85, v{r}',
                     f'v_fma_f32 v{t0}, v{t0}, v{R+g}, -v{M+g}',
                     f'v_fma_f32 v{t0+1}, v{t0+1}, v{R+g}, -v{M+g}',
                     f'v_cvt_pk_bf16_f32 v{r}, v{t0}, v{t0+1}']
        valu.append(f'ds_write_b128 v{vw}, {q(xr(g,u))} offset:{(u&1)*16384 + g*128}')
    return valu

C64R, C64I, C32R, C32I, TW1, TW2 = 128, 144, 160, 176, 192, 208
XA, WV, DR, DI, ER, EI, PK = 32, 64, 72, 80, 88, 96, 104
WU = 112

def fft_consts():
    L = []
    def e(t): L.extend(x.strip() for x in t.strip().split('\n'))
    e(f'''
    v_and_b32 v22, 15, v0
    v_lshrrev_b32 v21, 4, v0
    s_lshl_b32 s67, s64, 4
    v_add_u32 v20, s67, v22
    v_cvt_f32_u32 v20, v20
    v_lshlrev_b32 v21, 2, v21
    v_cvt_f32_u32 v21, v21
    v_cvt_f32_u32 v22, v22
    v_mul_f32 v23, {fh(1/64)}, v20
    v_mul_f32 v24, v23, v21
    v_mul_f32 v25, {fh(12.0)}, v23
    ''')
    def cs(dr, di):
        e(f'''
        v_cos_f32 v26, v24
        v_sin_f32 v27, v24
        v_add_f32 v24, v24, v23
        v_cvt_pk_bf16_f32 v{dr}, v26, v27
        v_cvt_pk_bf16_f32 v{di}, -v27, v26
        ''')
    for u in range(4):
        for j in range(4): cs(C64R+4*u+j, C64I+4*u+j)
        if u < 3: e('v_add_f32 v24, v24, v25')
    for t in range(2):
        e(f'''
        v_add_f32 v23, {fh(16.0*t)}, v22
        v_mul_f32 v23, {fh(1/32)}, v23
        v_mul_f32 v24, v23, v21
        v_mul_f32 v25, {fh(12.0)}, v23
        ''')
        for u in range(2):
            for j in range(4): cs(C32R+8*t+4*u+j, C32I+8*t+4*u+j)
            if u < 1: e('v_add_f32 v24, v24, v25')
    e(f'''
    v_mul_f32 v23, {fh(1/2048)}, v20
    v_mul_f32 v24, v23, v21
    v_mul_f32 v25, {fh(12.0)}, v23
    ''')
    for t in range(2):
        for i in range(4):
            e(f'v_cos_f32 v{TW1+2*(4*t+i)}, v24\nv_sin_f32 v{TW1+2*(4*t+i)+1}, v24\nv_add_f32 v24, v24, v23')
        if t < 1: e('v_add_f32 v24, v24, v25')
    e(f'''
    v_cvt_f32_u32 v28, s67
    v_add_f32 v28, v28, v21
    ''')
    for t in range(2):
        e(f'''
        v_add_f32 v23, {fh(16.0*t)}, v22
        v_mul_f32 v23, {fh(1/2048)}, v23
        v_mul_f32 v24, v23, v28
        ''')
        for i in range(4):
            r = TW2+2*(4*t+i)
            e(f'v_cos_f32 v{r}, v24\nv_sin_f32 v{r+1}, v24\nv_add_f32 v24, v24, v23')
    for r in range(TW2, TW2+16):
        e(f'v_mul_f32 v{r}, {fh(SC)}, v{r}')
    return L

def fft_body(a):
    vm = VM(a)
    a.label('fft_body'); a.fence()
    srd(a, 44, 22, OFF_Z1, SZ_Z1)
    srd(a, 48, 22, OFF_WT, SZ_WT)
    a.e(f'''
    v_and_b32 v1, 15, v0                 ; l15
    v_lshrrev_b32 v2, 4, v0              ; q
    v_lshlrev_b32 v3, 4, v0              ; lane*16
    s_lshr_b32 s65, s62, 5
    s_lshl_b32 s65, s65, 7
    s_add_u32 s65, s65, {CZ1}
    v_mov_b32 v4, s65
    s_lshl_b32 s65, s64, 7
    s_add_u32 s65, s65, {CWT}
    v_mov_b32 v5, s65
    v_cmp_gt_u32 vcc, 32, v0
    v_cndmask_b32 v4, v5, v4, vcc
    v_cndmask_b32 v7, 32, 16, vcc
    s_mul_i32 s69, s62, {ZS1}
    s_add_u32 s70, s69, 4096
    v_lshlrev_b32 v6, 4, v1
    v_lshl_add_u32 v6, v2, 9, v6         ; q*512 + l15*16
    s_mul_i32 s71, s63, {WS}
    s_lshl_b32 s72, s64, 6
    s_add_u32 s71, s71, s72              ; k*8192 + w*64
    s_add_u32 s72, s71, 4096
    v_lshlrev_b32 v5, 2, v1
    v_lshl_add_u32 v5, v2, 10, v5        ; q*1024 + l15*4
    ''')
    poll(a, 'fft', 4, 8, 'v7', vm)
    m2(a, 1, 2)
    for u in range(4):
        for t in range(2):
            vm.issue(f'buffer_load_dwordx4 {q(XA+16*t+4*u)}, v6, s[44:47], s{69+(u>>1)} offen offset:{(u&1)*2048 + t*256} sc1', ('xa', u))
    for tm in range(2):
        for i in range(4):
            vm.issue(f'buffer_load_dword v{WV+4*tm+i}, v5, s[48:51], s{71+tm} offen offset:{i*256} sc1', 'wv')
    srd(a, 44, 22, OFF_Z3, SZ_Z3)
    a.e(f's_cmp_lg_u32 s62, 0\ns_cbranch_scc1 fft_nofix')
    a.e(f's_cmp_eq_u32 s63, 224\ns_cselect_b32 s68, 16, 0\ns_waitcnt vmcnt(8)')
    for r in range(XA, XA+32):
        a.e(f'v_lshrrev_b32 v{r}, s68, v{r}\nv_and_b32 v{r}, 0xffff, v{r}')
    a.e('s_nop 1')
    a.label('fft_nofix'); a.fence()
    def mm(d, A, B, first):
        c = '0' if first else q(d)
        a.e(f'v_mfma_f32_16x16x32_bf16 {q(d)}, {q(A)}, {q(B)}, {c}')
    for u in range(4):
        vm.wait(('xa', u))
        for t in range(2):
            mm(DR+4*t, XA+16*t+4*u, C64R+4*u, u == 0)
            mm(DI+4*t, XA+16*t+4*u, C64I+4*u, u == 0)
    def twiddle(R, I, TW, out):
        for t in range(2):
            for i in range(4):
                c = TW + 2*(4*t+i); s = c + 1
                r = R + 4*t + i; im = I + 4*t + i
                t0 = 8 + 2*i
                a.e(f'''
                v_mul_f32 v{t0}, v{r}, v{c}
                v_mul_f32 v{t0+1}, v{im}, v{c}
                v_fmac_f32 v{t0}, v{im}, v{s}
                v_fma_f32 v{t0+1}, -v{r}, v{s}, v{t0+1}
                v_cvt_pk_bf16_f32 v{out+4*t+i}, v{t0}, v{t0+1}
                ''')
    twiddle(DR, DI, TW1, PK)
    for t in range(2):
        for tm in range(2):
            mm(ER+4*tm, C32R+8*tm+4*t, PK+4*t, t == 0)
            mm(EI+4*tm, C32I+8*tm+4*t, PK+4*t, t == 0)
    vm.wait('wv')
    for n in range(8):
        a.e(f'v_lshlrev_b32 v{WU+n}, 16, v{WV+n}\nv_and_b32 v{WU+8+n}, 0xffff0000, v{WV+n}')
    for tm in range(2):
        for i in range(4):
            n = 4*tm + i
            xr_ = ER + n; xi = EI + n; wr = WU + n; wi = WU + 8 + n
            t0 = 8 + 2*i
            a.e(f'''
            v_mul_f32 v{t0}, v{xr_}, v{wr}
            v_mul_f32 v{t0+1}, v{xr_}, v{wi}
            v_fma_f32 v{t0}, -v{xi}, v{wi}, v{t0}
            v_fmac_f32 v{t0+1}, v{xi}, v{wr}
            v_cvt_pk_bf16_f32 v{PK+n}, v{t0}, -v{t0+1}
            ''')
    for tm in range(2):
        for tn in range(2):
            mm(DR+4*tn, PK+4*tm, C32R+8*tn+4*tm, tm == 0)
            mm(DI+4*tn, PK+4*tm, C32I+8*tn+4*tm, tm == 0)
    a.e(f'''
    s_lshl_b32 s68, s64, 11
    s_add_u32 s65, s68, {XCH}
    v_add_u32 v6, s65, v3
    v_add_u32 v7, {XCH}, v3
    v_mov_b32 v4, {XCNT}
    v_mov_b32 v5, 1
    ''')
    twiddle(DR, DI, TW2, PK)
    a.e(f'''
    ds_write_b128 v6, {q(PK)}
    ds_write_b128 v6, {q(PK+4)} offset:1024
    s_waitcnt lgkmcnt(0)
    s_mov_b64 exec, 1
    ds_add_u32 v4, v5
    s_mov_b64 exec, -1
    v_lshlrev_b32 v6, 3, v1
    v_lshl_add_u32 v6, v2, 9, v6
    s_mul_i32 s69, s62, {ZS3}
    s_add_u32 s68, s68, s69
    s_mov_b32 s77, 400000
    ''')
    a.label('fft_sp'); a.fence()
    a.e(f'''
    ds_read_b32 v5, v4
    s_waitcnt lgkmcnt(0)
    v_readfirstlane_b32 s65, v5
    s_sub_u32 s77, s77, 1
    s_cbranch_scc1 fft_spok
    s_cmp_lt_u32 s65, 4
    s_cbranch_scc1 fft_sp
    ''')
    a.label('fft_spok'); a.fence()
    for u in range(4):
        for tn in range(2):
            a.e(f'ds_read_b128 {q(XA+16*tn+4*u)}, v7 offset:{(2*u+tn)*1024}')
    for u in range(4):
        a.e(f's_waitcnt lgkmcnt({6-2*u})')
        for tn in range(2):
            mm(ER+4*tn, C64R+4*u, XA+16*tn+4*u, u == 0)
            mm(EI+4*tn, C64I+4*u, XA+16*tn+4*u, u == 0)
    for n in range(8):
        a.e(f'v_cvt_pk_bf16_f32 v{PK+n}, v{ER+n}, v{EI+n}')
    a.e(f's_cmp_lg_u32 s62, 0\ns_cbranch_scc1 fft_st32')
    a.e(f's_cmp_eq_u32 s63, 224\ns_cselect_b32 s65, 2, 0\ns_add_u32 s68, s68, s65')
    for tn in range(2):
        for i in range(4):
            a.e(f'buffer_store_short v{PK+4*tn+i}, v6, s[44:47], s68 offen offset:{(i>>1)*256 + tn*128 + (i&1)*4}{SS}')
    a.e('s_branch fft_stdone')
    a.label('fft_st32'); a.fence()
    for tn in range(2):
        for e in range(2):
            a.e(f'buffer_store_dwordx2 {d2(PK+4*tn+2*e)}, v6, s[44:47], s68 offen offset:{e*256 + tn*128}{SS}')
    a.label('fft_stdone'); a.fence()
    a.e(f'''
    s_lshl_b32 s68, s64, 10
    s_add_u32 s68, s68, s82
    ''')
    m2(a, 2, 2)

ACC2, AF, HR, GF_ = 192, 128, 16, 96
NH = 10

def wd_addr(a, vr, t0, t1):
    a.e(f'''
    v_lshrrev_b32 v{t0}, 3, v0
    v_bfe_u32 v{t1}, v0, 4, 1
    v_lshlrev_b32 v{t1}, 2, v{t1}
    v_and_b32 v{vr}, 7, v0
    v_xor_b32 v{t1}, v{t1}, v{vr}
    v_mul_u32_u24 v{vr}, 896, v{t0}
    v_lshl_add_u32 v{vr}, v{t1}, 4, v{vr}
    s_mul_i32 s74, s3, {224*896}
    s_lshl_b32 s75, s61, 7
    s_add_u32 s74, s74, s75
    s_lshl_b32 s73, s3, 14
    ''')

def gemm2(a):
    a.label('gemm2'); a.fence()
    vm = VM(a)
    a.e(f'''
    v_bfe_u32 v1, v0, 2, 2               ; r
    v_lshrrev_b32 v5, 5, v0              ; h
    v_lshl_add_u32 v2, v5, 2, v1         ; 4h + r
    v_lshlrev_b32 v2, 7, v2
    v_lshrrev_b32 v1, 1, v1
    v_lshl_add_u32 v2, v1, 6, v2
    v_bfe_u32 v1, v0, 4, 1
    v_lshl_add_u32 v2, v1, 5, v2
    v_and_b32 v1, 3, v0
    v_lshl_add_u32 v2, v1, 3, v2
    v_add_u32 v2, s73, v2
    v_xor_b32 v1, 64, v2
    ''')
    def tr(k):
        sl = k % 8
        L = []
        for b in range(2):
            for rho in range(2):
                r = AF + 8*sl + 4*b + 2*rho
                L.append(f'ds_read_b64_tr_b16 {d2(r)}, v{2-b} offset:{sl*2048 + rho*1024}')
        return L
    for k in range(8):
        for l in tr(k): a.e(l)
    srd(a, 28, 22, OFF_HF, SZ_HF)
    srd(a, 44, 22, OFF_Z3, SZ_Z3)
    srd(a, 48, 18, 0, SZ_X)
    a.e(f'''
    v_and_b32 v4, 31, v0                 ; l31
    v_lshlrev_b32 v3, 4, v0              ; lane*16
    s_mul_i32 s65, s3, 14
    s_mul_i32 s69, s60, 224
    s_add_u32 s69, s69, s65
    s_lshl_b32 s69, s69, 10
    s_add_u32 s70, s69, 114688
    s_lshr_b32 s65, s60, 1
    s_lshl_b32 s65, s65, 10
    s_lshl_b32 s66, s3, 7
    s_add_u32 s65, s65, s66
    v_mov_b32 v6, s65
    s_waitcnt lgkmcnt(0)
    ''')
    for i in range(16, 28):
        a.e(f's_add_u32 s75, s74, {i*7168}\ns_add_u32 m0, s73, {(i-16)*1024}')
        vm.issue(f'buffer_load_dwordx4 v29, s[36:39], s75 offen lds', ('wd', i // 2))
    vm.wait('own')
    flag_store(a, vm, 's68', 8)
    m2(a, 3, 2)
    a.e(f'''
    s_lshr_b32 s65, s3, 1
    s_mul_i32 s65, s65, 7
    s_and_b32 s66, s3, 1
    s_lshl_b32 s67, s66, 2
    s_add_u32 s65, s65, s67              ; zs
    s_lshl_b32 s67, s65, 3               ; 8 zs
    v_lshlrev_b32 v8, 2, v5
    v_add_u32 v8, s67, v8                ; p0
    v_cmp_eq_u32 s[80:81], 0, v8
    v_cvt_f32_u32 v8, v8
    s_lshl_b32 s71, s61, 6
    v_add_u32 v9, s71, v4                ; d (b=0)
    v_lshlrev_b32 v12, 31, v9
    v_xor_b32 v12, 0.5, v12              ; +-0.5
    v_cvt_f32_u32 v9, v9
    ''')
    for b in range(2):
        if b: a.e(f'v_add_f32 v9, {fh(32.0)}, v9')
        a.e(f'''
        v_mul_f32 v10, {fh(1/448)}, v9       ; step
        ''')
        for z in range(4):
            a.e(f'v_add_f32 v11, {fh(8.0*z)}, v8\nv_mul_f32 v11, v11, v10')
            for j in range(4):
                a.e(f'''
                v_cos_f32 v14, v11
                v_sin_f32 v15, v11
                v_add_f32 v11, v11, v10
                ''')
                if z == 0 and j == 0:
                    a.e(f'''
                    v_cndmask_b32 v14, v14, 0.5, s[80:81]
                    v_cndmask_b32 v15, v15, v12, s[80:81]
                    ''')
                a.e(f'v_cvt_pk_bf16_f32 v{GF_+8*z+4*b+j}, v14, v15')
    a.e(f'''
    s_lshl_b32 s71, s66, 3
    s_sub_u32 s83, 32, s71
    s_cmp_eq_u32 s3, 0
    s_addc_u32 s83, s83, 0
    s_lshr_b32 s71, s60, 3
    s_lshl_b32 s71, s71, 10
    s_lshl_b32 s72, s3, 7
    s_add_u32 s71, s71, s72
    s_add_u32 s71, s71, {CZ3}
    v_mov_b32 v7, s71
    ; z3 voffsets v8..v11 = (4h + j)*8192 + l31*8
    v_mul_u32_u24 v8, {4*ZS3}, v5
    v_lshl_add_u32 v8, v4, 3, v8
    v_add_u32 v9, {ZS3}, v8
    v_add_u32 v10, {2*ZS3}, v8
    v_add_u32 v11, {3*ZS3}, v8
    s_mul_i32 s71, s65, {8*ZS3}
    s_lshl_b32 s72, s60, 8
    s_add_u32 s71, s71, s72              ; z3 base
    s_lshl_b32 s72, s66, 30
    ''')
    poll(a, 'g2h', 6, 14, 7, vm)
    m2(a, 4, 2)
    def hload(k):
        r = HR + 8 * (k % NH)
        o = (k & 3) * 1024
        vm.issue(f'buffer_load_dwordx4 {q(r)}, v3, s[28:31], s69 offen offset:{o} sc1', ('h', k))
        vm.issue(f'buffer_load_dwordx4 {q(r+4)}, v3, s[28:31], s70 offen offset:{o} sc1', ('h', k))
        if (k & 3) == 3: a.e('s_add_u32 s69, s69, 4096\ns_add_u32 s70, s70, 4096')
    for k in range(NH): hload(k)
    a.e(f'''
    s_lshr_b32 s65, s3, 1
    s_and_b32 s67, s65, 1                ; aa
    s_lshl_b32 s76, s60, 1
    s_add_u32 s76, s76, s67
    s_mul_i32 s76, s76, {32*896}
    s_lshr_b32 s67, s65, 1               ; b
    s_lshl_b32 s75, s61, 1
    s_add_u32 s75, s75, s67
    s_lshl_b32 s75, s75, 6
    s_add_u32 s76, s76, s75
    s_lshl_b32 s75, s66, 5
    s_add_u32 s76, s76, s75
    v_mul_u32_u24 v12, 896, v4
    v_lshl_add_u32 v6, v5, 3, v12
    v_lshl_add_u32 v12, v5, 4, v12
    ''')
    def mf(A, B, first):
        for aa in range(2):
            for b in range(2):
                d = ACC2 + 16 * (2*b + aa)
                c = '0' if first else f'v[{d}:{d+15}]'
                a.e(f'v_mfma_f32_32x32x16_bf16 v[{d}:{d+15}], {q(A+4*b)}, {q(B+4*aa)}, {c}')
    ZL = HR + 8 * 4
    for k in range(14):
        vm.wait(('h', k))
        if k >= 8: a.e(f's_waitcnt lgkmcnt({4*min(3, 13-k)})' if k < 13 else 's_waitcnt lgkmcnt(0)')
        mf(AF + 8*(k % 8), HR + 8*(k % NH), k == 0)
        if k + NH < 14: hload(k + NH)
        if k + 8 < 14 and k < 2:
            pass
        if 4 <= k < 10:
            for l in tr(k + 4): a.e(l)
        if k == 3:
            vm.issue(f'buffer_load_dword v14, v7, s[40:43], 0 offen sc1', 'zp')
        if k == Z3_AT:
            vm.wait('zp')
            a.e(f'''
            v_cmp_ne_u32 vcc, s83, v14
            s_nop 1
            s_cbranch_vccz g2z_ok
            ''')
            poll(a, 'g2z', 7, 14, 's83')
            for z in range(4):
                a.e(f's_add_u32 s75, s71, {z*8*ZS3}' + ('\ns_add_u32 s75, s75, s72' if z == 3 else ''))
                for j in range(4):
                    vm.issue(f'buffer_load_dwordx2 {d2(ZL+8*z+2*j)}, v{8+j}, s[44:47], s75 offen sc1', ('z', z))
            for g in range(2):
                vm.issue(f'buffer_load_dwordx2 {d2(AF+48+2*g)}, v6, s[24:27], s76 offen offset:{16*g}', 'xres')
    ZF = HR + 8 * 8
    for z in range(4):
        vm.wait(('z', z))
        zf = ZF + 8 * (z & 1)
        for j in range(4):
            for aa in range(2):
                a.e(f'v_mov_b32 v{zf+4*aa+j}, v{ZL+8*z+2*j+aa}')
        mf(GF_ + 8*z, zf, False)
    m2(a, 1, 3)
    a.e(f'''
    v_add_u32 v1, s73, v3
    s_lshl_b32 s75, s3, 11
    v_add_u32 v2, s75, v3
    v_add_u32 v7, 0x10000, v2
    ''')
    for tl in range(4):
        for c in range(4):
            a.e(f'ds_write_b128 v1, {q(ACC2+16*tl+4*c)} offset:{tl*4096 + c*1024}')
    vm.wait('xres')
    for g in range(2):
        for c in range(2):
            a.e(f'v_lshlrev_b32 v{96+4*g+2*c}, 16, v{AF+48+2*g+c}\nv_and_b32 v{96+4*g+2*c+1}, 0xffff0000, v{AF+48+2*g+c}')
    a.e('s_waitcnt lgkmcnt(0)\ns_barrier')
    m2(a, 2, 3)
    for sw in range(8):
        for c in range(2):
            a.e(f'ds_read_b128 {q(16+8*sw+4*c)}, v{2 if sw < 4 else 7} offset:{(sw&3)*16384 + c*1024}')
    for sw in range(8):
        a.e(f's_waitcnt lgkmcnt({14-2*sw})')
        for r in range(8):
            a.e(f'v_add_f32 v{96+r}, v{96+r}, v{16+8*sw+r}')
    for g in range(2):
        for c in range(2):
            a.e(f'v_cvt_pk_bf16_f32 v{112+2*g+c}, v{96+4*g+2*c}, v{96+4*g+2*c+1}')
    for c in range(2):
        a.e(f'v_permlane32_swap_b32 v{112+c}, v{114+c}')
    a.e(f'buffer_store_dwordx4 {q(112)}, v12, s[48:51], s76 offen')
    endpgm(a, 0, 22)

Z3_AT = 8

def xbases(a):
    a.e(f'''
    v_and_b32 v1, 31, v0                 ; l31
    v_lshrrev_b32 v3, 5, v0              ; h
    ''')
    for ksl in range(4):
        a.e(f'''
        v_add_u32 v9, {2*ksl}, v3
        v_xor_b32 v9, v9, v1
        v_lshlrev_b32 v9, 4, v9
        v_lshl_add_u32 v9, v3, 9, v9
        v_add_u32 v{4+ksl}, {XRING + ksl*4096}, v9
        ''')

def main_loop(a, dft, extras, pre_barrier):
    def reads(k):
        buf = k & 1; ksl = k & 3; u = k >> 2
        XB = [f'ds_read_b128 {q(48+16*buf+4*t)}, v{4+ksl} offset:{(u&1)*16384 + t*1024}' for t in range(4)]
        if dft: return XB
        c = k >> 1; slot = c % 8; kk = k & 1
        WA = []
        for i in range(2):
            for rho in range(2):
                d = 32 + 8*buf + 4*i + 2*rho
                off = (slot & 3)*16384 + i*8192 + kk*4096 + rho*1024
                WA.append(f'ds_read_b64_tr_b16 {d2(d)}, v{2 if slot < 4 else 10} offset:{off}')
        return [WA[0], WA[1], XB[0], WA[2], WA[3], XB[1], XB[2], XB[3]]
    def gen(k):
        L = []
        buf = k & 1
        cur, prv = (80, 96) if (k & 1) == 1 else (96, 80)
        for i in range(2):
            for j in range(8):
                L.append(f'v_fma_f32 v{prv+8*i+j}, v{112+i}, v{cur+8*i+j}, -v{prv+8*i+j}')
            for jj in range(4):
                L.append(f'v_cvt_pk_bf16_f32 v{32+8*buf+4*i+jj}, v{prv+8*i+2*jj}, v{prv+8*i+2*jj+1}')
        return L
    def mfmas(k):
        buf = k & 1
        return [f'v_mfma_f32_32x32x16_bf16 v[{acc(i,t)}:{acc(i,t)+15}], {q(32+8*buf+4*i)}, {q(48+16*buf+4*t)}, ' + ('0' if k == 0 else f'v[{acc(i,t)}:{acc(i,t)+15}]')
                for t in range(4) for i in range(2)]
    def emit(x):
        if callable(x): x()
        else: a.e(x)
    a.e(f's_waitcnt lgkmcnt(0){pre_barrier(0)}')
    m2(a, 1, 1)
    a.e('s_barrier')
    m2(a, 2, 1)
    for l in reads(0): a.e(l)
    for k in range(28):
        M = mfmas(k)
        if k & 1:
            a.e(f's_waitcnt lgkmcnt(0){pre_barrier((k+1)//2)}')
            a.e(M[0]); M = M[1:]
            a.e('s_barrier')
        else:
            a.e('s_waitcnt lgkmcnt(0)')
        fill = (reads(k+1) if k < 27 else []) + (gen(k+1) if dft and k < 27 else []) + extras.get(k, [])
        per = max(2, -(-len(fill) // 8))
        if k & 1:
            seq = fill[:per] + interleave(M, fill[per:], 0, per)
        else:
            seq = interleave(M, fill, 0, per)
        for l in seq: emit(l)
    m2(a, 3, 1)

def spread(extras, L, k0, k1):
    n = k1 - k0 + 1
    per = -(-len(L) // n)
    for i in range(n):
        extras.setdefault(k0 + i, []).extend(L[i*per:(i+1)*per])

def gu(a):
    vm = VM(a)
    def xr(g, u): return (64 if u == 0 else 80 + 8*(u-1)) + 4*g
    a.e(f'''
    s_lshl_b32 s65, s59, 3
    s_add_u32 s65, s65, s3
    s_mul_i32 s65, s65, {16*896}
    s_add_u32 s66, s65, 7168
    s_lshl_b32 s69, s58, 8               ; ct*256
    s_sub_u32 s70, {SZ_WG}, s69
    s_mul_i32 s68, s3, 14336
    s_lshl_b32 s71, s3, 10
    v_lshrrev_b32 v5, 4, v0
    v_lshlrev_b32 v6, 2, v5
    v_and_b32 v7, 15, v0
    v_xor_b32 v6, v6, v7
    v_mul_u32_u24 v11, 3584, v5
    v_lshl_add_u32 v11, v6, 4, v11
    s_waitcnt lgkmcnt(0)
    ''')
    srd(a, 24, 4, 0, SZ_X)
    for g in range(2):
        for c in range(7):
            vm.issue(f'buffer_load_dwordx4 {q(xr(g,c))}, v1, s[24:27], s{65+g} offen offset:{c*128}', ('x', g, c))
    srd(a, 28, 12, 's69', 's70')
    srd(a, 32, 14, 's69', 's70')
    def dma1(c):
        a.e(f's_add_u32 s69, s68, {c*114688}')
        for mat in range(2):
            a.e(f's_add_u32 m0, s71, {c*16384 + mat*8192}')
            vm.issue(f'buffer_load_dwordx4 v11, s[{28+4*mat}:{31+4*mat}], s69 offen lds', ('w', c))
    dma1(0); dma1(1)
    srd(a, 52, 20, 0, 4)
    srd(a, 36, 16, 0, SZ_WG)
    srd(a, 40, 22, OFF_FL, SZ_FLG)
    a.e(f'''
    v_mov_b32 v9, 0x3f803f80
    v_mov_b32 v16, 0
    v_mov_b32 v17, 0
    v_mov_b32 v18, 0
    v_mov_b32 v19, 0
    s_mov_b32 s84, {fh(1.0/448)}
    s_mov_b32 s85, 0xffff0000
    v_lshrrev_b32 v5, 1, v4
    v_lshlrev_b32 v8, 12, v5
    v_and_b32 v5, 1, v4
    v_lshl_add_u32 v8, v5, 9, v8
    v_xor_b32 v5, v3, v4
    v_lshl_add_u32 v8, v5, 4, v8
    s_lshr_b32 s69, s3, 1
    s_lshl_b32 s69, s69, 10
    s_and_b32 s70, s3, 1
    s_lshl_b32 s70, s70, 8
    s_add_u32 s69, s69, s70
    s_add_u32 s69, s69, {XRING}
    v_add_u32 v8, s69, v8
    ''')
    wd_addr(a, 29, 5, 6)
    n = 0; nc = 2
    for g in range(2):
        for c in range(7):
            vm.wait(('x', g, c))
            for dd in range(4):
                r = xr(g, c) + dd
                a.e(f'v_dot2c_f32_bf16 v{16+g}, v{r}, v9\nv_dot2c_f32_bf16 v{18+g}, v{r}, v{r}')
            n += 1
            if n % 2 == 0 and nc < PRE_DMA: dma1(nc); nc += 1
    for mod in ('quad_perm:[1,0,3,2]', 'quad_perm:[2,3,0,1]', 'row_half_mirror'):
        for r in range(16, 20):
            a.e(f'v_add_f32_dpp v{r}, v{r}, v{r} {mod} row_mask:0xf bank_mask:0xf')
    for st in STAT_STEPS:
        for g in range(2):
            a.e(st.format(m=16+g, v=18+g, t=20+g))
    NL = lambda u: norm_list(xr, 2, u, 16, 18, 20, 8)
    for l in NL(0): a.e(l)
    a.e('v_mov_b32 v12, 0')
    a.e(f'''
    s_mul_i32 s68, s64, 28672
    s_lshl_b32 s71, s64, 11
    ''')
    def dma2(c, vm):
        L = []
        slot = c % 8
        for e in range(2):
            for mat in range(2):
                def f(e=e, mat=mat):
                    if mat == 0: a.e(f's_add_u32 s69, s68, {c*114688 + e*14336}')
                    a.e(f's_add_u32 m0, s71, {slot*16384 + mat*8192 + e*1024}')
                    vm.issue(f'buffer_load_dwordx4 v11, s[{28+4*mat}:{31+4*mat}], s69 offen lds', ('w', c))
                L.append(f)
        return L
    tag_issue(vm, 14, 12)
    a.e('s_cmp_ge_u32 s3, 4\ns_cbranch_scc1 gu_helper')
    vmh = vm.copy()
    for c in range(2, CDMA):
        for f in dma2(c, vm): f()
    xbases(a)
    a.e(f'''
    v_bfe_u32 v9, v0, 2, 2               ; r
    v_lshl_add_u32 v10, v3, 3, v9        ; 8h + r
    v_lshlrev_b32 v2, 8, v10
    v_xor_b32 v9, s64, v9
    v_lshl_add_u32 v2, v9, 6, v2
    v_bfe_u32 v9, v0, 4, 1
    v_lshl_add_u32 v2, v9, 5, v2
    v_and_b32 v9, 3, v0
    v_lshl_add_u32 v2, v9, 3, v2
    v_add_u32 v10, 0x10000, v2
    ''')
    extras = {}
    for u in range(1, 7):
        spread(extras, NL(u), max(0, 4*u-5), 4*u-2)
    def stage(i):
        def f():
            a.e(f's_add_u32 s75, s74, {i*7168}')
            vm.issue(f'buffer_load_dwordx4 {q(80+4*i)}, v29, s[36:39], s75 offen', ('st', i))
        return f
    for i in range(12):
        extras.setdefault(15 + i, []).append(stage(i))
    def preb(c):
        if c < CDMA:
            n = vm.cnt(('w', c))
            if n is not None: return f' vmcnt({n})'
        return ''
    main_loop(a, False, extras, preb)
    for i in range(12, 16):
        a.e(f's_add_u32 s75, s74, {i*7168}\ns_add_u32 m0, s73, {i*1024}')
        vm.issue(f'buffer_load_dwordx4 v29, s[36:39], s75 offen lds', 'wd67')
    srd(a, 28, 22, OFF_HF, SZ_HF)
    a.e(f'''
    s_mul_i32 s65, s59, {4*112}
    s_lshl_b32 s66, s58, 3
    s_add_u32 s65, s65, s66
    s_lshl_b32 s66, s64, 1
    s_add_u32 s65, s65, s66
    s_lshl_b32 s65, s65, 10
    v_lshlrev_b32 v1, 4, v0
    v_add_u32 v2, s73, v1
    s_lshl_b32 s66, s58, 2
    s_add_u32 s66, s66, s64
    s_mul_i32 s66, s66, 37
    s_lshr_b32 s66, s66, 8
    s_lshl_b32 s66, s66, 7
    s_lshl_b32 s68, s59, 10
    s_add_u32 s68, s68, s66
    ''')
    n = 0
    for t in range(4):
        for jp in range(2):
            o = 32 + 4 * n; n += 1
            for dd in range(4):
                g0 = acc(0, t) + 8*jp + 2*dd; u0 = acc(1, t) + 8*jp + 2*dd
                a.e(f'''
                v_max_f32 v{g0}, 0, v{g0}
                v_max_f32 v{g0+1}, 0, v{g0+1}
                v_mul_f32 v{g0}, v{g0}, v{u0}
                v_mul_f32 v{g0+1}, v{g0+1}, v{u0+1}
                v_cvt_pk_bf16_f32 v{o+dd}, v{g0}, v{g0+1}
                ''')
            vm.issue(f'buffer_store_dwordx4 {q(o)}, v1, s[28:31], s65 offen offset:{jp*1024}{SS}', 'hst')
        if t < 3: a.e(f's_add_u32 s65, s65, {112*1024}')
    m2(a, 4, 1)
    m2(a, 1, 2)
    vm.wait(('st', 11))
    for i in range(12):
        a.e(f'ds_write_b128 v2, {q(80+4*i)} offset:{i*1024}')
    tag_check(a, vm, 'guc', 14, 12)
    vm.wait('wd67')
    a.e('s_waitcnt lgkmcnt(0)')
    m2(a, 2, 2)
    a.e('s_branch gemm2')
    a.label('gu_helper'); a.fence()
    vm = vmh
    STG = [32+4*i for i in range(8)] + [224+4*i for i in range(8)]
    def stageh(i):
        def f():
            a.e(f's_add_u32 s75, s74, {i*7168}')
            vm.issue(f'buffer_load_dwordx4 {q(STG[i])}, v29, s[36:39], s75 offen', ('st', i))
        return f
    NLh = lambda u: norm_list(xr, 2, u, 16, 18, 72, 8)
    K = fft_consts()
    kper = -(-len(K) // len(KSCHED))
    for c in range(15):
        n = vm.cnt(('w', c)) if c <= 13 and not 2 <= c < CDMA else None
        a.e('s_waitcnt lgkmcnt(0)' + (f' vmcnt({n})' if n is not None else ''))
        if c == 0: m2(a, 1, 1)
        a.e('s_barrier')
        if c == 0: m2(a, 2, 1)
        work = []
        if c == 0: work += NLh(1)
        for cc in HSCHED.get(c, []): work += dma2(cc, vm)
        if c >= 2 and c % 2 == 0 and c // 2 + 1 <= 6: work += NLh(c // 2 + 1)
        if 7 <= c <= 10: work += [stageh(i) for i in range(4*(c-7), 4*(c-7)+4)]
        if c in KSCHED: work += K[KSCHED.index(c)*kper:(KSCHED.index(c)+1)*kper]
        if c == 12: work += [f'v_mov_b32 v30, {XCNT}', 'v_mov_b32 v31, 0', 'ds_write_b32 v30, v31']
        for w in work:
            if callable(w): w()
            else: a.e(w)
    m2(a, 3, 1)
    a.e('v_lshlrev_b32 v2, 4, v0\nv_add_u32 v2, s73, v2')
    vm.wait(('st', 15))
    for i in range(16):
        a.e(f'ds_write_b128 v2, {q(STG[i])} offset:{i*1024}')
    tag_check(a, vm, 'guh', 14, 12)
    m2(a, 4, 1)
    a.e('s_mov_b32 s76, 0')
    fft_body(a)
    a.e('s_cmp_eq_u32 s76, 0\ns_cbranch_scc1 gemm2')
    a.e('s_waitcnt vmcnt(0)')
    flag_store(a, None, 's68', 8)
    endpgm(a, 0, 22)

PRE_DMA = 2
CDMA = 5
HSCHED = {0: [5], 1: [6, 7], 2: [8], 3: [9, 10], 4: [11], 5: [12], 6: [13]}
KSCHED = [5, 7, 8, 9, 10, 11, 12, 13]

def dft(a):
    a.label('dft_wg'); a.fence()
    a.e(f'''
    s_sub_u32 s57, s57, 28
    s_lshr_b32 s59, s56, 1
    s_lshl_b32 s59, s59, 1
    s_and_b32 s65, s56, 1
    s_lshl_b32 s65, s65, 3
    s_add_u32 s59, s59, s65
    s_lshr_b32 s65, s57, 1
    s_add_u32 s59, s59, s65              ; rb
    s_and_b32 s58, s57, 1                ; half
    s_lshl_b32 s60, s56, 2
    s_add_u32 s60, s60, s57              ; di
    s_cmp_ge_u32 s3, 4
    s_cbranch_scc1 dft_helper
    ''')
    vm = VM(a)
    a.e(f'''
    s_lshl_b32 s72, s60, 2
    s_add_u32 s72, s72, s64              ; wi
    s_mul_i32 s68, s72, 7200
    s_add_u32 s69, s68, 4096
    s_lshl_b32 s71, s64, 14
    v_lshlrev_b32 v2, 4, v0
    s_waitcnt lgkmcnt(0)
    ''')
    srd(a, 28, 6, 0, SZ_WR)
    srd(a, 32, 8, 0, SZ_WR)
    for mat in range(2):
        for hh in range(2):
            a.e(f's_add_u32 m0, s71, {mat*8192 + hh*4096}')
            for n in range(4):
                vm.issue(f'buffer_load_dwordx4 v2, s[{28+4*mat}:{31+4*mat}], s{68+hh} offen offset:{n*1024} lds', 'ja')
    srd(a, 40, 22, OFF_FL, SZ_FLG)
    srd(a, 44, 22, OFF_Z1, SZ_Z1)
    srd(a, 48, 22, OFF_WT, SZ_WT)
    srd(a, 52, 20, 0, 4)
    a.e('s_cmp_lg_u32 s72, 0\ns_cbranch_scc1 dft_nz')
    zero_counters(a, 8)
    a.label('dft_nz'); a.fence()
    xbases(a)
    a.e(f'''
    s_lshl_b32 s65, s58, 3
    s_lshl_b32 s66, s64, 1
    s_add_u32 s65, s65, s66              ; mt0
    s_lshl_b32 s66, s65, 4
    v_lshrrev_b32 v8, 1, v1
    v_add_u32 v8, s66, v8                ; p (i=0)
    v_and_b32 v9, 1, v1                  ; c
    v_cvt_f32_u32 v10, v9
    v_mul_f32 v10, 0x3e800000, v10       ; phase = c/4
    v_lshlrev_b32 v11, 3, v3
    v_cvt_f32_u32 v11, v11               ; 8h
    s_mov_b32 s84, {fh(1.0/448)}
    ''')
    for i in range(2):
        if i == 0:
            a.e(f'''
            v_cmp_eq_u32 vcc, 1, v1
            v_cmp_eq_u32 s[80:81], 0, v8
            s_and_b64 vcc, vcc, s[80:81]
            v_mov_b32 v14, 224
            v_cndmask_b32 v12, v8, v14, vcc
            v_cvt_f32_u32 v12, v12
            v_cndmask_b32 v13, v10, 0, vcc
            ''')
        else:
            a.e(f'''
            v_add_u32 v12, 16, v8
            v_cvt_f32_u32 v12, v12
            v_mov_b32 v13, v10
            ''')
        a.e(f'''
        v_mul_f32 v14, v12, v11
        v_mul_f32 v15, 0x41800000, v12
        v_mul_f32 v16, s84, v15
        v_cos_f32 v16, v16
        v_add_f32 v{112+i}, v16, v16
        v_sub_f32 v15, v14, v15
        ''')
        for j in range(8):
            P = 80 + 8*i + j; Q = 96 + 8*i + j
            a.e(f'''
            v_fma_f32 v{P}, v14, s84, v13
            v_fma_f32 v{Q}, v15, s84, v13
            v_cos_f32 v{P}, v{P}
            v_cos_f32 v{Q}, v{Q}
            v_add_f32 v14, v14, v12
            v_add_f32 v15, v15, v12
            ''')
    for i in range(2):
        for jj in range(4):
            a.e(f'v_cvt_pk_bf16_f32 v{32+4*i+jj}, v{80+8*i+2*jj}, v{80+8*i+2*jj+1}')
    a.e(f'''
    v_and_b32 v8, 3, v0                  ; c
    v_lshrrev_b32 v9, 2, v0              ; kl
    v_mul_u32_u24 v10, 1800, v8
    v_lshl_add_u32 v10, v9, 1, v10
    v_add_u32 v10, s71, v10
    v_mul_u32_u24 v11, {WS}, v9
    v_lshl_add_u32 v11, v8, 4, v11
    s_lshl_b32 s73, s72, 6
    v_mov_b32 v12, 0
    ''')
    tag_issue(vm, 14, 12)
    vm.wait('ja')
    def ja_rd(it):
        o = 128 + 8 * it
        for j in range(4):
            a.e(f'ds_read_u16 v{o+j}, v10 offset:{j*450 + 32*it}')
            a.e(f'ds_read_u16 v{o+4+j}, v10 offset:{8192 + j*450 + 32*it}')
    ja_rd(0)
    for it in range(15):
        o = 128 + 8 * it
        if it + 1 < 15:
            ja_rd(it + 1); a.e('s_waitcnt lgkmcnt(8)')
        else: a.e('s_waitcnt lgkmcnt(0)')
        a.e(f's_add_u32 s74, s73, {it*16*WS}')
        for j in range(4):
            a.e(f'v_lshl_or_b32 v{o+j}, v{o+4+j}, 16, v{o+j}')
        vm.issue(f'buffer_store_dwordx4 {q(o)}, v11, s[48:51], s74 offen{SS}', 'wt')
    tag_check(a, vm, 'dfc', 14, 12)
    a.e(f's_lshl_b32 s68, s64, 7\ns_add_u32 s68, s68, {CWT}')
    def wtflag():
        vm.wait('wt'); flag_store(a, vm, 's68', 8)
    extras = {4: [wtflag]}
    a.e('s_nop 1')
    main_loop(a, True, extras, lambda c: '')
    a.e(f'''
    s_mul_i32 s66, s65, {16*ZS1}
    s_lshl_b32 s67, s59, 9
    s_add_u32 s66, s66, s67
    v_mul_u32_u24 v3, {2*ZS1}, v3
    v_lshl_add_u32 v1, v1, 4, v3
    s_lshl_b32 s68, s65, 6
    s_add_u32 s68, s68, {CZ1}
    ''')
    n = 0
    for i in range(2):
        for aa in range(8):
            o = 32 + 4 * n; n += 1
            for t in range(4):
                r = acc(i, t) + 2*aa
                a.e(f'v_cvt_pk_bf16_f32 v{o+t}, v{r}, v{r+1}')
            a.e(f's_add_u32 s67, s66, {(16*i + 4*(aa>>1) + (aa&1)) * ZS1}')
            a.e(f'buffer_store_dwordx4 {q(o)}, v1, s[44:47], s67 offen{SS}')
    m2(a, 4, 1)
    a.e('s_waitcnt vmcnt(0)')
    flag_store(a, None, 's68', 8)
    endpgm(a, 0, 22)
    a.label('dft_helper'); a.fence()
    vm = VM(a)
    def xr(g, c): return 128 + (g * 7 + c) * 4
    a.e(f'''
    s_lshl_b32 s65, s59, 2
    s_add_u32 s65, s65, s64
    s_mul_i32 s65, s65, {32*896}
    s_add_u32 s66, s65, 7168
    s_add_u32 s67, s65, {2*7168}
    s_add_u32 s68, s65, {3*7168}
    s_waitcnt lgkmcnt(0)
    ''')
    srd(a, 24, 4, 0, SZ_X)
    for g in range(4):
        for c in range(7):
            vm.issue(f'buffer_load_dwordx4 {q(xr(g,c))}, v1, s[24:27], s{65+g} offen offset:{c*128}', ('x', g, c))
    a.e(f'''
    v_mov_b32 v9, 0x3f803f80
    s_mov_b32 s84, {fh(1.0/448)}
    s_mov_b32 s85, 0xffff0000
    v_lshrrev_b32 v5, 1, v4
    v_lshlrev_b32 v8, 12, v5
    v_and_b32 v5, 1, v4
    v_lshl_add_u32 v8, v5, 9, v8
    v_xor_b32 v5, v3, v4
    v_lshl_add_u32 v8, v5, 4, v8
    s_lshl_b32 s69, s64, 10
    s_add_u32 s69, s69, {XRING}
    v_add_u32 v8, s69, v8
    ''')
    for r in range(10, 18): a.e(f'v_mov_b32 v{r}, 0')
    for g in range(4):
        for c in range(7):
            vm.wait(('x', g, c))
            for dd in range(4):
                r = xr(g, c) + dd
                a.e(f'v_dot2c_f32_bf16 v{10+g}, v{r}, v9\nv_dot2c_f32_bf16 v{14+g}, v{r}, v{r}')
    for mod in ('quad_perm:[1,0,3,2]', 'quad_perm:[2,3,0,1]', 'row_half_mirror'):
        for r in range(10, 18):
            a.e(f'v_add_f32_dpp v{r}, v{r}, v{r} {mod} row_mask:0xf bank_mask:0xf')
    for st in STAT_STEPS:
        for g in range(4):
            a.e(st.format(m=10+g, v=14+g, t=18+g))
    NL = lambda u: norm_list(xr, 4, u, 10, 14, 24, 8)
    for l in NL(0): a.e(l)
    for c in range(15):
        a.e('s_waitcnt lgkmcnt(0)')
        if c == 0: m2(a, 1, 1)
        a.e('s_barrier')
        if c == 0: m2(a, 2, 1)
        if c == 0:
            for l in NL(1): a.e(l)
        if c >= 2 and c % 2 == 0 and c // 2 + 1 <= 6:
            for l in NL(c // 2 + 1): a.e(l)
        if c == 12: a.e(f'v_mov_b32 v30, {XCNT}\nv_mov_b32 v31, 0\nds_write_b32 v30, v31')
    m2(a, 3, 1)
    a.e('s_cmp_lg_u32 s2, 224\ns_cbranch_scc1 dft_hend')
    srd(a, 40, 22, OFF_FL, SZ_FLG)
    srd(a, 52, 20, 0, 4)
    a.e('v_mov_b32 v12, 0')
    tag_issue(vm, 14, 12)
    for l in fft_consts(): a.e(l)
    tag_check(a, vm, 'dfh', 14, 12)
    a.e(f's_mov_b32 s62, 0\ns_mov_b32 s63, 224\ns_mov_b32 s76, 1\ns_mov_b32 s82, {CZ3}\ns_branch fft_body')
    a.label('dft_hend'); a.fence()
    endpgm(a, 0, 22)

def gen_fused(a, name):
    a.raw('.p2align 8')
    a.label(name)
    a.e(f'''
    s_cmp_ge_u32 s2, 256
    s_cbranch_scc1 f_end
    ''')
    diag_start(a)
    a.e(f'''
    s_load_dwordx16 s[4:19], s[0:1], 0
    s_load_dwordx4 s[20:23], s[0:1], 64
    v_lshrrev_b32 v1, 6, v0
    v_and_b32 v0, 63, v0
    v_readfirstlane_b32 s3, v1
    v_lshrrev_b32 v3, 3, v0              ; l>>3
    v_and_b32 v4, 7, v0                  ; l&7
    v_mul_u32_u24 v1, 896, v3
    v_lshl_add_u32 v1, v4, 4, v1
    s_and_b32 s56, s2, 7
    s_lshr_b32 s57, s2, 3
    s_and_b32 s64, s3, 3
    s_cmp_ge_u32 s57, 28
    s_cbranch_scc1 dft_wg
    s_lshr_b32 s65, s56, 1
    s_mul_i32 s65, s65, 28
    s_add_u32 s65, s65, s57
    s_lshr_b32 s58, s65, 3               ; ct
    s_and_b32 s59, s65, 7
    s_and_b32 s65, s56, 1
    s_lshl_b32 s65, s65, 3
    s_add_u32 s59, s59, s65              ; rb
    s_mul_i32 s60, s57, 37
    s_lshr_b32 s60, s60, 8               ; j/7
    s_mul_i32 s61, s60, 7
    s_sub_u32 s61, s57, s61              ; dt64
    s_lshl_b32 s65, s56, 2
    s_add_u32 s60, s60, s65              ; st64
    s_mul_i32 s62, s56, 28
    s_add_u32 s62, s62, s57              ; p
    s_mov_b32 s63, s62
    s_and_b32 s65, s56, 1
    s_mul_i32 s65, s65, 28
    s_add_u32 s65, s65, s57
    s_and_b32 s82, s56, 6
    s_cmp_ge_u32 s65, 32
    s_addc_u32 s82, s82, 0
    s_lshl_b32 s82, s82, 7
    s_add_u32 s82, s82, {CZ3}
    ''')
    gu(a)
    gemm2(a)
    dft(a)
    a.label('f_end')
    a.e('s_endpgm')
```

```python
from dsl import *
from common import *

XRING = 131072
NK = 3
UNROLL = int(os.environ.get('UNROLL', '0'))
NONORM = int(os.environ.get('NONORM', '0'))

def q(b): return f'v[{b}:{b+3}]'

def acc(i, t): return 128 + 16 * (i * 4 + t)

def compute(a, dft):
    tag = 'k1_cd' if dft else 'k1_cg'
    a.e(f'''
    v_and_b32 v1, 31, v0                 ; l31
    v_lshrrev_b32 v3, 5, v0              ; h
    ''')
    for ksl in range(4):
        a.e(f'''
        v_add_u32 v8, {2*ksl}, v3
        v_xor_b32 v8, v8, v1
        v_lshlrev_b32 v8, 4, v8
        v_lshl_add_u32 v8, v3, 9, v8
        v_add_u32 v{4+ksl}, {XRING + ksl*4096}, v8
        ''')
    if not dft:
        a.e(f'''
        v_bfe_u32 v8, v0, 2, 2               ; r
        v_lshl_add_u32 v9, v3, 3, v8         ; 8h + r
        v_lshlrev_b32 v2, 8, v9
        v_xor_b32 v8, s63, v8
        v_lshl_add_u32 v2, v8, 6, v2
        v_bfe_u32 v8, v0, 4, 1
        v_lshl_add_u32 v2, v8, 5, v2
        v_and_b32 v8, 3, v0
        v_lshl_add_u32 v2, v8, 3, v2
        ''')
    else:
        a.e(f'''
        s_lshl_b32 s64, s61, 3
        s_lshl_b32 s65, s63, 1
        s_add_u32 s64, s64, s65              ; mt0
        s_lshl_b32 s65, s64, 4               ; 16*mt0
        v_lshrrev_b32 v8, 1, v1
        v_add_u32 v8, s65, v8                ; p (i=0)
        v_and_b32 v9, 1, v1                  ; c
        v_cvt_f32_u32 v10, v9
        v_mul_f32 v10, 0x3e800000, v10       ; phase = c/4
        v_lshlrev_b32 v11, 3, v3
        v_cvt_f32_u32 v11, v11               ; 8h
        s_mov_b32 s66, {fh(1.0/448)}
        ''')
        for i in range(2):
            if i == 0:
                a.e(f'''
                v_cmp_eq_u32 vcc, 1, v1              ; l31==1
                v_cmp_eq_u32 s[68:69], 0, v8         ; p==0
                s_and_b64 vcc, vcc, s[68:69]
                v_mov_b32 v14, 224
                v_cndmask_b32 v12, v8, v14, vcc
                v_cvt_f32_u32 v12, v12
                v_cndmask_b32 v13, v10, 0, vcc
                ''')
            else:
                a.e(f'''
                v_add_u32 v12, 16, v8
                v_cvt_f32_u32 v12, v12
                v_mov_b32 v13, v10
                ''')
            a.e(f'''
            v_mul_f32 v14, v12, v11              ; freq*8h
            v_mul_f32 v15, 0x41800000, v12       ; freq*16
            v_mul_f32 v16, s66, v15
            v_cos_f32 v16, v16
            v_add_f32 v{112+i}, v16, v16         ; C2
            v_sub_f32 v15, v14, v15              ; freq*(8h-16)
            ''')
            for j in range(8):
                P = 80 + 8*i + j; Q = 96 + 8*i + j
                a.e(f'''
                v_fma_f32 v{P}, v14, s66, v13
                v_fma_f32 v{Q}, v15, s66, v13
                v_cos_f32 v{P}, v{P}
                v_cos_f32 v{Q}, v{Q}
                v_add_f32 v14, v14, v12
                v_add_f32 v15, v15, v12
                ''')
        for i in range(2):
            for jj in range(4):
                a.e(f'v_cvt_pk_bf16_f32 v{32+4*i+jj}, v{80+8*i+2*jj}, v{80+8*i+2*jj+1}')
    for r in range(128, 256):
        a.e(f'v_mov_b32 v{r}, 0')

    def reads(ksl, buf):
        L = []
        cc, kk = ksl >> 1, ksl & 1
        XB = [f'ds_read_b128 {q(48+16*buf+4*t)}, v{4+ksl} offset:{t*1024}' for t in range(4)]
        if not dft:
            WA = []
            for i in range(2):
                for rho in range(2):
                    d = 32 + 8*buf + 4*i + 2*rho
                    WA.append(f'ds_read_b64_tr_b16 v[{d}:{d+1}], v2 offset:{cc*16384 + i*8192 + kk*4096 + rho*1024}')
            L = [WA[0], WA[1], XB[0], WA[2], WA[3], XB[1], XB[2], XB[3]]
        else:
            L = XB
        return L
    def gen(ksl, buf):
        L = []
        cur, prv = (80, 96) if (ksl & 1) == 1 else (96, 80)
        for i in range(2):
            for j in range(8):
                L.append(f'v_fma_f32 v{prv+8*i+j}, v{112+i}, v{cur+8*i+j}, -v{prv+8*i+j}')
            for jj in range(4):
                L.append(f'v_cvt_pk_bf16_f32 v{32+8*buf+4*i+jj}, v{prv+8*i+2*jj}, v{prv+8*i+2*jj+1}')
        return L
    def mfmas(buf):
        return [f'v_mfma_f32_32x32x16_bf16 v[{acc(i,t)}:{acc(i,t)+15}], {q(32+8*buf+4*i)}, {q(48+16*buf+4*t)}, v[{acc(i,t)}:{acc(i,t)+15}]'
                for t in range(4) for i in range(2)]
    a.e('s_mov_b32 s70, 0')
    mark(a, 1)
    a.e('s_barrier')
    mark(a, 2)
    for l in reads(0, 0): a.e(l)
    a.e('s_nop 1')
    a.fence()
    a.label(f'{tag}_loop')
    for ksl in list(range(4)) * (7 if UNROLL else 1):
        buf = ksl & 1
        nk = (ksl + 1) & 3
        M = mfmas(buf)
        a.e('s_waitcnt lgkmcnt(0)')
        pre = []
        if ksl & 1:
            a.e(M[0]); M = M[1:]
            a.e('s_barrier')
            if ksl == 3:
                if not dft:
                    pre += ['v_add_u32 v2, 0x8000, v2', 'v_and_b32 v2, 0x1ffff, v2']
                pre += [f'v_xor_b32 v{4+k}, 0x4000, v{4+k}' for k in range(4)]
                pre += ['s_add_u32 s70, s70, 1']
        R = reads(nk, buf ^ 1)
        if not dft:
            for l in pre: a.e(l)
            seq = interleave(M, R, 0, 2) if not (ksl & 1) else R[:2] + interleave(M, R[2:], 0, 2)
        else:
            G = gen(nk, buf ^ 1)
            for l in pre: a.e(l)
            fill = R + G
            seq = interleave(M, fill, 0, 4) if not (ksl & 1) else fill[:4] + interleave(M, fill[4:], 0, 4)
        for l in seq: a.e(l)
    if not UNROLL: a.e(f's_cmp_lt_u32 s70, 7\ns_cbranch_scc1 {tag}_loop')
    a.e('s_nop 7\ns_nop 7')
    mark(a, 3)
    a.fence()
    if not dft:
        srd(a, 32, 18, OFF_HF, SZ_HF)
        a.e(f'''
        s_mul_i32 s64, s62, {4*112}
        s_lshl_b32 s65, s61, 3
        s_add_u32 s64, s64, s65
        s_lshl_b32 s65, s63, 1
        s_add_u32 s64, s64, s65
        s_lshl_b32 s64, s64, 10
        v_lshlrev_b32 v1, 4, v0
        ''')
        n = 0
        for t in range(4):
            for jp in range(2):
                o = 32 + 4 * (n % 4); n += 1
                for dd in range(4):
                    g0 = acc(0, t) + 8*jp + 2*dd; u0 = acc(1, t) + 8*jp + 2*dd
                    a.e(f'''
                    v_max_f32 v{g0}, 0, v{g0}
                    v_max_f32 v{g0+1}, 0, v{g0+1}
                    v_mul_f32 v{g0}, v{g0}, v{u0}
                    v_mul_f32 v{g0+1}, v{g0+1}, v{u0+1}
                    v_cvt_pk_bf16_f32 v{o+dd}, v{g0}, v{g0+1}
                    ''')
                a.e(f'buffer_store_dwordx4 {q(o)}, v1, s[32:35], s64 offen offset:{jp*1024}')
            if t < 3: a.e(f's_add_u32 s64, s64, {112*1024}')
    else:
        srd(a, 32, 18, OFF_Z1, SZ_Z1)
        a.e(f'''
        s_lshl_b32 s65, s64, 17              ; mt0*16*8192
        s_lshl_b32 s66, s62, 9
        s_add_u32 s65, s65, s66
        v_lshlrev_b32 v1, 4, v1
        v_lshl_add_u32 v1, v3, 14, v1
        ''')
        n = 0
        for i in range(2):
            for aa in range(8):
                o = 32 + 4 * (n % 4); n += 1
                for t in range(4):
                    r = acc(i, t) + 2*aa
                    a.e(f'v_cvt_pk_bf16_f32 v{o+t}, v{r}, v{r+1}')
                a.e(f's_add_u32 s66, s65, {(16*i + 4*(aa>>1) + (aa&1)) * 8192}')
                a.e(f'buffer_store_dwordx4 {q(o)}, v1, s[32:35], s66 offen')
    endpgm(a, 0, 18, nlast=NK-1)

XB = 128
def xr(g, c): return XB + (g * 7 + c) * 4

def helper(a, dft):
    tag = 'k1_hd' if dft else 'k1_hg'
    srd(a, 20, 4, 0, SZ_X)
    a.e(f'''
    s_lshl_b32 s64, s62, 2
    s_add_u32 s64, s64, s63
    s_mul_i32 s64, s64, {32*896}
    s_add_u32 s65, s64, 7168
    s_add_u32 s66, s64, {2*7168}
    s_add_u32 s67, s64, {3*7168}
    v_lshrrev_b32 v3, 3, v0              ; l>>3
    v_and_b32 v4, 7, v0                  ; l&7
    v_mul_u32_u24 v1, 896, v3
    v_lshl_add_u32 v1, v4, 4, v1
    ''')
    for g in range(4):
        for c in range(7):
            a.e(f'buffer_load_dwordx4 {q(xr(g,c))}, v1, s[20:23], s{64+g} offen offset:{c*128}')
    nafter = 0
    def dma_chunk(c):
        slot = c % 8
        L = []
        for e in range(2):
            L.append(f's_add_u32 s69, s68, {c*114688 + e*14336}')
            for mat in range(2):
                L.append(f's_add_u32 m0, s71, {slot*16384 + mat*8192 + e*1024}')
                L.append(f'buffer_load_dwordx4 v2, s[{24+4*mat}:{27+4*mat}], s69 offen lds')
        return L
    side = []
    if not dft:
        a.e(f'''
        s_lshl_b32 s69, s61, 8               ; ct*256
        s_sub_u32 s70, {SZ_WG}, s69
        ''')
        srd(a, 24, 12, 's69', 's70')
        srd(a, 28, 14, 's69', 's70')
        a.e(f'''
        s_mul_i32 s68, s63, 28672
        s_lshl_b32 s71, s63, 11
        v_lshrrev_b32 v5, 4, v0
        v_lshlrev_b32 v6, 2, v5
        v_and_b32 v7, 15, v0
        v_xor_b32 v6, v6, v7
        v_mul_u32_u24 v2, 3584, v5
        v_lshl_add_u32 v2, v6, 4, v2
        ''')
        for c in range(8):
            for l in dma_chunk(c): a.e(l)
        nafter = 32
    else:
        srd(a, 24, 6, 0, SZ_WR)
        srd(a, 28, 8, 0, SZ_WR)
        srd(a, 36, 16, 0, SZ_WG)
        a.e(f'''
        s_lshl_b32 s72, s60, 2
        s_add_u32 s72, s72, s63              ; wi
        s_mul_i32 s68, s72, 7200
        s_add_u32 s69, s68, 4096
        s_lshl_b32 s71, s63, 14              ; region A
        v_lshlrev_b32 v2, 4, v0
        ''')
        for mat in range(2):
            for hh in range(2):
                a.e(f's_add_u32 m0, s71, {mat*8192 + hh*4096}')
                for n in range(4):
                    a.e(f'buffer_load_dwordx4 v2, s[{24+4*mat}:{27+4*mat}], s{68+hh} offen offset:{n*1024} lds')
        a.e(f's_mul_i32 s68, s72, 14336')
        for hh in range(4):
            a.e(f's_add_u32 m0, s71, {65536 + hh*4096}')
            a.e(f's_add_u32 s69, s68, {hh*4096}')
            for n in range(4 if hh < 3 else 2):
                a.e(f'buffer_load_dwordx4 v2, s[36:39], s69 offen offset:{n*1024} lds')
        nafter = 30
        srd(a, 48, 18, OFF_GF, SZ_GF)
        srd(a, 52, 18, OFF_FL, SZ_FL)
        SC = 2.0 / (448 * 2048)
        a.e(f'''
        s_mul_i32 s73, s72, 147
        s_lshr_b32 s73, s73, 10
        s_mul_i32 s74, s73, 7
        s_sub_u32 s74, s72, s74              ; wi%7
        s_lshl_b32 s74, s74, 5               ; 8*ks0 = 32*(wi%7)
        s_lshl_b32 s73, s73, 5               ; 32 dt
        v_and_b32 v5, 31, v0
        v_add_u32 v5, s73, v5                ; d
        v_lshrrev_b32 v6, 5, v0
        v_lshlrev_b32 v6, 2, v6
        v_add_u32 v6, s74, v6                ; p0 = 8ks0 + 4h
        v_cvt_f32_u32 v7, v5                 ; d float
        v_cvt_f32_u32 v8, v6
        v_mul_f32 v8, v8, v7                 ; p0*d
        s_mov_b32 s75, {fh(1.0/448)}
        s_mov_b32 s76, {fh(SC)}
        v_lshlrev_b32 v9, 31, v5
        v_xor_b32 v9, {fh(SC/2)}, v9         ; alt_hi
        v_cmp_eq_u32 s[78:79], 0, v6
        v_mul_f32 v18, 4.0, v7
        s_lshl_b32 s77, s72, 12
        v_mov_b32 v20, 0
        v_mov_b32 v21, 0
        v_mov_b32 v22, 0
        v_mov_b32 v23, 0
        s_lshl_b32 s80, s72, 10
        buffer_store_dwordx4 v[20:23], v2, s[52:55], s80 offen
        ''')
        for n in range(4):
            o = 24 + 4 * n
            for j in range(4):
                a.e(f'''
                v_mul_f32 v10, s75, v8
                v_fract_f32 v10, v10
                v_cos_f32 v11, v10
                v_sin_f32 v12, v10
                v_add_f32 v8, v8, v7
                v_mul_f32 v11, s76, v11
                v_mul_f32 v12, s76, v12
                ''')
                if n == 0 and j == 0:
                    a.e(f'''
                    v_mov_b32 v13, {fh(SC/2)}
                    v_cndmask_b32 v11, v11, v13, s[78:79]
                    v_cndmask_b32 v12, v12, v9, s[78:79]
                    ''')
                a.e(f'v_cvt_pk_bf16_f32 v{o+j}, v11, v12')
            a.e(f'v_add_f32 v8, v8, v18')
            a.e(f'buffer_store_dwordx4 {q(o)}, v2, s[48:51], s77 offen offset:{n*1024}')
        nafter += 5
        srd(a, 40, 18, OFF_WF, SZ_WF)
        srd(a, 44, 18, OFF_WT, SZ_WT)
        a.e(f'''
        v_and_b32 v5, 3, v0                  ; c
        v_lshrrev_b32 v6, 2, v0              ; kl
        v_mul_u32_u24 v40, 1800, v5
        v_lshl_add_u32 v40, v6, 1, v40
        v_add_u32 v40, s71, v40
        v_lshlrev_b32 v41, 13, v6
        v_lshl_add_u32 v41, v5, 4, v41
        v_bfe_u32 v7, v0, 2, 2               ; r
        v_lshrrev_b32 v8, 5, v0              ; h
        v_lshl_add_u32 v7, v8, 2, v7         ; 4h + r
        v_mul_u32_u24 v42, 896, v7
        v_bfe_u32 v7, v0, 4, 1
        v_lshl_add_u32 v42, v7, 5, v42
        v_lshl_add_u32 v42, v5, 3, v42
        v_add_u32 v42, s71, v42
        v_add_u32 v42, 0x10000, v42
        s_lshl_b32 s81, s72, 6               ; wi*64
        s_lshl_b32 s82, s72, 10              ; kb*1024
        ''')
        for it in range(15):
            o = 44 + 4 * (it % 3)
            blk = []
            for j in range(4):
                blk.append(f'ds_read_u16 v{o+j}, v40 offset:{j*450 + 32*it}')
                blk.append(f'ds_read_u16 v{56+j}, v40 offset:{8192 + j*450 + 32*it}')
            blk.append(f's_add_u32 s83, s81, {it*131072}')
            blk.append('s_waitcnt lgkmcnt(0)')
            for j in range(4):
                blk.append(f'v_lshl_or_b32 v{o+j}, v{56+j}, 16, v{o+j}')
            blk.append(f'buffer_store_dwordx4 {q(o)}, v41, s[44:47], s83 offen')
            side.append(blk)
    mark(a, 1)
    a.e('v_mov_b32 v9, 0x3f803f80')
    for g in range(4):
        a.e(f'v_mov_b32 v{10+g}, 0\nv_mov_b32 v{14+g}, 0')
    for g in range(4):
        for c in range(7):
            idx = g * 7 + c
            a.e(f's_waitcnt vmcnt({27 - idx + nafter})')
            for dd in range(4):
                r = xr(g, c) + dd
                a.e(f'v_dot2c_f32_bf16 v{10+g}, v{r}, v9\nv_dot2c_f32_bf16 v{14+g}, v{r}, v{r}')
    mark(a, 2)
    for mod in ('quad_perm:[1,0,3,2]', 'quad_perm:[2,3,0,1]', 'row_half_mirror'):
        for r in range(10, 18):
            a.e(f'v_add_f32_dpp v{r}, v{r}, v{r} {mod} row_mask:0xf bank_mask:0xf')
    a.e(f's_mov_b32 s84, {fh(1.0/448)}\ns_mov_b32 s85, 0xffff0000')
    steps = [
        'v_mul_f32 v{m}, s84, v{m}',
        'v_mul_f32 v{t}, v{m}, v{m}',
        'v_fma_f32 v{v}, v{v}, s84, -v{t}',
        'v_max_f32 v{v}, 0, v{v}',
        'v_cvt_pk_bf16_f32 v{t}, v{m}, v{v}',
        'v_lshlrev_b32 v{m}, 16, v{t}',
        'v_and_b32 v{v}, s85, v{t}',
        'v_add_f32 v{v}, 0x3727c5ac, v{v}',
        'v_cvt_pk_bf16_f32 v{v}, v{v}, v{v}',
        'v_and_b32 v{v}, s85, v{v}',
        'v_sqrt_f32 v{v}, v{v}',
        'v_cvt_pk_bf16_f32 v{v}, v{v}, v{v}',
        'v_and_b32 v{v}, s85, v{v}',
        'v_rcp_f32 v{v}, v{v}',
        'v_mul_f32 v{m}, v{m}, v{v}',
    ]
    for st in steps:
        for g in range(4):
            a.e(st.format(m=10+g, v=14+g, t=18+g))
    a.e(f'''
    v_lshrrev_b32 v5, 1, v4
    v_lshlrev_b32 v8, 12, v5
    v_and_b32 v5, 1, v4
    v_lshl_add_u32 v8, v5, 9, v8
    v_xor_b32 v5, v3, v4
    v_lshl_add_u32 v8, v5, 4, v8
    s_lshl_b32 s86, s63, 10
    s_add_u32 s86, s86, {XRING}
    v_add_u32 v8, s86, v8
    ''')
    def norm(u):
        for g in range(4):
            for dd in range(4):
                r = xr(g, u) + dd
                t0 = 24 + 2 * dd
                a.e(f'''
                v_lshlrev_b32 v{t0}, 16, v{r}
                v_and_b32 v{t0+1}, s85, v{r}
                v_fma_f32 v{t0}, v{t0}, v{14+g}, -v{10+g}
                v_fma_f32 v{t0+1}, v{t0+1}, v{14+g}, -v{10+g}
                v_cvt_pk_bf16_f32 v{r}, v{t0}, v{t0+1}
                ''')
            a.e(f'ds_write_b128 v8, {q(xr(g,u))} offset:{(u&1)*16384 + g*128}')
    norm(0)
    mark(a, 3)
    si = 0
    for c in range(15):
        if not dft:
            if c <= 7:
                later = (7 - c) + max(0, min(c - 1, 6))
                a.e(f's_waitcnt vmcnt({4*later}) lgkmcnt(0)')
            elif c <= 13:
                a.e(f's_waitcnt vmcnt({4*(13-c)}) lgkmcnt(0)')
        else:
            a.e('s_waitcnt lgkmcnt(0)')
        a.e('s_barrier')
        if c == 0: mark(a, 4)
        if c == 0: norm(1)
        if not dft and 1 <= c <= 6:
            for l in dma_chunk(c + 7): a.e(l)
        if c >= 2 and c % 2 == 0 and c // 2 + 1 <= 6 and not NONORM: norm(c // 2 + 1)
        if dft:
            if c == 1:
                a.e('s_waitcnt vmcnt(0)')
                a.e(f's_cmp_ge_u32 s72, 112\ns_cbranch_scc1 {tag}_skipB')
                for dt in range(14):
                    o = 60 + 4 * dt
                    a.e(f'ds_read_b64_tr_b16 v[{o}:{o+1}], v42 offset:{dt*64}')
                    a.e(f'ds_read_b64_tr_b16 v[{o+2}:{o+3}], v42 offset:{7168 + dt*64}')
                for dt in range(14):
                    o = 60 + 4 * dt
                    a.e(f's_add_u32 s83, s82, {dt*114688}')
                    a.e(f's_waitcnt lgkmcnt({min(15, 2*(13-dt))})')
                    a.e(f'buffer_store_dwordx4 {q(o)}, v2, s[40:43], s83 offen')
                a.label(f'{tag}_skipB')
                a.fence()
            if c in (3, 5, 7, 9, 11):
                for blk in side[si:si+3]:
                    for l in blk: a.e(l)
                si += 3
    endpgm(a, 0, 18, nlast=NK-1)

def gen_k1(a):
    a.raw('.p2align 8')
    a.label('k1_kernel')
    a.e(f'''
    s_cmp_ge_u32 s2, 256
    s_cbranch_scc1 k1_end
    ''')
    diag_start(a)
    a.e(f'''
    s_load_dwordx8 s[4:11], s[0:1], 0
    s_load_dwordx4 s[12:15], s[0:1], 32
    s_load_dwordx2 s[16:17], s[0:1], 48
    s_load_dwordx2 s[18:19], s[0:1], 72
    v_lshrrev_b32 v1, 6, v0
    v_and_b32 v0, 63, v0
    v_readfirstlane_b32 s3, v1
    s_and_b32 s56, s2, 7
    s_lshr_b32 s57, s2, 3
    s_and_b32 s58, s56, 1
    s_lshl_b32 s58, s58, 3
    s_lshr_b32 s59, s56, 1
    s_and_b32 s63, s3, 3
    s_cmp_ge_u32 s57, 28
    s_cbranch_scc1 k1_dft
    s_mul_i32 s60, s59, 28
    s_add_u32 s60, s60, s57
    s_lshr_b32 s61, s60, 3
    s_and_b32 s62, s60, 7
    s_add_u32 s62, s62, s58
    s_waitcnt lgkmcnt(0)
    s_cmp_ge_u32 s3, 4
    s_cbranch_scc1 k1_gu_helper
    ''')
    a.fence(); compute(a, False)
    a.label('k1_gu_helper'); a.fence(); helper(a, False)
    a.label('k1_dft'); a.fence()
    a.e(f'''
    s_sub_u32 s57, s57, 28
    s_lshl_b32 s62, s59, 1
    s_add_u32 s62, s62, s58
    s_lshr_b32 s60, s57, 1
    s_add_u32 s62, s62, s60
    s_and_b32 s61, s57, 1
    s_lshl_b32 s60, s56, 2
    s_add_u32 s60, s60, s57
    s_waitcnt lgkmcnt(0)
    s_cmp_ge_u32 s3, 4
    s_cbranch_scc1 k1_dft_helper
    ''')
    a.fence(); compute(a, True)
    a.label('k1_dft_helper'); a.fence(); helper(a, True)
    a.label('k1_end')
    a.e('s_endpgm')
```

```python
import sys
sys.path.insert(0, 'gen')
from dsl import *
from common import *
import k1, k2
mode = sys.argv[1] if len(sys.argv) > 1 else 'split'
out = sys.argv[2] if len(sys.argv) > 2 else 'cur.s'
hdr = open('parallel_sum__spectral_gfnet__glu_gated_reglu__prompt.s.ref').read().split('\n')
hdr = [l for l in hdr if l.startswith(';') and '@launch' not in l and 'Override' not in l and 'grid=ceil' not in l]
a = Asm()
if mode in ('fused', 'v2'):
    import fused, v2
    KN = 'parallel_sum__spectral_gfnet__glu_gated_reglu__prompt_kernel'
    for l in hdr + ['; @launch grid=(256,1,1) block=(512,1,1) lds=163840']: a.raw(l)
    a.raw('.amdgcn_target "amdgcn-amd-amdhsa--gfx950"')
    a.raw('.text')
    a.raw(f'.globl {KN}')
    a.raw(f'.type {KN},@function')
    (fused.gen_fused if mode == 'fused' else v2.gen_v2)(a, KN)
    a.raw('.section .rodata,"a"')
    a.raw(kd(KN, 256, 102, 256))
    open(out, 'w').write(a.text())
    print('nops inserted', a.nops, 'lines', len(a.out))
    sys.exit(0)
L = ['; @launch kernel=k1_kernel grid=(256,1,1) block=(512,1,1) lds=163840']
if mode == 'split':
    L += ['; @launch kernel=k2f_kernel grid=(225,1,1) block=(256,1,1) lds=65536',
          '; @launch kernel=k2g_kernel grid=(224,1,1) block=(256,1,1) lds=65536']
else:
    L += ['; @launch kernel=k2_kernel grid=(225,1,1) block=(256,1,1) lds=65536']
for l in hdr + L: a.raw(l)
a.raw('.amdgcn_target "amdgcn-amd-amdhsa--gfx950"')
a.raw('.text')
k1.NK = 3 if mode == 'split' else 2
k1.gen_k1(a)
names = []
if mode == 'split':
    k2.gen_k2(a, 'k2f_kernel', 'fft'); k2.gen_k2(a, 'k2g_kernel', 'gemm'); names = ['k2f_kernel', 'k2g_kernel']
else:
    k2.gen_k2(a, 'k2_kernel', 'both'); names = ['k2_kernel']
a.raw('.section .rodata,"a"')
a.raw(kd('k1_kernel', 256, 102, 256))
for n in names: a.raw(kd(n, 512, 102, 256))
open(out, 'w').write(a.text())
print('nops inserted', a.nops, 'lines', len(a.out))
```

```python
from common import *
SZ_Z1 = 224 * ZS1
SZ_WT = 226 * WS
SZ_Z3 = 225 * ZS3
SZ_ST = 16384
OFF_HF = 0
HK1 = 113
SZ_HF = 64 * HK1 * 1024
OFF_Z1 = OFF_HF + SZ_HF
OFF_WT = OFF_Z1 + SZ_Z1
OFF_Z3 = OFF_WT + SZ_WT
OFF_ST = OFF_Z3 + SZ_Z3
OFF_FL = OFF_ST + SZ_ST
FD, FH, FZ = 0, 8192, 24576
FW = 57344
SZ_FL = 65536
OFF_END = OFF_FL + SZ_FL
```

```python
from dsl import *
from c2 import *
import fused
from fused import VM, q, d2, m2, fft_consts, STAT_STEPS
from fused import C64R, C64I, C32R, C32I, TW1, TW2, XA, WV, DR, DI, ER, EI, PK, WU

SS = {0: ' sc0 sc1', 1: ' sc1', 2: ' sc0 sc1 nt', 3: ' sc1 nt'}[int(os.environ.get('SSM', '0'))]
MISC = 9 * 16384
XCH = MISC
XCNT = MISC + 8192
FLG = MISC + 8192 + 64
TMO = 20000
def acc(i, t): return 128 + 16 * (i * 4 + t)
def opt(name, dflt): return int(os.environ.get(name, str(dflt)))

ITEMS = []
for u in range(7): ITEMS += [('x', u), ('w', 2*u), ('w', 2*u+1)]
ITEMS += [('a', i) for i in range(4)] + [('b', i) for i in range(4)]
def schedule():
    la = opt('LA', 2)
    pre = opt('PRE', 5)
    free = list(range(9)); slot = {}; when = {}
    n = 0
    for _ in range(pre):
        slot[ITEMS[n]] = free.pop(0); when[ITEMS[n]] = -1; n += 1
    for c in range(15):
        if c >= 1: free.append(slot[('w', c-1)])
        if c >= 2 and c % 2 == 0: free.append(slot[('x', c//2 - 1)])
        k = 0
        while n < len(ITEMS) and free and (k < la or c == 14):
            slot[ITEMS[n]] = free.pop(0); when[ITEMS[n]] = c; n += 1; k += 1
    assert n == len(ITEMS)
    return slot, when
FFT_ISSUE = opt('FFT_ISSUE', 11)
LB = opt('LB', 11)
SLOT, WHEN = schedule()
assert all(WHEN[('a', i)] <= LB for i in range(4)), WHEN
RCNT = XCNT + 128
HOOK = {}

NOCLR = opt('NOCLR', 0)
HSS = '' if opt('FAST', 0) else SS
HPL = ' nt' if opt('FAST', 0) == 1 else ' sc1'
HS = ['', ' sc1', ' nt'][opt('HSM', 0)]
_iss = VM.issue
def _issue(self, text, tag):
    if tag in ('clr', 'cla') and NOCLR: return
    _iss(self, text, tag)
VM.issue = _issue
_cnt = VM.cnt
def _cnt2(self, tag):
    if tag not in self.ops: return None
    return _cnt(self, tag)
VM.cnt = _cnt2
def dbg_srd(a, d=40): srd(a, d, 20, 0, 256)
def fl_srd(a, d): srd(a, d, 22, OFF_FL, SZ_FL)
def poll1(a, tag, vd, va, slp, R=40, first=False, sc=' sc1', val=1):
    a.e(f's_mov_b32 s77, {TMO}')
    if first: a.e(f's_branch {tag}_ld')
    a.label(f'{tag}_pl'); a.fence()
    a.e(f'''
    v_cmp_ne_u32 vcc, {val}, v{vd}
    s_nop 1
    s_cbranch_vccz {tag}_ok
    s_sub_u32 s77, s77, 1
    s_cbranch_scc1 {tag}_ok
    s_sub_u32 s79, s79, {1 if DIAG else 0}
    s_sleep {slp}
    ''')
    a.label(f'{tag}_ld'); a.fence()
    a.e(f'''
    buffer_load_dword v{vd}, v{va}, s[{R}:{R+3}], 0 offen{sc}
    s_waitcnt vmcnt(0)
    s_branch {tag}_pl
    ''')
    a.label(f'{tag}_ok'); a.fence()
FPL = '' if opt('CPLAIN', 1) else ' sc1'
def l1_issue(vm, vd, vz, sc=FPL):
    vm.issue(f'buffer_load_dword v{vd}, v{vz}, s[40:43], 0 offen{sc}', 'l1')
def l1_check(a, tag, vd, vz, slp=8, sr=80):
    a.e(f's_mov_b32 s77, {TMO}')
    a.label(f'{tag}_l1'); a.fence()
    a.e(f'''
    v_readfirstlane_b32 s{sr}, v{vd}
    s_cmp_eq_u32 s{sr}, 32
    s_cbranch_scc1 {tag}_l1ok
    s_sub_u32 s77, s77, 1
    s_cbranch_scc1 {tag}_l1ok
    s_sleep {slp}
    buffer_load_dword v{vd}, v{vz}, s[40:43], 0 offen sc1
    s_waitcnt vmcnt(0)
    s_branch {tag}_l1
    ''')
    a.label(f'{tag}_l1ok'); a.fence()
def fl_loads(vd, va, R, offs, sc):
    return [f'buffer_load_dwordx4 {q(vd+4*i)}, v{va}, s[{R}:{R+3}], 0 offen offset:{o}{sc}' for i, o in enumerate(offs)]
def fl_check(a, tag, vd, va, R, offs, ves, slp=8, alt=None, sr=80):
    a.e(f's_mov_b32 s77, {TMO}')
    a.label(f'{tag}_fl'); a.fence()
    for i in range(len(offs)):
        a.e(f'v_and_b32 v{vd+4*i}, v{vd+4*i}, v{vd+4*i+2}')
        a.e(f'v_cmp_ne_u32 ' + ('vcc' if i == 0 else f's[{sr}:{sr+1}]') + f', {ves[i]}, v{vd+4*i}')
        if i: a.e(f's_or_b64 vcc, vcc, s[{sr}:{sr+1}]')
    a.e(f'''
    s_nop 1
    s_cbranch_vccz {tag}_flok
    s_sub_u32 s77, s77, 1
    s_cbranch_scc1 {tag}_flok
    s_sleep {slp}
    ''')
    if alt:
        a.e(f's_add_u32 s{sr}, s77, {alt}\ns_and_b32 s{sr}, s{sr}, 7\ns_cmp_eq_u32 s{sr}, 0\ns_cbranch_scc1 {tag}_fs')
        for l in fl_loads(vd, va, R, offs, ''): a.e(l)
        a.e(f's_waitcnt vmcnt(0)\ns_branch {tag}_fl')
        a.label(f'{tag}_fs'); a.fence()
    for l in fl_loads(vd, va, R, offs, ' sc1'): a.e(l)
    a.e(f's_waitcnt vmcnt(0)\ns_branch {tag}_fl')
    a.label(f'{tag}_flok'); a.fence()

def maxchain(regs, t0, t1):
    L = []; regs = list(regs)
    h = (len(regs) + 1) // 2
    for t, rs in ((t0, regs[:h]), (t1, regs[h:])):
        rs = list(rs)
        if len(rs) == 1: L.append(f'v_mov_b32 v{t}, v{rs[0]}'); continue
        if len(rs) == 2: L.append(f'v_max_u32 v{t}, v{rs[0]}, v{rs[1]}'); continue
        L.append(f'v_max3_u32 v{t}, v{rs[0]}, v{rs[1]}, v{rs[2]}'); rs = rs[3:]
        while len(rs) >= 2:
            L.append(f'v_max3_u32 v{t}, v{t}, v{rs[0]}, v{rs[1]}'); rs = rs[2:]
        if rs: L.append(f'v_max_u32 v{t}, v{t}, v{rs[0]}')
    L.append(f'v_max_u32 v{t0}, v{t0}, v{t1}')
    return L

STUBS = []
def check(a, tag, regs, t0, t1, reissue, nwait=0):
    a.label(f'{tag}_chk')
    for l in maxchain(regs, t0, t1): a.e(l)
    a.e(f'''
    v_cmp_eq_u32 vcc, -1, v{t0}
    s_nop 1
    s_cbranch_vccnz {tag}_stub
    ''')
    a.label(f'{tag}_ok')
    STUBS.append((tag, reissue, nwait))
def emit_stubs(a):
    for tag, reissue, nwait in STUBS:
        a.label(f'{tag}_stub'); a.fence()
        a.e(f'''
        s_cmp_eq_u32 s79, 0
        s_cbranch_scc1 {tag}_ok
        s_sub_u32 s79, s79, 1
        s_sleep {opt('RSLEEP', 6)}
        ''')
        for l in reissue: a.e(l)
        a.e(f's_waitcnt vmcnt({nwait})\ns_branch {tag}_chk')
    STUBS.clear()

def fft_loads():
    return [f'buffer_load_dwordx4 {q(XA+16*t+4*u)}, v6, s[44:47], s{69+(u>>1)} offen offset:{(u&1)*2048 + t*256}' for u in range(4) for t in range(2)]
def fft_setup(a):
    srd(a, 44, 22, OFF_Z1, SZ_Z1)
    srd(a, 48, 22, OFF_WT, SZ_WT)
    fl_srd(a, 40)
    a.e(f'''
    v_and_b32 v1, 15, v0                 ; l15
    v_lshrrev_b32 v2, 4, v0              ; q
    v_lshlrev_b32 v3, 4, v0              ; lane*16
    s_mul_i32 s69, s62, {ZS1}
    s_add_u32 s70, s69, 4096
    v_and_b32 v5, 1, v0
    v_lshlrev_b32 v5, 7, v5
    v_lshrrev_b32 v6, 1, v1
    v_lshl_add_u32 v5, v6, 4, v5
    v_lshl_add_u32 v5, v2, 10, v5        ; q*1024 + par*128 + (l15>>1)*16
    v_lshlrev_b32 v6, 4, v1
    v_lshl_add_u32 v6, v2, 9, v6         ; q*512 + l15*16
    s_mul_i32 s71, s63, {WS}
    s_lshl_b32 s72, s64, 8
    s_add_u32 s71, s71, s72
    s_add_u32 s71, s71, {WS}
    s_add_u32 s72, s71, 4096
    s_and_b32 s65, s63, 63
    s_lshl_b32 s65, s65, 7
    v_mov_b32 v18, s65
    s_and_b32 s65, s63, 3
    s_lshl_b32 s65, s65, 7
    s_add_u32 s65, s65, {FW}
    s_lshr_b32 s68, s63, 5
    s_lshl_b32 s68, s68, 9
    s_add_u32 s68, s68, s65
    v_writelane_b32 v18, s68, 1
    s_add_u32 s68, s63, 1
    s_lshr_b32 s68, s68, 5
    s_lshl_b32 s68, s68, 9
    s_add_u32 s68, s68, s65
    s_add_u32 s68, s68, 4096
    v_writelane_b32 v18, s68, 2
    s_lshl_b32 s65, s64, 13
    s_lshl_b32 s68, s63, 2
    s_add_u32 s65, s65, s68
    s_add_u32 s65, s65, {FZ}
    v_lshlrev_b32 v28, 10, v0
    v_add_u32 v28, s65, v28
    v_mov_b32 v19, 0x40000000
    v_cmp_gt_u32 vcc, 8, v0
    v_cndmask_b32 v28, v19, v28, vcc
    ''')
def fft_issue(a, vm):
    for l in fft_loads(): vm.issue(l, 'xa')
def wt_issue(a, vm):
    for tm in range(2):
        vm.issue(f'buffer_load_dwordx4 {q(WV+4*tm)}, v5, s[48:51], s{71+tm} offen', 'wv')

def fft_body(a, vm):
    a.label('fft_body'); a.fence()
    a.e(f'''
    s_lshl_b32 s65, s64, 2
    s_add_u32 s65, s65, {FLG}
    v_mov_b32 v8, s65
    v_mov_b32 v9, 1
    ds_write_b32 v8, v9
    ''')
    def hook(pos):
        for c in HOOK.get(pos, []):
            a.e(f's_cmp_eq_u32 s76, 0\ns_cbranch_scc1 hk{c}')
            a.label(f'hk{c}_ret')
            for it in ITEMS:
                if WHEN[it] == c:
                    for _ in range(4): vm.note(it)
    hook(-1)
    m2(a, 3, 4)
    a.e('s_cmp_lg_u32 s64, 0\ns_cbranch_scc1 fd_w')
    poll1(a, 'fd', 17, 18, opt('WSLP', 4), val=32)
    a.e('ds_write_b32 v8, v9 offset:48\ns_branch fd_go')
    a.label('fd_w'); a.fence()
    lds_spin(a, 'fd_sp', FLG + 48, va=18, vd=17, slp=1)
    a.label('fd_go'); a.fence()
    if opt('FPRIO', 0): a.e('s_setprio 3')
    m2(a, 4, 4)
    fft_issue(a, vm)
    wt_issue(a, vm)
    hook(0)
    a.e(f's_cmp_eq_u32 s76, 0\ns_cbranch_scc1 w2_x\ns_waitcnt vmcnt(0)')
    a.label('w2_x')
    vm.wait('wv')
    a.e('ds_write_b32 v8, v9 offset:32')
    m2(a, 1, 2)
    srd(a, 44, 22, OFF_Z3, SZ_Z3)
    a.e(f's_cmp_lg_u32 s62, 0\ns_cbranch_scc1 fft_nofix')
    a.e(f's_cmp_eq_u32 s63, 224\ns_cselect_b32 s68, 16, 0')
    for r in range(XA, XA+32):
        a.e(f'v_lshrrev_b32 v{r}, s68, v{r}\nv_and_b32 v{r}, 0xffff, v{r}')
    a.e('s_nop 1')
    a.label('fft_nofix'); a.fence()
    def mm(d, A, B, first):
        c = '0' if first else q(d)
        a.e(f'v_mfma_f32_16x16x32_bf16 {q(d)}, {q(A)}, {q(B)}, {c}')
    for u in range(4):
        for t in range(2):
            mm(DR+4*t, XA+16*t+4*u, C64R+4*u, u == 0)
            mm(DI+4*t, XA+16*t+4*u, C64I+4*u, u == 0)
    def twiddle(R, I, TW, out):
        for t in range(2):
            for i in range(4):
                c = TW + 2*(4*t+i); s = c + 1
                r = R + 4*t + i; im = I + 4*t + i
                t0 = 8 + 2*i
                a.e(f'''
                v_mul_f32 v{t0}, v{r}, v{c}
                v_mul_f32 v{t0+1}, v{im}, v{c}
                v_fmac_f32 v{t0}, v{im}, v{s}
                v_fma_f32 v{t0+1}, -v{r}, v{s}, v{t0+1}
                v_cvt_pk_bf16_f32 v{out+4*t+i}, v{t0}, v{t0+1}
                ''')
    hook(1)
    twiddle(DR, DI, TW1, PK)
    hook(2)
    for t in range(2):
        for tm in range(2):
            mm(ER+4*tm, C32R+8*tm+4*t, PK+4*t, t == 0)
            mm(EI+4*tm, C32I+8*tm+4*t, PK+4*t, t == 0)
    hook(3)
    for tm in range(2):
        for i in range(4):
            n = 4*tm + i
            for c in range(2):
                src = WV + 4*tm + 2*c + (i >> 1)
                if i & 1: a.e(f'v_and_b32 v{WU+8*c+n}, 0xffff0000, v{src}')
                else: a.e(f'v_lshlrev_b32 v{WU+8*c+n}, 16, v{src}')
    for tm in range(2):
        for i in range(4):
            n = 4*tm + i
            xr_ = ER + n; xi = EI + n; wr = WU + n; wi = WU + 8 + n
            t0 = 8 + 2*i
            a.e(f'''
            v_mul_f32 v{t0}, v{xr_}, v{wr}
            v_mul_f32 v{t0+1}, v{xr_}, v{wi}
            v_fma_f32 v{t0}, -v{xi}, v{wi}, v{t0}
            v_fmac_f32 v{t0+1}, v{xi}, v{wr}
            v_cvt_pk_bf16_f32 v{PK+n}, v{t0}, -v{t0+1}
            ''')
    hook(4)
    for tm in range(2):
        for tn in range(2):
            mm(DR+4*tn, PK+4*tm, C32R+8*tn+4*tm, tm == 0)
            mm(DI+4*tn, PK+4*tm, C32I+8*tn+4*tm, tm == 0)
    a.e(f'''
    s_lshl_b32 s68, s64, 11
    s_add_u32 s65, s68, {XCH}
    v_add_u32 v16, s65, v3
    v_add_u32 v7, {XCH}, v3
    v_mov_b32 v4, {XCNT}
    v_mov_b32 v5, 1
    ''')
    hook(5)
    twiddle(DR, DI, TW2, PK)
    a.e(f'''
    ds_write_b128 v16, {q(PK)}
    ds_write_b128 v16, {q(PK+4)} offset:1024
    s_waitcnt lgkmcnt(0)
    s_mov_b64 exec, 1
    ds_add_u32 v4, v5
    s_mov_b64 exec, -1
    s_mul_i32 s69, s63, {ZS3}
    s_add_u32 s68, s68, s69
    ''')
    hook(6)
    a.e('s_mov_b32 s77, 400000')
    a.label('fft_sp'); a.fence()
    a.e(f'''
    ds_read_b32 v5, v4
    s_waitcnt lgkmcnt(0)
    v_readfirstlane_b32 s65, v5
    s_sub_u32 s77, s77, 1
    s_cbranch_scc1 fft_spok
    s_cmp_lt_u32 s65, 4
    s_cbranch_scc1 fft_sp
    ''')
    a.label('fft_spok'); a.fence()
    for u in range(4):
        for tn in range(2):
            a.e(f'ds_read_b128 {q(XA+16*tn+4*u)}, v7 offset:{(2*u+tn)*1024}')
    for u in range(4):
        a.e(f's_waitcnt lgkmcnt({6-2*u})')
        for tn in range(2):
            mm(ER+4*tn, C64R+4*u, XA+16*tn+4*u, u == 0)
            mm(EI+4*tn, C64I+4*u, XA+16*tn+4*u, u == 0)
    for n in range(8):
        a.e(f'v_cvt_pk_bf16_f32 v{PK+n}, v{ER+n}, v{EI+n}')
    for tn in range(2):
        vm.issue(f'buffer_store_dwordx4 {q(PK+4*tn)}, v6, s[44:47], s68 offen offset:{tn*256}{SS}', 'z3')
    hook(7)
    if opt('FPRIO', 0): a.e('s_setprio 0')
    m2(a, 2, 2)

ACC2, AF, HR, GF_ = 192, 128, 16, 72
NH = 7
ROT2 = opt('ROT2', 1)
def wd_addr(a, vr, t0, t1):
    a.e(f'''
    v_lshrrev_b32 v{t0}, 3, v0
    v_bfe_u32 v{t1}, v0, 4, 1
    v_lshlrev_b32 v{t1}, 2, v{t1}
    v_and_b32 v{vr}, 7, v0
    v_xor_b32 v{t1}, v{t1}, v{vr}
    v_mul_u32_u24 v{vr}, 896, v{t0}
    v_lshl_add_u32 v{vr}, v{t1}, 4, v{vr}
    ''')

def g_gen(a):
    a.e(f'''
    s_mul_i32 s65, s64, 56
    v_lshlrev_b32 v8, 2, v5
    v_add_u32 v8, s65, v8                ; p0
    v_cmp_eq_u32 s[80:81], 0, v8
    v_cvt_f32_u32 v8, v8
    s_lshl_b32 s75, s61, 6
    v_add_u32 v9, s75, v4                ; d (b=0)
    v_lshlrev_b32 v12, 31, v9
    v_xor_b32 v12, 0.5, v12              ; +-0.5
    v_cvt_f32_u32 v9, v9
    ''')
    for b in range(2):
        if b: a.e(f'v_add_f32 v9, {fh(32.0)}, v9')
        a.e(f'v_mul_f32 v10, {fh(1/448)}, v9')
        for z in range(7):
            a.e(f'v_add_f32 v11, {fh(8.0*z)}, v8\nv_mul_f32 v11, v11, v10')
            for j in range(4):
                a.e(f'''
                v_cos_f32 v14, v11
                v_sin_f32 v15, v11
                v_add_f32 v11, v11, v10
                ''')
                if z == 0 and j == 0:
                    a.e(f'''
                    v_cndmask_b32 v14, v14, 0.5, s[80:81]
                    v_cndmask_b32 v15, v15, v12, s[80:81]
                    ''')
                a.e(f'v_cvt_pk_bf16_f32 v{GF_+8*z+4*b+j}, v14, v15')

HK = opt('HK', 1)
FLG2, FLG3 = 16, 32
def lds_spin(a, tag, addr, off=0, val=1, va=14, vd=15, slp=0):
    a.e(f'v_mov_b32 v{va}, {addr}\ns_mov_b32 s77, 400000')
    if slp: a.e(f's_branch {tag}_1')
    a.label(tag); a.fence()
    if slp: a.e(f's_sleep {slp}'); a.label(f'{tag}_1')
    a.e(f"""
    ds_read_b32 v{vd}, v{va} offset:{off}
    s_waitcnt lgkmcnt(0)
    v_readfirstlane_b32 s73, v{vd}
    s_sub_u32 s77, s77, 1
    s_cbranch_scc1 {tag}_ok
    s_cmp_lt_u32 s73, {val}
    s_cbranch_scc1 {tag}
    """)
    a.label(f'{tag}_ok'); a.fence()

def gemm2(a):
    a.label('gemm2'); a.fence()
    vm = VM(a)
    PA = sum(SLOT[('a', i)] << (4*i) for i in range(4)); PB = sum(SLOT[('b', i)] << (4*i) for i in range(4))
    SP = [x for x in range(9) if x not in [SLOT[(k, i)] for k in 'ab' for i in range(4)]][0]
    LOCS = [SLOT[('a', i)] for i in (0, 1, 2, 3, 0, 1, 2)] + [SLOT[('b', i)] for i in range(4)] + [SLOT[('a', 3)], SP, SLOT[('a', 0)]]
    NH = 14; XR = 16; ZR = 128; T224 = 184
    def common():
        a.e(f"""
        s_lshl_b32 s87, s64, 12
        s_lshl_b32 s86, s64, 2
        s_add_u32 s86, s86, {FLG}
        v_lshrrev_b32 v5, 5, v0              ; h
        v_and_b32 v4, 31, v0                 ; l31
        v_lshlrev_b32 v3, 4, v0              ; lane*16
        """)
    def outaddr():
        srd(a, 48, 18, 0, SZ_X)
        a.e(f"""
        s_lshr_b32 s65, s3, 1
        s_and_b32 s76, s65, 1                ; aa
        s_lshl_b32 s76, s76, 2
        s_lshr_b32 s78, s60, 1
        s_lshl_b32 s78, s78, 3
        s_add_u32 s76, s76, s78
        s_and_b32 s78, s60, 1
        s_add_u32 s76, s76, s78              ; rows/16
        s_mul_i32 s76, s76, {16*896}
        s_lshr_b32 s65, s65, 1               ; b
        s_lshl_b32 s78, s61, 1
        s_add_u32 s78, s78, s65
        s_lshl_b32 s78, s78, 6
        s_add_u32 s76, s76, s78
        s_and_b32 s78, s3, 1
        s_lshl_b32 s78, s78, 5
        s_add_u32 s76, s76, s78
        v_and_b32 v12, 15, v0
        v_bfe_u32 v13, v0, 4, 1
        v_lshl_add_u32 v12, v13, 5, v12
        v_mul_u32_u24 v12, 896, v12
        v_lshrrev_b32 v14, 5, v0
        v_lshl_add_u32 v13, v14, 3, v12
        v_lshl_add_u32 v12, v14, 4, v12
        """)
    XL = [f'buffer_load_dwordx2 {d2(XR+2*g)}, v13, s[24:27], s76 offen offset:{16*g}' for g in range(2)]
    def mf(A, B, first):
        for aa in range(2):
            for b in range(2):
                d = ACC2 + 16 * (2*b + aa)
                c = '0' if first else f'v[{d}:{d+15}]'
                a.e(f'v_mfma_f32_32x32x16_bf16 v[{d}:{d+15}], {q(A+4*b)}, {q(B+4*aa)}, {c}')
    common()
    a.e(f"""
    v_bfe_u32 v1, v0, 2, 2               ; r
    v_lshl_add_u32 v2, v5, 2, v1         ; 4h + r
    v_lshlrev_b32 v2, 7, v2
    v_lshrrev_b32 v1, 1, v1
    v_lshl_add_u32 v2, v1, 6, v2
    v_bfe_u32 v1, v0, 4, 1
    v_lshl_add_u32 v2, v1, 5, v2
    v_and_b32 v1, 3, v0
    v_lshl_add_u32 v2, v1, 3, v2
    v_add_u32 v2, s87, v2
    """)
    def tr(k):
        sl = k % 8; L = []
        if k % 2 == 0: L += [f'v_add_u32 v1, {LOCS[k>>1]*16384}, v2', 'v_xor_b32 v5, 64, v1']
        for b in range(2):
            for rho in range(2):
                L.append(f'ds_read_b64_tr_b16 {d2(AF + 8*sl + 4*b + 2*rho)}, v{5 if b else 1} offset:{(k&1)*2048 + rho*1024}')
        return L
    for k in range(8):
        for l in tr(k): a.e(l)
    a.e(f"""
    s_mul_i32 s65, s3, 14
    s_mul_i32 s73, s60, 224
    s_add_u32 s73, s73, s65
    s_lshl_b32 s73, s73, 10
    s_add_u32 s65, s73, 114688
    """)
    assert OFF_HF == 0
    srd(a, 28, 22, 's73', 57344 + 14336)
    srd(a, 32, 22, 's65', 57344 + 14336)
    srd(a, 52, 22, OFF_ST, SZ_ST)
    fl_srd(a, 40)
    a.e(f"""
    s_mul_i32 s74, s3, {224*896}
    s_lshl_b32 s75, s61, 7
    s_add_u32 s74, s74, s75
    v_lshlrev_b32 v10, 2, v4
    s_lshl_b32 s85, s60, 8
    s_add_u32 s85, s85, 8192
    v_mov_b32 v8, v29
    v_add_u32 v9, 57344, v3
    v_mov_b32 v30, 1
    """)
    for qq in range(7):
        if ROT2: a.e(f's_add_u32 s{66+qq}, s61, {qq}\ns_cmp_ge_u32 s{66+qq}, 7\ns_cselect_b32 s75, 7, 0\ns_sub_u32 s{66+qq}, s{66+qq}, s75\ns_lshl_b32 s{66+qq}, s{66+qq}, 11')
        else: a.e(f's_mov_b32 s{66+qq}, {qq*2048}')
    def dma(P):
        a.e(f's_mul_i32 s73, s{66+P%7}, 14\ns_add_u32 s73, s73, s74')
        for i in range(4):
            a.e(f's_add_u32 s75, s73, {i*7168 + (P//7)*4*224*896}\ns_add_u32 m0, s87, {LOCS[P]*16384 + i*1024}')
            vm.issue(f'buffer_load_dwordx4 v8, s[36:39], s75 offen lds', ('wd', P))
    own = [4, 5, 6] + [7 + i for i in range(4) if WHEN[('b', i)] > LB + HK] + [11, 12]
    NPRE = opt('NPRE', 2); NMID = opt('NMID', 3)
    a.e('s_waitcnt lgkmcnt(0)')
    assert NPRE <= 3
    for P in own[:NPRE]: dma(P)
    a.e(f's_waitcnt vmcnt({4*NPRE})')
    vm.issue(f'buffer_store_dword v30, v28, s[40:43], 0 offen{HSS}', 'fl')
    m2(a, 3, 2)
    lds_spin(a, 'g2_rc', RCNT, 4*14, 4)
    RL = [f'buffer_load_dword v{6+aa}, v10, s[52:55], s85 offen offset:{aa*128} sc1' for aa in range(2)]
    for l in RL: vm.issue(l, 'r2')
    for P in own[NPRE:NPRE+NMID]: dma(P)
    late = own[NPRE+NMID:] + [13]
    a.e(f"""
    s_lshr_b32 s65, s60, 1
    s_lshl_b32 s65, s65, 3
    s_add_u32 s65, s65, s3
    s_lshl_b32 s65, s65, 7
    s_add_u32 s65, s65, {FH}
    v_and_b32 v1, 7, v0
    v_min_u32 v1, 6, v1
    v_lshlrev_b32 v1, 2, v1
    v_bfe_u32 v11, v0, 3, 1
    v_lshl_add_u32 v1, v11, 9, v1
    v_add_u32 v1, s65, v1
    v_mov_b32 v11, 1
    """)
    m2(a, 4, 2)
    poll1(a, 'fh', 14, 1, opt('HSLP', 2), first=True, sc=HPL)
    vm.all_done()
    m2(a, 1, 6)
    m2(a, 2, 7)
    def issue(k):
        r = HR + 8 * (k % NH); o = (k & 1) * 1024
        for j in range(2):
            vm.issue(f'buffer_load_dwordx4 {q(r+4*j)}, v{3 if k < 14 else 9}, s[{28+4*j}:{31+4*j}], s{66+(k>>1)%7} offen offset:{o}{HS}', ('h', k))
    for k in range(NH): issue(k)
    m2(a, 1, 7)
    outaddr()
    LK = {}
    for n, P in enumerate(late): LK[max(2*n + 1, 9 if P == 13 else 0)] = P
    for k in range(28):
        vm.wait(('h', k))
        if k >= 8: a.e(f's_waitcnt lgkmcnt({4*min(3, 27-k)})')
        mf(AF + 8*(k % 8), HR + 8 * (k % NH), k == 0)
        if k + NH < 28: issue(k + NH)
        if k in LK: dma(LK[k])
        if k == 15:
            for l in XL: vm.issue(l, 'xr')
        if k == 0: m2(a, 3, 3)
        if k == 0: m2(a, 3, 7)
        if k == 1: m2(a, 4, 7)
        if k == 13: m2(a, 4, 3)
        if k in (3, 7, 20): m2(a, {3: 2, 7: 3, 20: 4}[k], 6)
        if k == 10: lds_spin(a, 'g2_b', 's86', FLG3)
        if k == 22: a.e(f'v_mov_b32 v14, s86\nds_write_b32 v14, v11 offset:{FLG2}\ns_waitcnt lgkmcnt(0)')
        if 4 <= k < 24:
            if k % 2 == 0: vm.wait(('wd', (k + 4) >> 1))
            for l in tr(k + 4): a.e(l)
    check(a, 'g2_r2', [6, 7], 14, 15, RL, 0)
    a.e('s_nop 7')
    for tl in range(4):
        for i in range(16):
            a.e(f'v_mul_f32 v{ACC2+16*tl+i}, v{ACC2+16*tl+i}, v{6+(tl&1)}')
    for i in range(4): a.e(f's_add_u32 s{82+i}, s87, {SLOT[("a", i)]*16384}')
    a.e('s_branch g2_red')
    a.label('gemm2h'); a.fence()
    vm = VM(a)
    common()
    outaddr()
    for l in XL: vm.issue(l, 'xr')
    g_gen(a)
    a.e('v_mov_b32 v30, 1\ns_waitcnt vmcnt(2)')
    a.e(f'buffer_store_dword v30, v28, s[40:43], 0 offen{SS}')
    m2(a, 3, 2)
    outaddr()
    a.e(f"""
    v_and_b32 v10, 15, v0
    v_lshlrev_b32 v10, 4, v10            ; l15*16
    v_bfe_u32 v11, v0, 4, 1
    v_lshl_add_u32 v11, v5, 2, v11       ; 4h + b16
    v_mul_u32_u24 v8, {ZS3}, v11
    v_add_u32 v8, v8, v10
    v_add_u32 v9, {2*ZS3}, v8
    s_mul_i32 s74, s64, {56*ZS3}
    s_lshl_b32 s75, s60, 8
    s_add_u32 s74, s74, s75              ; z3 base
    s_add_u32 s75, s75, {224*ZS3}
    s_cmp_eq_u32 s64, 0
    s_cselect_b32 s75, s75, 0x40000000
    s_cselect_b32 s65, 16, 0
    v_cmp_gt_u32 vcc, s65, v0
    v_mov_b32 v11, 0x40000000
    v_cndmask_b32 v10, v11, v10, vcc
    v_mov_b32 v11, -1
    v_mov_b32 v14, 0xffff
    v_cndmask_b32 v11, v11, v14, vcc
    s_mul_i32 s65, s64, 224
    s_cmp_eq_u32 s64, 0
    s_cselect_b32 s73, 896, s65
    v_lshlrev_b32 v15, 2, v0
    v_add_u32 v15, s65, v15
    v_mov_b32 v14, s73
    v_cmp_gt_u32 vcc, 56, v0
    v_cndmask_b32 v15, v14, v15, vcc
    s_lshl_b32 s65, s60, 10
    s_add_u32 s65, s65, {FZ}
    v_add_u32 v15, s65, v15
    """)
    for i in range(4): a.e(f's_add_u32 s{82+i}, s87, {SLOT[("b", i)]*16384}')
    m2(a, 4, 2)
    poll1(a, 'fz', 14, 15, opt('ZSLP', 4), first=True)
    vm.all_done()
    m2(a, 1, 6)
    for z in range(7):
        r = ZR + 8*z
        a.e(f's_add_u32 s65, s74, {z*8*ZS3}')
        vm.issue(f'buffer_load_dwordx4 {q(r)}, v8, s[44:47], s65 offen{HS}', ('z', z))
        vm.issue(f'buffer_load_dwordx4 {q(r+4)}, v9, s[44:47], s65 offen{HS}', ('z', z))
        if z == 0: vm.issue(f'buffer_load_dwordx4 {q(T224)}, v10, s[44:47], s75 offen{HS}', ('z', z))
    for z in range(7):
        r = ZR + 8*z
        vm.wait(('z', z))
        if z == 0:
            for t in range(4):
                a.e(f'v_and_b32 v{r+t}, v{r+t}, v11\nv_lshl_or_b32 v{r+t}, v{T224+t}, 16, v{r+t}')
        for t in (0, 2, 4, 6):
            a.e(f'v_permlane16_swap_b32 v{r+t}, v{r+t+1}')
        a.e(f'v_swap_b32 v{r+2}, v{r+4}\nv_swap_b32 v{r+3}, v{r+5}')
        mf(GF_ + 8*z, r, z == 0)
        if z == 0: m2(a, 3, 3)
    m2(a, 4, 3)
    lds_spin(a, 'g2_bf', 's86', FLG2, slp=1)
    a.e('s_nop 7')
    a.label('g2_red'); a.fence()
    m2(a, 1, 3)
    for tl in range(4):
        a.e(f'v_add_u32 v{8+tl}, s{82+tl}, v3')
    for tl in range(4):
        for c in range(4):
            a.e(f'ds_write_b128 v{8+tl}, {q(ACC2+16*tl+4*c)} offset:{c*1024}')
    a.e(f'''
    s_lshr_b32 s65, s3, 1
    s_lshl_b32 s65, s65, 2
    s_lshr_b32 s66, {PA}, s65
    s_and_b32 s66, s66, 15
    s_lshl_b32 s66, s66, 14
    s_lshr_b32 s67, {PB}, s65
    s_and_b32 s67, s67, 15
    s_lshl_b32 s67, s67, 14
    s_and_b32 s65, s3, 1
    s_lshl_b32 s65, s65, 11
    s_add_u32 s66, s66, s65
    s_add_u32 s67, s67, s65
    v_add_u32 v2, s66, v3
    v_add_u32 v7, s67, v3
    s_waitcnt vmcnt(0)
    ''')
    for g in range(2):
        for c in range(2):
            a.e(f'v_lshlrev_b32 v{96+4*g+2*c}, 16, v{XR+2*g+c}\nv_and_b32 v{96+4*g+2*c+1}, 0xffff0000, v{XR+2*g+c}')
    a.e('s_waitcnt lgkmcnt(0)\ns_barrier')
    m2(a, 2, 3)
    for sw in range(8):
        for c in range(2):
            a.e(f'ds_read_b128 {q(16+8*sw+4*c)}, v{2 if sw < 4 else 7} offset:{(sw&3)*4096 + c*1024}')
    for sw in range(8):
        a.e(f's_waitcnt lgkmcnt({14-2*sw})')
        for r in range(8):
            a.e(f'v_add_f32 v{96+r}, v{96+r}, v{16+8*sw+r}')
    for g in range(2):
        for c in range(2):
            a.e(f'v_cvt_pk_bf16_f32 v{112+2*g+c}, v{96+4*g+2*c}, v{96+4*g+2*c+1}')
    for c in range(2):
        a.e(f'v_permlane32_swap_b32 v{112+c}, v{114+c}')
    a.e(f'buffer_store_dwordx4 {q(112)}, v12, s[48:51], s76 offen')
    endpgm(a, 0, 22)
    emit_stubs(a)

def emit(a, x):
    if callable(x): x()
    else: a.e(x)

def gu(a):
    vm = VM(a)
    a.e(f'''
    v_lshrrev_b32 v5, 4, v0
    v_lshlrev_b32 v6, 2, v5
    v_and_b32 v7, 15, v0
    v_xor_b32 v6, v6, v7
    v_mul_u32_u24 v11, 3584, v5
    v_lshl_add_u32 v11, v6, 4, v11
    s_lshl_b32 s69, s58, 8               ; ct*256
    s_sub_u32 s70, {SZ_WG}, s69
    s_lshl_b32 s65, s59, 3
    s_bfe_u32 s66, s3, {(1<<16)|1}
    s_lshl_b32 s66, s66, 2
    s_add_u32 s66, s66, s65
    s_lshr_b32 s67, s3, 2
    s_add_u32 s66, s66, s67
    s_and_b32 s67, s3, 1
    s_lshl_b32 s67, s67, 1
    s_add_u32 s66, s66, s67
    s_mul_i32 s66, s66, {16*896}
    s_mul_i32 s68, s3, 14336
    s_lshl_b32 s71, s3, 10
    s_lshl_b32 s72, s3, 11
    s_add_u32 s78, s59, s58
    s_mul_i32 s67, s78, 37
    s_lshr_b32 s67, s67, 8
    s_mul_i32 s67, s67, 7
    s_sub_u32 s78, s78, s67
    s_mul_i32 s78, s78, {128*opt('ROT1', 0)}
    s_add_u32 s66, s66, s78
    s_mul_i32 s67, s78, 1792
    s_add_u32 s68, s68, s67
    s_waitcnt lgkmcnt(0)
    ''')
    srd(a, 24, 4, 0, SZ_X)
    for jj in range(2):
        a.e(f's_add_u32 m0, s72, {SLOT[("x",0)]*16384 + jj*1024}')
        vm.issue(f'buffer_load_dwordx4 v{12+jj}, s[24:27], s66 offen lds', ('x', 0))
    srd(a, 28, 12, 's69', 's70')
    srd(a, 32, 14, 's69', 's70')
    for c in range(2):
        if c: a.e(f's_add_u32 s68, s68, 114688')
        for mat in range(2):
            a.e(f's_add_u32 m0, s71, {SLOT[("w",c)]*16384 + mat*8192}')
            vm.issue(f'buffer_load_dwordx4 v11, s[{28+4*mat}:{31+4*mat}], s68 offen lds', ('w', c))
    a.e(f's_mov_b32 s79, {TMO}')
    a.e('s_cmp_ge_u32 s3, 4\ns_cbranch_scc1 gu_helper')
    vmh = vm.copy()
    dbg_srd(a)
    a.e('''
    v_mov_b32 v30, 1
    v_lshlrev_b32 v31, 20, v0
    ''')
    srd(a, 28, 22, OFF_HF, SZ_HF)
    a.e(f'''
    s_mul_i32 s65, s59, {4*112}
    s_lshl_b32 s66, s58, 3
    s_add_u32 s65, s65, s66
    s_lshl_b32 s66, s64, 1
    s_add_u32 s65, s65, s66
    s_lshl_b32 s65, s65, 10
    s_add_u32 s66, s65, {112*1024}
    s_add_u32 s67, s65, {2*112*1024}
    s_add_u32 s68, s65, {3*112*1024}
    s_lshl_b32 s71, s58, 2
    s_add_u32 s71, s71, s64              ; pair P
    s_mul_i32 s72, s71, 37
    s_lshr_b32 s72, s72, 8               ; P / 7
    s_mul_i32 s73, s72, 7
    s_sub_u32 s71, s71, s73
    s_lshl_b32 s71, s71, 2
    s_lshl_b32 s73, s59, 3
    s_add_u32 s72, s72, s73
    s_lshl_b32 s72, s72, 7
    s_add_u32 s71, s71, s72
    s_add_u32 s71, s71, {FH}
    v_lshlrev_b32 v1, 4, v0
    ''')
    srd(a, 36, 16, 0, SZ_WG)
    srd(a, 52, 22, OFF_ST, SZ_ST)
    wd_addr(a, 29, 5, 6)
    a.e(f'''
    v_and_b32 v14, 31, v0                ; l31
    v_lshrrev_b32 v3, 5, v0              ; h
    v_bfe_u32 v9, v0, 1, 3
    v_xor_b32 v9, v9, v3
    v_lshlrev_b32 v9, 4, v9
    v_lshl_add_u32 v8, v14, 7, v9        ; X base0
    v_lshlrev_b32 v14, 2, v14
    v_bfe_u32 v9, v0, 2, 2               ; r
    v_lshl_add_u32 v10, v3, 3, v9        ; 8h + r
    v_lshlrev_b32 v2, 8, v10
    v_xor_b32 v9, s64, v9
    v_lshl_add_u32 v2, v9, 6, v2
    v_bfe_u32 v9, v0, 4, 1
    v_lshl_add_u32 v2, v9, 5, v2
    v_and_b32 v9, 3, v0
    v_lshl_add_u32 v2, v9, 3, v2
    v_add_u32 v3, 0x10000, v2
    v_add_u32 v4, 0x20000, v2
    v_mov_b32 v7, {RCNT}
    v_mov_b32 v16, 0
    v_mov_b32 v17, 0
    v_mov_b32 v18, 0
    v_mov_b32 v19, 0
    s_mov_b32 s85, 0xffff0000
    s_lshl_b32 s70, s59, 9
    ''')
    for r in range(84, 108): a.e(f'v_mov_b32 v{r}, 0')
    ML = [f'buffer_load_dword v{84+4*t}, v14, s[52:55], s70 offen offset:{t*128} sc1' for t in range(4)]
    extras = {}
    CLRA = opt('CLRA', 5)
    extras.setdefault(opt('L1K', 5), []).insert(0, lambda: l1_issue(vm, 28, 31))
    L1N = []
    srd(a, 32, 6, 0, SZ_WR)
    srd(a, 44, 8, 0, SZ_WR)
    srd(a, 48, 22, OFF_WT, SZ_WT)
    a.e(f'''
    s_mul_i32 s74, s64, 224
    s_add_u32 s74, s74, s62              ; task G
    s_lshr_b32 s75, s74, 6               ; (tm,q)
    s_lshl_b32 s75, s75, 8
    s_bfe_u32 s76, s74, {(2<<16)|4}      ; w
    s_lshl_b32 s76, s76, 4
    s_add_u32 s75, s75, s76
    s_bfe_u32 s76, s74, {(1<<16)|3}      ; par
    s_add_u32 s75, s75, s76              ; s0 (g = 0)
    s_mul_i32 s75, s75, 450
    s_and_b32 s75, s75, -4
    s_and_b32 s77, s74, 7                ; cb
    s_lshl_b32 s78, s77, 6
    s_add_u32 s75, s75, s78
    v_and_b32 v9, 7, v0
    v_lshrrev_b32 v10, 3, v0
    v_lshl_add_u32 v12, v9, 3, v10
    v_lshlrev_b32 v12, 2, v12
    v_mul_u32_u24 v11, 900, v10
    v_lshl_add_u32 v11, v9, 3, v11
    v_mul_u32_u24 v15, {4*WS}, v10
    v_lshl_add_u32 v15, v9, 4, v15
    s_lshl_b32 s77, s77, 5
    s_add_u32 s77, s77, 1
    s_sub_u32 s77, s77, s76
    s_mul_i32 s77, s77, {WS}
    s_and_b32 s76, s74, 15
    s_lshl_b32 s76, s76, 9
    s_add_u32 s76, s76, {FW}
    s_lshr_b32 s78, s74, 3
    s_lshl_b32 s78, s78, 7
    s_cmp_lt_u32 s74, 512
    s_cselect_b32 s74, s78, 0x40000000
    s_cselect_b32 s76, s76, 0x40000000
    s_add_u32 s74, s74, s77
    s_mov_b32 s82, 0x05040100
    s_mov_b32 s83, 0x07060302
    v_lshlrev_b32 v13, 7, v0
    v_cmp_gt_u32 vcc, 4, v0
    v_cndmask_b32 v13, v31, v13, vcc
    ''')
    for i in range(4):
        for mat in range(2):
            vm.issue(f'buffer_load_dwordx2 {d2(108+8*mat+2*i)}, v11, s[{32+12*mat}:{35+12*mat}], s75 offen', 'ja')
        if i < 3: a.e(f's_add_u32 s75, s75, {64*450}')
    fl_srd(a, 44)
    def jb(h):
        vm.wait('ja')
        for r in range(8*h, 8*h + 8): a.e(f'ds_bpermute_b32 v{108+r}, v12, v{108+r}')
    def js(c):
        for mat in range(2):
            for ip in range(2):
                r = 108 + 8*mat + 4*ip + (c >> 1)
                a.e(f'v_perm_b32 v{124+2*mat+ip}, v{r+2}, v{r}, s{82+(c&1)}')
        vm.issue(f'buffer_store_dwordx4 {q(124)}, v15, s[48:51], s74 offen{SS}', 'wt')
        if c < 3: a.e(f's_add_u32 s74, s74, {WS}')
    def jsig():
        vm.wait('wt')
        vm.issue('buffer_atomic_add v30, v13, s[44:47], s76 offen sc1', 'fw')
    JB = opt('JB', 2)
    for h in range(2): extras.setdefault(JB + h, []).append(lambda h=h: jb(h))
    for c in range(4): extras.setdefault(JB + 2 + c, []).append(lambda c=c: js(c))
    assert opt('JSK', 14) >= 2*CLRA + 2
    extras.setdefault(opt('JSK', 14), []).append(jsig)
    def flag(n):
        if n == 'a': L1N.append(len(vm.ops) - 1 - vm.ops.index('l1'))
        a.e(f's_cmp_eq_u32 s3, 0\ns_cbranch_scc1 gu_fl{n}')
        a.label(f'gu_fl{n}_ret')
    extras.setdefault(2*CLRA - 1, []).insert(0, lambda: flag('a'))
    for l in ML: extras.setdefault(opt('MLK', 23), []).append(lambda l=l: vm.issue(l, 'ml'))
    def preb(c):
        tag = {0: ('w', 0), 1: ('w', 1), }.get(c)
        if tag:
            n = vm.cnt(tag)
            if n is not None: return f' vmcnt({n})'
        return ''
    def reads(k):
        buf = k & 1; ksl = k & 3; u = k >> 2
        xb = 5 + (k & 1)
        XB = [f'ds_read_b128 {q(48+16*buf+4*t)}, v{xb} offset:{t*4096}' for t in range(4)]
        c = k >> 1; slot = SLOT[('w', c)]; kk = k & 1
        WA = []
        for i in range(2):
            for rho in range(2):
                d = 32 + 8*buf + 4*i + 2*rho
                off = (slot & 3)*16384 + i*8192 + kk*4096 + rho*1024
                WA.append(f'ds_read_b64_tr_b16 {d2(d)}, v{2 + (slot >> 2)} offset:{off}')
        return [WA[0], WA[1], XB[0], WA[2], WA[3], XB[1], XB[2], XB[3]]
    def xbase(k):
        return f'v_xor_b32 v{5 + (k & 1)}, {SLOT[("x", k >> 2)]*16384 + (k & 3)*32}, v8'
    def cs(k):
        buf = k & 1; L = []
        n = 0
        for i in range(2):
            for dd in range(4):
                r = 32 + 8*buf + 4*i + dd; t = 20 + 2*(n & 3); n += 1
                L += [f'v_lshlrev_b32 v{t}, 16, v{r}', f'v_and_b32 v{t+1}, s85, v{r}',
                      f'v_add_f32 v{16+2*i}, v{16+2*i}, v{t}', f'v_add_f32 v{17+2*i}, v{17+2*i}, v{t+1}']
        return L
    def mfmas(k):
        buf = k & 1
        return [f'v_mfma_f32_32x32x16_bf16 v[{acc(i,t)}:{acc(i,t)+15}], {q(32+8*buf+4*i)}, {q(48+16*buf+4*t)}, ' + ('0' if k == 0 else f'v[{acc(i,t)}:{acc(i,t)+15}]')
                for t in range(4) for i in range(2)]
    a.e(xbase(0)); a.e(xbase(1))
    a.e(f's_waitcnt lgkmcnt(0){preb(0)}')
    m2(a, 1, 1)
    a.e('s_barrier')
    m2(a, 2, 1)
    for l in reads(0): a.e(l)
    for k in range(28):
        M = mfmas(k)
        if k & 1:
            if k == 2*CLRA - 1: m2(a, 4, 5)
            a.e(f's_waitcnt lgkmcnt(0){preb((k+1)//2)}')
        else:
            a.e('s_waitcnt lgkmcnt(0)')
        R = reads(k+1) if k < 27 else []
        V = cs(k) if opt('CS', 1) else []
        if k + 2 < 28: V = V[:16] + [xbase(k+2)] + V[16:]
        X = extras.get(k, [])
        for g in range(8):
            a.e(M[g])
            if g == 0 and (k & 1):
                if (k+1)//2 <= LB: a.e('s_barrier')
                else: a.e(f's_mov_b64 exec, 1\nds_add_u32 v7, v30 offset:{4*((k+1)//2)}\ns_mov_b64 exec, -1')
                if (k+1)//2 in (3, 6, 9, 12): m2(a, (k+1)//6, 4)
            nr = 2 if g < 4 else 0
            nv = (3 if g < 4 else 6) if R else 5
            for l in R[2*g:2*g+nr]: a.e(l)
            for l in V[:nv]: a.e(l)
            V = V[nv:]
            if g >= 2 and X: emit(a, X.pop(0))
        for l in V: a.e(l)
        for l in X: emit(a, l)
    m2(a, 3, 1)
    for i in range(2):
        a.e(f'''
        v_add_f32 v{16+2*i}, v{16+2*i}, v{17+2*i}
        v_cvt_pk_bf16_f32 v{20+i}, v{16+2*i}, v{16+2*i}
        v_and_b32 v{20+i}, s85, v{20+i}
        v_sub_f32 v{20+i}, v{16+2*i}, v{20+i}
        v_cvt_pk_bf16_f32 v{100+4*i}, v{16+2*i}, v{20+i}
        ''')
    vm.wait('ml')
    check(a, 'gu_m', [84, 88, 92, 96], 20, 21, ML, 0)
    for t in range(4):
        for i in range(2):
            a.e(f'v_mfma_f32_32x32x16_bf16 v[{acc(i,t)}:{acc(i,t)+15}], {q(100+4*i)}, {q(84+4*t)}, v[{acc(i,t)}:{acc(i,t)+15}]')
    n = 0
    for t in range(4):
        for jp in range(2):
            o = 32 + 4 * n; n += 1
            for dd in range(4):
                g0 = acc(0, t) + 8*jp + 2*dd; u0 = acc(1, t) + 8*jp + 2*dd
                a.e(f'''
                v_max_f32 v{g0}, 0, v{g0}
                v_max_f32 v{g0+1}, 0, v{g0+1}
                v_mul_f32 v{g0}, v{g0}, v{u0}
                v_mul_f32 v{g0+1}, v{g0+1}, v{u0+1}
                v_cvt_pk_bf16_f32 v{o+dd}, v{g0}, v{g0+1}
                ''')
            vm.issue(f'buffer_store_dwordx4 {q(o)}, v1, s[28:31], s{65+t} offen offset:{jp*1024}{HSS}', 'hst')
    m2(a, 4, 1)
    a.e('v_add_u32 v28, s71, v31')
    m2(a, 1, 2)
    a.e(f'''
    s_lshl_b32 s65, s64, 2
    s_add_u32 s65, s65, {FLG}
    v_mov_b32 v4, s65
    s_mov_b32 s77, 400000
    ''')
    a.label('gu_sp'); a.fence()
    a.e(f'''
    ds_read_b32 v5, v4
    s_waitcnt lgkmcnt(0)
    v_readfirstlane_b32 s65, v5
    s_sub_u32 s77, s77, 1
    s_cbranch_scc1 gu_spok
    s_cmp_eq_u32 s65, 0
    s_cbranch_scc1 gu_sp
    ''')
    a.label('gu_spok'); a.fence()
    m2(a, 2, 2)
    a.e('s_branch gemm2')
    emit_stubs(a)
    a.label('gu_fla'); a.fence()
    m2(a, 1, 5)
    a.e(f's_waitcnt vmcnt({L1N[0]})')
    m2(a, 2, 5)
    l1_check(a, 'gua', 28, 31)
    m2(a, 3, 5)
    a.e('s_branch gu_fla_ret')
    a.label('gu_helper'); a.fence()
    vm = vmh
    a.e(f'''
    s_and_b32 s66, s64, 1
    s_lshl_b32 s66, s66, 2
    s_add_u32 s66, s66, s65
    s_lshr_b32 s67, s64, 1
    s_add_u32 s66, s66, s67
    s_mul_i32 s82, s66, {16*896}
    s_add_u32 s83, s82, {32*896}
    s_mul_i32 s84, s64, 28672
    s_lshl_b32 s86, s64, 11
    s_lshl_b32 s87, s64, 12
    ''')
    def item(it):
        L = []
        kind, n = it; sb = SLOT[it] * 16384
        if kind == 'x':
            for jj in range(4):
                def f(jj=jj):
                    if jj == 0:
                        a.e(f's_add_u32 s78, s78, 128\ns_cmp_eq_u32 s78, 896\ns_cselect_b32 s78, 0, s78\ns_mul_i32 s85, s78, 1792\ns_add_u32 s85, s85, s84')
                    if jj % 2 == 0: a.e(f's_add_u32 s73, s{82+(jj>>1)}, s78')
                    a.e(f's_add_u32 m0, s87, {sb + jj*1024}')
                    vm.issue(f'buffer_load_dwordx4 v{12+(jj&1)}, s[24:27], s73 offen lds', it)
                L.append(f)
        elif kind == 'w':
            for e in range(2):
                for mat in range(2):
                    def f(e=e, mat=mat):
                        if mat == 0: a.e(f's_add_u32 s73, s85, {(n&1)*114688 + e*14336}')
                        a.e(f's_add_u32 m0, s86, {sb + mat*8192 + e*1024}')
                        vm.issue(f'buffer_load_dwordx4 v11, s[{28+4*mat}:{31+4*mat}], s73 offen lds', it)
                    L.append(f)
        else:
            for i in range(4):
                def f(i=i):
                    if i == 0:
                        a.e(f's_add_u32 s85, s61, {n}\ns_cmp_ge_u32 s85, 7\ns_cselect_b32 s73, 7, 0\ns_sub_u32 s85, s85, s73' if ROT2 else f's_mov_b32 s85, {n}')
                        a.e(f's_mul_i32 s85, s85, 28672\ns_add_u32 s85, s85, s{74 if kind == "a" else 75}')
                    a.e(f's_add_u32 s73, s85, {i*7168}\ns_add_u32 m0, s87, {sb + i*1024}')
                    vm.issue(f'buffer_load_dwordx4 v29, s[36:39], s73 offen lds', it)
                L.append(f)
        return L
    for it in ITEMS[3:]:
        if WHEN[it] == -1:
            for f in item(it): f()
    srd(a, 36, 16, 0, SZ_WG)
    wd_addr(a, 29, 5, 6)
    a.e(f'''
    s_mul_i32 s74, s64, {224*896}
    s_lshl_b32 s75, s61, 7
    s_add_u32 s74, s74, s75
    s_add_u32 s75, s74, {4*224*896}
    v_lshlrev_b32 v30, 2, v0
    v_add_u32 v30, {XCNT}, v30
    v_mov_b32 v31, 0
    ds_write_b32 v30, v31
    ''')
    import re
    K = [re.sub(r'\bv28\b', 'v53', l) for l in fft_consts()]
    KPRE = opt('KPRE', 40)
    for l in K[:KPRE]: a.e(l)
    K = K[KPRE:]
    KS = [int(x) for x in os.environ.get('KS', '0,1,2,3,4,5,6,7').split(',')]
    kper = -(-len(K) // len(KS))
    for c in range(LB + 1):
        ns = [vm.cnt(t) for t in ([('w', c)] if c < LB else [('w', 13)]) + ([('x', c // 2)] if c % 2 == 0 and c <= 12 else [])]
        ns = [n for n in ns if n is not None]
        a.e('s_waitcnt lgkmcnt(0)' + (f' vmcnt({min(ns)})' if ns else ''))
        if c == 0: m2(a, 1, 1)
        a.e('s_barrier')
        if c == 0: m2(a, 2, 1)
        if c == 8: fft_setup(a)
        work = []
        for it in ITEMS:
            if WHEN[it] == c: work += item(it)
        if c == LB: work += ['s_lshl_b32 s73, s64, 28', lambda: vm.issue('buffer_load_dword v17, v18, s[40:43], s73 offen sc1', 'fd')]
        if c in KS: work += K[KS.index(c)*kper:(KS.index(c)+1)*kper]
        for w in work: emit(a, w)
        if c == 5: m2(a, 1, 4)
    m2(a, 2, 4)
    vm.wait('fd')
    m2(a, 3, 1)
    a.e(f's_mov_b32 s76, 0\nv_mov_b32 v30, {RCNT}')
    for c in range(LB + 1, LB + 1 + HK): HOOK.setdefault(-1, []).append(c)
    fft_body(a, vm)
    a.e('s_cmp_lg_u32 s76, 0\ns_cbranch_scc1 fft_end')
    a.e('s_branch gemm2h')
    vm = VM(a)
    for c in range(LB + 1, LB + 1 + HK):
        a.label(f'hk{c}'); a.fence()
        a.e('s_mov_b32 s77, 400000')
        a.label(f'hk{c}_sp'); a.fence()
        a.e(f'''
        ds_read_b32 v31, v30 offset:{4*c}
        s_waitcnt lgkmcnt(0)
        v_readfirstlane_b32 s73, v31
        s_sub_u32 s77, s77, 1
        s_cbranch_scc1 hk{c}_go
        s_cmp_lt_u32 s73, 4
        s_cbranch_scc1 hk{c}_sp
        ''')
        a.label(f'hk{c}_go'); a.fence()
        for it in ITEMS:
            if WHEN[it] == c:
                for f in item(it): f()
        a.e(f's_branch hk{c}_ret')
    a.label('fft_end'); a.fence()
    a.e(f'v_mov_b32 v30, 1\ns_waitcnt vmcnt(0)\nbuffer_store_dword v30, v28, s[40:43], 0 offen{SS}')
    endpgm(a, 0, 22)
    emit_stubs(a)

WIMG = 57344
SSCR = WIMG + 65536
def dft(a):
    a.label('dft_wg'); a.fence()
    vm = VM(a)
    RAW, PM = 32, 16
    FPRE = opt('FPRE', 4); assert FPRE <= 5
    def FR(par, qq): return 176 + 8*(qq % (FPRE + 1)) + 4*par
    AC = 64
    WS_ = 64
    a.e(f'''
    s_sub_u32 s57, s57, 28
    s_lshr_b32 s59, s56, 1
    s_lshl_b32 s59, s59, 1
    s_and_b32 s65, s56, 1
    s_lshl_b32 s65, s65, 3
    s_add_u32 s59, s59, s65
    s_lshr_b32 s65, s57, 1
    s_add_u32 s59, s59, s65              ; g
    s_and_b32 s58, s57, 1                ; hf
    s_lshl_b32 s60, s56, 2
    s_add_u32 s60, s60, s57              ; di
    s_lshl_b32 s65, s59, 3
    s_and_b32 s66, s3, 6
    s_add_u32 s65, s65, s66
    s_add_u32 s65, s65, s58
    s_mul_i32 s65, s65, {16*896}
    s_and_b32 s66, s3, 1
    s_cmp_eq_u32 s66, 1
    s_cselect_b64 vcc, -1, 0
    v_cndmask_b32 v12, v12, v13, vcc
    s_lshl_b32 s71, s3, 10
    v_lshrrev_b32 v3, 5, v0              ; h
    v_and_b32 v1, 31, v0                 ; l31
    s_cmp_eq_u32 s3, 7
    s_waitcnt lgkmcnt(0)
    s_cbranch_scc1 l1_clr
    ''')
    a.label('l1_ret')
    srd(a, 24, 4, 0, SZ_X)
    a.e('s_mov_b32 s73, s65')
    def xdma(vm, u):
        a.e(f's_add_u32 s67, s73, {u*128}\ns_add_u32 m0, s71, {u*8192}')
        vm.issue(f'buffer_load_dwordx4 v12, s[24:27], s67 offen lds', ('x', u))
    for u in range(7): xdma(vm, u)
    srd(a, 44, 22, OFF_Z1, SZ_Z1)
    a.e(f's_mov_b32 s79, {TMO}')
    a.e(f'''
    s_lshl_b32 s83, s59, 9
    s_lshl_b32 s69, s58, 8
    s_add_u32 s83, s83, s69              ; g*512 + hf*256
    ''')
    a.e(f'''
    v_lshlrev_b32 v2, 5, v1
    v_lshl_add_u32 v2, v3, 13, v2
    v_bfe_u32 v6, v0, 3, 1
    v_lshl_add_u32 v2, v6, 4, v2
    v_add_u32 v2, s71, v2
    v_xor_b32 v6, 16, v2
    s_mov_b32 s70, 0x05040100
    s_mov_b32 s71, 0x07060302
    s_cmp_eq_u32 s3, 7
    s_cbranch_scc1 dft_stat
    ''')
    def prep(prs, regs):
        for pr, R in zip(prs, regs):
            if pr == 3: a.e('s_mov_b32 exec_hi, 0')
            a.e(f'ds_read_b128 {q(R)}, v2 offset:{pr*16384}\nds_read_b128 {q(R+4)}, v6 offset:{pr*16384}')
        if 3 in prs: a.e('s_mov_b64 exec, -1')
        for n, (pr, R) in enumerate(zip(prs, regs)):
            a.e(f's_waitcnt lgkmcnt({2*(len(prs) - 1)})')
            for par in range(2):
                for jj in range(4):
                    a.e(f'v_perm_b32 v{R+8+4*par+jj}, v{R+2*jj+1}, v{R+2*jj}, s{70+par}')
            if pr == 3: a.e('s_mov_b32 exec_hi, 0')
            a.e(f'ds_write_b128 v2, {q(R+8)} offset:{pr*16384}\nds_write_b128 v6, {q(R+12)} offset:{pr*16384}')
        if 3 in prs: a.e('s_mov_b64 exec, -1')
        a.e('s_waitcnt lgkmcnt(0)')
    vms = vm.copy()
    a.e(f'''
    v_and_b32 v8, 15, v0
    v_lshlrev_b32 v8, 4, v8              ; l15*16
    v_lshrrev_b32 v9, 4, v0              ; 2h + b16
    v_mul_u32_u24 v10, {ZS1}, v9
    v_add_u32 v10, v10, v8
    v_sub_u32 v11, 3, v9
    v_mul_u32_u24 v11, {ZS1}, v11
    v_add_u32 v11, v11, v8
    s_lshl_b32 s65, s3, 4                ; 16 i
    s_mul_i32 s84, s65, {ZS1}
    s_add_u32 s84, s84, s83
    s_sub_u32 s66, 221, s65
    s_mul_i32 s66, s66, {ZS1}
    s_add_u32 s86, s66, s83
    v_add_u32 v13, s66, v11
    v_add_u32 v8, {112*ZS1}, v8
    s_cmp_eq_u32 s3, 0
    s_cselect_b32 s80, -1, 0
    s_mov_b32 s81, 0                     ; s[80:81]: wave 0, h = 0
    s_cselect_b32 s66, 16, 0
    v_cmp_gt_u32 vcc, s66, v0
    v_cndmask_b32 v13, v13, v8, vcc
    ''')
    def z1st(kind, n, r, tag):
        if kind == 0:
            a.e(f's_add_u32 s67, s84, {4*n*ZS1}')
            vm.issue(f'buffer_store_dwordx4 {q(r)}, v10, s[44:47], s67 offen{SS}', tag)
        elif n == 0:
            vm.issue(f'buffer_store_dwordx4 {q(r)}, v13, s[44:47], s83 offen{SS}', tag)
        else:
            a.e(f's_sub_u32 s67, s86, {4*n*ZS1}')
            vm.issue(f'buffer_store_dwordx4 {q(r)}, v11, s[44:47], s67 offen{SS}', tag)
    a.e(f'''
    v_lshrrev_b32 v8, 1, v1
    v_add_u32 v8, s65, v8                ; p
    v_and_b32 v9, 1, v1
    v_cvt_f32_u32 v14, v9
    v_mul_f32 v14, 0x3e800000, v14       ; phase O
    v_cmp_eq_u32 vcc, 1, v1
    s_cmp_eq_u32 s3, 0
    s_cselect_b64 vcc, vcc, 0
    v_mov_b32 v9, 112
    v_cndmask_b32 v8, v8, v9, vcc
    v_cndmask_b32 v15, v14, 0, vcc       ; phase E
    v_cvt_f32_u32 v8, v8
    v_mul_f32 v8, {fh(1/448)}, v8        ; p/448
    v_mul_f32 v9, {fh(32.0)}, v8
    v_cos_f32 v4, v9
    v_add_f32 v4, v4, v4
    v_lshlrev_b32 v16, 4, v3
    v_cvt_f32_u32 v16, v16             ; 16 h
    v_fma_f32 v15, v16, v8, v15         ; arg E (j=0,q=0)
    v_fma_f32 v14, v16, v8, v14
    v_add_f32 v14, v14, v8               ; arg O
    v_add_f32 v16, v8, v8               ; 2 step
    s_mov_b32 s87, 0x05040100
    s_mov_b32 s78, 0x07060302
    ''')
    P0, P1 = 144, 160
    for par in range(2):
        ar = 15 - par
        for j in range(8):
            a.e(f'''
            v_sub_f32 v17, v{ar}, v9
            v_cos_f32 v{P0+8*par+j}, v{ar}
            v_cos_f32 v{P1+8*par+j}, v17
            v_add_f32 v{ar}, v{ar}, v16
            ''')
    def fgen(qq):
        cur, prv = (P0, P1) if qq % 2 == 0 else (P1, P0)
        L = []
        for par in range(2):
            for jj in range(4):
                L.append(f'v_cvt_pk_bf16_f32 v{FR(par, qq)+jj}, v{cur+8*par+2*jj}, v{cur+8*par+2*jj+1}')
        if qq < 13:
            for r in range(0, 16, 2):
                L.append(f'v_pk_fma_f32 {d2(prv+r)}, v[4:5], {d2(cur+r)}, {d2(prv+r)} op_sel_hi:[0,1,1] neg_lo:[0,0,1] neg_hi:[0,0,1]')
        return L
    for qq in range(FPRE):
        for l in fgen(qq): a.e(l)
    a.e(f'''
    v_bfe_u32 v9, v0, 1, 3
    v_lshlrev_b32 v8, 1, v3
    v_xor_b32 v9, v9, v8
    v_lshlrev_b32 v9, 4, v9
    v_lshl_add_u32 v8, v1, 7, v9
    v_xor_b32 v9, 16, v8
    v_xor_b32 v14, 64, v8
    v_xor_b32 v15, 80, v8
    ''')
    m2(a, 1, 3)
    vm.wait(('x', 1))
    prep([0], [16])
    m2(a, 1, 1)
    a.e('s_barrier')
    m2(a, 2, 1)
    def rd(qq):
        b = RAW + 16 * (qq & 1)
        base = (8, 9) if qq % 2 == 0 else (14, 15)
        return [f'ds_read_b128 {q(b+8*tau+4*e)}, v{base[e]} offset:{(qq>>1)*8192 + tau*4096}' for tau in range(2) for e in range(2)]
    for l in rd(0): a.e(l)
    JR = 128
    for qq in range(14):
        b = RAW + 16 * (qq & 1)
        nxt = rd(qq+1) if qq < 13 else []
        a.e('s_waitcnt lgkmcnt(0)')
        if qq == 3:
            m2(a, 2, 3)
            vm.wait(('x', 6))
            prep([1, 2, 3], [16, 128, 240])
            a.e('s_barrier')
            m2(a, 3, 3)
        if qq == 5: m2(a, 1, 2)
        if qq == 10: m2(a, 4, 2)
        if qq == 12: m2(a, 1, 4)
        if qq == 7: m2(a, 2, 2)
        for l in nxt: a.e(l)
        G = fgen(qq + FPRE) if qq + FPRE < 14 else []
        def ge(l): vm.issue(l, 'wt') if l.startswith('buffer') else a.e(l)
        ng = (len(G) + 3) // 4
        for tau in range(2):
            for par in range(2):
                d = AC + 16*(2*par + tau)
                a.e(f'v_mfma_f32_32x32x16_bf16 v[{d}:{d+15}], {q(FR(par, qq))}, {q(b+8*tau+4*par)}, ' + ('0' if qq == 0 else f'v[{d}:{d+15}]'))
                for l in G[:ng]: ge(l)
                G = G[ng:]
        assert not G
    m2(a, 3, 1)
    a.e(f'''
    v_lshlrev_b32 v8, 3, v1
    v_add_u32 v8, {SSCR + 512}, v8
    ''')
    m2(a, 2, 4)
    a.e(f'v_mov_b32 v9, {RCNT}\ns_mov_b32 s77, 400000')
    a.label('df_sp'); a.fence()
    a.e(f'''
    ds_read_b32 v20, v9
    ds_read_b64 v[16:17], v8
    ds_read_b64 v[18:19], v8 offset:256
    s_waitcnt lgkmcnt(0)
    v_readfirstlane_b32 s67, v20
    s_sub_u32 s77, s77, 1
    s_cbranch_scc1 df_spok
    s_cmp_eq_u32 s67, 0
    s_cbranch_scc1 df_sp
    ''')
    a.label('df_spok'); a.fence()
    m2(a, 3, 4)
    m2(a, 4, 3)
    for n in range(4):
        LO = 144 + 8*n; HI = LO + 4
        for e in range(2):
            aa = 2*n + e
            for tau in range(2):
                E = AC + 16*tau + 2*aa; O = AC + 32 + 16*tau + 2*aa; r = 16 + 2*tau
                t = 20 + 6*tau
                a.e(f'''
                v_mul_f32 v{O}, v{O}, v{r}
                v_mul_f32 v{O+1}, v{O+1}, v{r}
                v_fma_f32 v{t}, v{E}, v{r}, v{O}
                v_fma_f32 v{t+1}, v{E+1}, v{r}, v{O+1}
                v_fma_f32 v{t+2}, v{E}, v{r}, -v{O}
                v_fma_f32 v{t+3}, -v{E+1}, v{r}, v{O+1}
                ''')
                if aa == 0:
                    a.e(f'''
                    v_mul_f32 v{t+4}, v{E+1}, v{r}
                    v_sub_f32 v{t+5}, v{t}, v{r+1}
                    v_cndmask_b32 v{t}, v{t}, v{t+5}, s[80:81]
                    v_cndmask_b32 v{t+1}, v{t+1}, v{t+2}, s[80:81]
                    v_cndmask_b32 v{t+2}, v{t+2}, v{t+4}, s[80:81]
                    v_cndmask_b32 v{t+3}, v{t+3}, v{O+1}, s[80:81]
                    ''')
                a.e(f'''
                v_cvt_pk_bf16_f32 v{LO+2*tau+e}, v{t}, v{t+1}
                v_cvt_pk_bf16_f32 v{HI+2*tau+e}, v{t+2}, v{t+3}
                ''')
        for r in (LO, LO+2, HI, HI+2):
            a.e(f'v_permlane16_swap_b32 v{r}, v{r+1}')
        z1st(0, n, LO, 'z1'); z1st(1, n, HI, 'z1')
    m2(a, 4, 1)
    a.e('s_waitcnt vmcnt(0)\ns_barrier')
    m2(a, 4, 4)
    a.label('dft_tail'); a.fence()
    a.e('s_cmp_lg_u32 s2, 0\ns_cbranch_scc1 dft_end\ns_cmp_lt_u32 s3, 4\ns_cbranch_scc1 dft_end')
    vm = VM(a)
    for l in fft_consts(): a.e(l)
    a.e(f's_mov_b32 s62, 0\ns_mov_b32 s63, 224\ns_mov_b32 s76, 1\nv_mov_b32 v29, 0\nv_mov_b32 v17, 0')
    fft_setup(a)
    a.e('s_branch fft_body')
    a.label('dft_end'); a.fence()
    endpgm(a, 0, 22)
    a.label('l1_clr'); a.fence()
    assert OFF_FL == OFF_ST + SZ_ST and SZ_FL <= 24*3072
    srd(a, 48, 22, OFF_ST, SZ_ST + SZ_FL)
    a.e(f'''
    v_lshlrev_b32 v24, 4, v0
    s_lshl_b32 s80, s60, 11
    s_add_u32 s67, s80, 2048
    s_mul_i32 s81, s60, 3072
    s_sub_u32 s81, s81, {8*3072 - SZ_ST}
    s_cmp_lt_u32 s60, 8
    s_cselect_b32 s80, s80, s81
    s_cselect_b32 s50, s67, s50
    s_cselect_b32 s67, -1, 0
    ''')
    for i in range(4): a.e(f'v_mov_b32 v{16+i}, s67')
    for i in range(3): a.e(f'buffer_store_dwordx4 {q(16)}, v24, s[48:51], s80 offen offset:{i*1024}{SS}')
    a.e('s_branch l1_ret')
    a.label('dft_stat'); a.fence()
    vm = vms
    srd(a, 52, 22, OFF_ST, SZ_ST)
    dbg_srd(a)
    fl_srd(a, 36)
    a.e(f'''
    v_lshlrev_b32 v4, 2, v0
    v_lshlrev_b32 v23, 20, v0
    v_mov_b32 v22, 1
    ''')
    a.e(f'''
    v_add_u32 v30, {XCNT}, v4
    v_mov_b32 v31, 0
    ds_write_b32 v30, v31
    v_and_b32 v8, 15, v0                 ; n
    v_lshrrev_b32 v9, 4, v0              ; q4
    v_bfe_u32 v10, v0, 1, 3              ; f
    v_xor_b32 v10, v10, v9
    v_lshlrev_b32 v10, 4, v10
    v_lshl_add_u32 v10, v8, 7, v10       ; kk = 0
    v_xor_b32 v11, 64, v10               ; kk = 1
    v_mov_b32 v144, 0x3f803f80
    v_mov_b32 v145, 0x3f803f80
    v_mov_b32 v146, 0x3f803f80
    v_mov_b32 v147, 0x3f803f80
    v_lshlrev_b32 v8, 3, v8
    v_add_u32 v8, {SSCR}, v8
    v_lshlrev_b32 v9, 3, v0
    v_add_u32 v9, {SSCR}, v9
    v_and_b32 v13, 3, v0
    v_cmp_eq_u32 s[68:69], 1, v13
    v_cmp_eq_u32 s[86:87], 2, v13
    v_cmp_eq_u32 s[74:75], 3, v13
    s_mov_b32 s85, 0xffff0000
    s_waitcnt vmcnt(7)
    ''')
    vm.issue('buffer_atomic_add v22, v23, s[40:43], 0 offen sc1', 'l1s')
    m2(a, 1, 5)
    m2(a, 2, 5)
    vm.wait(('x', 1))
    a.e('s_waitcnt lgkmcnt(0)')
    prep([0], [96])
    m2(a, 1, 1)
    a.e('s_barrier')
    m2(a, 2, 1)
    a.e('s_setprio 2')
    QA, SA, RB = 160, 176, 32
    def srd_(u):
        b = RB + 32 * (u & 1)
        return [f'ds_read_b128 {q(b+16*kk+4*tt)}, v{10+kk} offset:{u*8192 + tt*2048}' for kk in range(2) for tt in range(4)]
    for l in srd_(0): a.e(l)
    for u in range(7):
        b = RB + 32 * (u & 1)
        a.e('s_waitcnt lgkmcnt(0)')
        if u == 1:
            vm.wait(('x', 6))
            prep([1, 2, 3], [96, 112, 128])
            a.e('s_barrier')
            l1_issue(vm, 24, 23)
        if u < 6:
            for l in srd_(u+1): a.e(l)
        for kk in range(2):
            for tt in range(4):
                r = b + 16*kk + 4*tt; first = (u == 0 and kk == 0)
                a.e(f'v_mfma_f32_16x16x32_bf16 {q(QA+4*tt)}, {q(r)}, {q(r)}, ' + ('0' if first else q(QA+4*tt)))
                a.e(f'v_mfma_f32_16x16x32_bf16 {q(SA+4*tt)}, {q(144)}, {q(r)}, ' + ('0' if first else q(SA+4*tt)))
    for tt in range(4):
        a.e(f'''
        v_cndmask_b32 v{SA+4*tt+1}, v{QA+4*tt}, v{QA+4*tt+1}, s[68:69]
        v_cndmask_b32 v{SA+4*tt+1}, v{SA+4*tt+1}, v{QA+4*tt+2}, s[86:87]
        v_cndmask_b32 v{SA+4*tt+1}, v{SA+4*tt+1}, v{QA+4*tt+3}, s[74:75]
        ''')
    a.e('s_mov_b32 exec_lo, 0x00f0000f\ns_mov_b32 exec_hi, 0xf0000f00')
    for tt in range(4):
        a.e(f'ds_write_b64 v8, {d2(SA+4*tt)} offset:{tt*128}')
    a.e(f'''
    s_mov_b64 exec, -1
    s_mov_b32 s84, {fh(1.0/448)}
    s_waitcnt lgkmcnt(0)
    ds_read_b64 v[16:17], v9
    s_waitcnt lgkmcnt(0)
    ''')
    for st in STAT_STEPS[:6]: a.e(st.format(m=16, v=17, t=18))
    a.e('v_cvt_pk_bf16_f32 v20, -v16, -v16')
    for st in STAT_STEPS[6:]: a.e(st.format(m=16, v=17, t=18))
    a.e(f'''
    v_mul_f32 v21, v17, v17
    v_mov_b32 v18, v17
    v_mul_f32 v19, {fh(448.0)}, v16
    s_add_u32 s84, s83, 8192
    ''')
    m2(a, 1, 2)
    a.e(f'''
    ds_write_b64 v9, v[18:19] offset:512
    v_mov_b32 v30, {RCNT}
    s_waitcnt lgkmcnt(0)
    ds_write_b32 v30, v22
    ''')
    vm.wait('l1')
    l1_check(a, 'dfs', 24, 23)
    vm.issue(f'buffer_store_dword v20, v4, s[52:55], s83 offen{SS}', 'st')
    vm.issue(f'buffer_store_dword v21, v4, s[52:55], s84 offen{SS}', 'st')
    a.e('s_setprio 0')
    m2(a, 3, 1)
    m2(a, 3, 2)
    a.e(f'''
    v_lshlrev_b32 v14, 7, v0
    s_lshl_b32 s67, s60, 2
    s_waitcnt vmcnt(0)
    ''')
    m2(a, 4, 1)
    a.e(f'''
    s_barrier
    buffer_atomic_add v22, v14, s[36:39], 0 offen sc1
    s_branch dft_tail
    ''')

def gen_v2(a, name):
    a.raw('.p2align 8')
    a.label(name)
    a.e(f'''
    s_cmp_ge_u32 s2, 256
    s_cbranch_scc1 f_end
    ''')
    diag_start(a)
    a.e(f'''
    s_load_dwordx16 s[4:19], s[0:1], 0
    s_load_dwordx4 s[20:23], s[0:1], 64
    ''')
    if opt('IPF', 1):
        a.raw('  s_getpc_b64 s[86:87]')
        a.raw('pc0:')
        a.raw('  v_lshlrev_b32 v252, 7, v0')
        a.raw('  v_min_u32 v252, f_end-pc0, v252')
        a.raw('  v_mov_b32 v253, s87')
        a.raw('  v_add_co_u32 v252, vcc, s86, v252')
        a.raw('  v_addc_co_u32 v253, vcc, 0, v253, vcc')
        a.raw('  global_load_dword v255, v[252:253], off')
    a.e(f'''
    v_lshrrev_b32 v1, 6, v0
    v_and_b32 v0, 63, v0
    v_readfirstlane_b32 s3, v1
    v_lshrrev_b32 v3, 3, v0              ; r
    v_and_b32 v4, 7, v0                  ; a
    v_lshrrev_b32 v5, 4, v0              ; r>>1
    v_xor_b32 v4, v4, v5
    v_mul_u32_u24 v12, 896, v3
    v_lshl_add_u32 v12, v4, 4, v12
    v_xor_b32 v13, 64, v12
    v_add_u32 v13, {8*896}, v13
    s_and_b32 s56, s2, 7
    s_lshr_b32 s57, s2, 3
    s_add_u32 s57, s57, 28
    s_and_b32 s57, s57, 31
    s_and_b32 s64, s3, 3
    s_cmp_ge_u32 s57, 28
    s_cbranch_scc1 dft_wg
    s_lshr_b32 s65, s56, 1
    s_mul_i32 s65, s65, 28
    s_add_u32 s65, s65, s57
    s_lshr_b32 s58, s65, 3               ; ct
    s_and_b32 s59, s65, 7
    s_and_b32 s65, s56, 1
    s_lshl_b32 s65, s65, 3
    s_add_u32 s59, s59, s65              ; rb
    ''')
    if opt('LOC', 0): a.e('''
    s_lshr_b32 s58, s57, 1
    s_and_b32 s59, s57, 1
    s_lshl_b32 s65, s56, 1
    s_add_u32 s59, s59, s65
    ''')
    a.e(f'''
    s_mul_i32 s60, s57, 37
    s_lshr_b32 s60, s60, 8               ; j/7
    s_mul_i32 s61, s60, 7
    s_sub_u32 s61, s57, s61              ; dt64
    s_lshl_b32 s65, s56, 2
    s_add_u32 s60, s60, s65              ; st64
    s_mul_i32 s62, s56, 28
    s_add_u32 s62, s62, s57              ; p
    s_mov_b32 s63, s62
    ''')
    gu(a)
    gemm2(a)
    dft(a)
    a.label('f_end')
    a.e('s_endpgm')
```

```python
import struct
S, D, F = 2048, 448, 1792
SZ_X = S * D * 2
SZ_WR = S * 225 * 2
SZ_WG = D * F * 2
SZ_HF = 64 * 112 * 1024
SZ_WF = 14 * 112 * 1024
SZ_GF = 14 * 28 * 1024
import os
PAD = int(os.environ.get('PAD', '1'))
ZS1 = 8192 + 512 * PAD
WS = 8192 + 256 * PAD
ZS3 = 8192 + 256 * PAD
SZ_Z1 = 224 * ZS1
SZ_WT = 225 * WS
SZ_Z3 = 224 * ZS3
SZ_FL = 4096
OFF_HF = 0
OFF_WF = OFF_HF + SZ_HF
OFF_GF = OFF_WF + SZ_WF
OFF_Z1 = OFF_GF + SZ_GF
OFF_WT = OFF_Z1 + SZ_Z1
OFF_Z3 = OFF_WT + SZ_WT
OFF_FL = OFF_Z3 + SZ_Z3

def f2u(x):
    return struct.unpack('<I', struct.pack('<f', x))[0]
def fh(x):
    return '0x%08x' % f2u(x)

def srd(a, d, base, off, size):
    if off == 0:
        a.e(f's_mov_b32 s{d}, s{base}\ns_mov_b32 s{d+1}, s{base+1}')
    else:
        a.e(f's_add_u32 s{d}, s{base}, {off}\ns_addc_u32 s{d+1}, s{base+1}, 0')
    a.e(f's_mov_b32 s{d+2}, {size}\ns_mov_b32 s{d+3}, 0x00020000')

def kd(name, vgpr, sgpr, accum):
    return f""".p2align 6
.amdhsa_kernel {name}
  .amdhsa_next_free_vgpr {vgpr}
  .amdhsa_next_free_sgpr {sgpr}
  .amdhsa_accum_offset {accum}
  .amdhsa_group_segment_fixed_size 0
  .amdhsa_kernarg_size 80
  .amdhsa_user_sgpr_count 2
  .amdhsa_user_sgpr_kernarg_segment_ptr 1
  .amdhsa_system_sgpr_workgroup_id_x 1
.end_amdhsa_kernel
"""

import os
DIAG = int(os.environ.get('DIAG', '0'))
OFF_DIAG = 64 << 20
def diag_start(a):
    if not DIAG: return
    a.e('''
    s_memrealtime s[100:101]
    s_memtime s[88:89]
    ''')
    for i in range(1, 5): a.e(f's_mov_b64 s[{88+2*i}:{89+2*i}], 0')
def mark(a, i):
    if DIAG: a.e(f's_memtime s[{88+2*i}:{89+2*i}]')
def endpgm(a, kidx, wsb, wave='s3', nlast=0):
    if DIAG:
        a.e(f'''
        s_waitcnt vmcnt(0)
        s_memtime s[98:99]
        s_memrealtime s[84:85]
        s_load_dwordx2 s[80:81], s[0:1], 64
        s_getreg_b32 s86, hwreg(HW_REG_XCC_ID)
        s_getreg_b32 s87, hwreg(HW_REG_HW_ID)
        s_waitcnt lgkmcnt(0)
        s_mov_b64 exec, 1
        s_lshl_b32 s86, s86, 24
        s_and_b32 s87, s87, 0xffffff
        s_sub_u32 s86, 20000, s79
        s_sub_u32 s90, s90, s88
        s_sub_u32 s92, s92, s88
        s_sub_u32 s94, s94, s88
        s_sub_u32 s96, s96, s88
        s_sub_u32 s98, s98, s88
        s_lshl_b32 s82, s2, 3
        s_add_u32 s82, s82, {wave}
        s_lshl_b32 s82, s82, 5
        s_add_u32 s82, s82, {OFF_DIAG + kidx*(1<<17)}
        v_mov_b32 v0, s82
        v_mov_b32 v4, s100
        v_mov_b32 v5, s90
        v_mov_b32 v6, s92
        v_mov_b32 v7, s94
        v_mov_b32 v8, s96
        v_mov_b32 v9, s98
        v_mov_b32 v10, s84
        v_mov_b32 v11, s86
        global_store_dwordx4 v0, v[4:7], s[{wsb}:{wsb+1}]
        global_store_dwordx4 v0, v[8:11], s[{wsb}:{wsb+1}] offset:16
        s_and_b32 s83, s82, {0xffffffff - 128}
        s_cmp_lg_u32 s83, {OFF_DIAG + kidx*(1<<17) + int(os.environ.get('DBGW', '100'))*256}
        s_cbranch_scc1 diag_end_{_lab[0]}
        s_mul_i32 s83, {wave}, 6
        s_add_u32 s83, s83, 16
        v_mov_b32 v0, s83
        v_mov_b32 v12, s90
        v_mov_b32 v13, s92
        v_mov_b32 v14, s94
        v_mov_b32 v15, s96
        global_store_dwordx4 v0, v[12:15], s[80:81]
        global_store_dword v0, v9, s[80:81] offset:16
        ''')
        a.label(f'diag_end_{_lab[0]}'); _lab[0] += 1
    a.e('s_endpgm')
_lab = [0]
```

```python
from dsl import *
from c2 import *
import fused
from fused import VM, q, d2, m2, fft_consts, STAT_STEPS
from fused import C64R, C64I, C32R, C32I, TW1, TW2, XA, WV, DR, DI, ER, EI, PK, WU

SS = {0: ' sc0 sc1', 1: ' sc1', 2: ' sc0 sc1 nt', 3: ' sc1 nt'}[int(os.environ.get('SSM', '0'))]
MISC = 9 * 16384
XCH = MISC
XCNT = MISC + 8192
FLG = MISC + 8192 + 64
TMO = 20000
def acc(i, t): return 128 + 16 * (i * 4 + t)
def opt(name, dflt): return int(os.environ.get(name, str(dflt)))

ITEMS = []
for u in range(7): ITEMS += [('x', u), ('w', 2*u), ('w', 2*u+1)]
ITEMS += [('a', i) for i in range(4)] + [('b', i) for i in range(4)]
def schedule():
    la = opt('LA', 2)
    pre = opt('PRE', 5)
    free = list(range(9)); slot = {}; when = {}
    n = 0
    for _ in range(pre):
        slot[ITEMS[n]] = free.pop(0); when[ITEMS[n]] = -1; n += 1
    for c in range(15):
        if c >= 1: free.append(slot[('w', c-1)])
        if c >= 2 and c % 2 == 0: free.append(slot[('x', c//2 - 1)])
        k = 0
        while n < len(ITEMS) and free and (k < la or c == 14):
            slot[ITEMS[n]] = free.pop(0); when[ITEMS[n]] = c; n += 1; k += 1
    assert n == len(ITEMS)
    return slot, when
FFT_ISSUE = opt('FFT_ISSUE', 11)
LB = opt('LB', 11)
SLOT, WHEN = schedule()
assert all(WHEN[('a', i)] <= LB for i in range(4)), WHEN
RCNT = XCNT + 128
HOOK = {}

NOCLR = opt('NOCLR', 0)
HSS = '' if opt('FAST', 0) else SS
HPL = ' nt' if opt('FAST', 0) == 1 else ' sc1'
HS = ['', ' sc1', ' nt'][opt('HSM', 0)]
_iss = VM.issue
def _issue(self, text, tag):
    if tag in ('clr', 'cla') and NOCLR: return
    _iss(self, text, tag)
VM.issue = _issue
_cnt = VM.cnt
def _cnt2(self, tag):
    if tag not in self.ops: return None
    return _cnt(self, tag)
VM.cnt = _cnt2
def dbg_srd(a, d=40): srd(a, d, 20, 0, 256)
def fl_srd(a, d): srd(a, d, 22, OFF_FL, SZ_FL)
def poll1(a, tag, vd, va, slp, R=40, first=False, sc=' sc1', val=1):
    a.e(f's_mov_b32 s77, {TMO}')
    if first: a.e(f's_branch {tag}_ld')
    a.label(f'{tag}_pl'); a.fence()
    a.e(f'''
    v_cmp_ne_u32 vcc, {val}, v{vd}
    s_nop 1
    s_cbranch_vccz {tag}_ok
    s_sub_u32 s77, s77, 1
    s_cbranch_scc1 {tag}_ok
    s_sub_u32 s79, s79, {1 if DIAG else 0}
    s_sleep {slp}
    ''')
    a.label(f'{tag}_ld'); a.fence()
    a.e(f'''
    buffer_load_dword v{vd}, v{va}, s[{R}:{R+3}], 0 offen{sc}
    s_waitcnt vmcnt(0)
    s_branch {tag}_pl
    ''')
    a.label(f'{tag}_ok'); a.fence()
FPL = '' if opt('CPLAIN', 1) else ' sc1'
def l1_issue(vm, vd, vz, sc=FPL):
    vm.issue(f'buffer_load_dword v{vd}, v{vz}, s[40:43], 0 offen{sc}', 'l1')
def l1_check(a, tag, vd, vz, slp=8, sr=80):
    a.e(f's_mov_b32 s77, {TMO}')
    a.label(f'{tag}_l1'); a.fence()
    a.e(f'''
    v_readfirstlane_b32 s{sr}, v{vd}
    s_cmp_eq_u32 s{sr}, 32
    s_cbranch_scc1 {tag}_l1ok
    s_sub_u32 s77, s77, 1
    s_cbranch_scc1 {tag}_l1ok
    s_sleep {slp}
    buffer_load_dword v{vd}, v{vz}, s[40:43], 0 offen sc1
    s_waitcnt vmcnt(0)
    s_branch {tag}_l1
    ''')
    a.label(f'{tag}_l1ok'); a.fence()
def fl_loads(vd, va, R, offs, sc):
    return [f'buffer_load_dwordx4 {q(vd+4*i)}, v{va}, s[{R}:{R+3}], 0 offen offset:{o}{sc}' for i, o in enumerate(offs)]
def fl_check(a, tag, vd, va, R, offs, ves, slp=8, alt=None, sr=80):
    a.e(f's_mov_b32 s77, {TMO}')
    a.label(f'{tag}_fl'); a.fence()
    for i in range(len(offs)):
        a.e(f'v_and_b32 v{vd+4*i}, v{vd+4*i}, v{vd+4*i+2}')
        a.e(f'v_cmp_ne_u32 ' + ('vcc' if i == 0 else f's[{sr}:{sr+1}]') + f', {ves[i]}, v{vd+4*i}')
        if i: a.e(f's_or_b64 vcc, vcc, s[{sr}:{sr+1}]')
    a.e(f'''
    s_nop 1
    s_cbranch_vccz {tag}_flok
    s_sub_u32 s77, s77, 1
    s_cbranch_scc1 {tag}_flok
    s_sleep {slp}
    ''')
    if alt:
        a.e(f's_add_u32 s{sr}, s77, {alt}\ns_and_b32 s{sr}, s{sr}, 7\ns_cmp_eq_u32 s{sr}, 0\ns_cbranch_scc1 {tag}_fs')
        for l in fl_loads(vd, va, R, offs, ''): a.e(l)
        a.e(f's_waitcnt vmcnt(0)\ns_branch {tag}_fl')
        a.label(f'{tag}_fs'); a.fence()
    for l in fl_loads(vd, va, R, offs, ' sc1'): a.e(l)
    a.e(f's_waitcnt vmcnt(0)\ns_branch {tag}_fl')
    a.label(f'{tag}_flok'); a.fence()

def maxchain(regs, t0, t1):
    L = []; regs = list(regs)
    h = (len(regs) + 1) // 2
    for t, rs in ((t0, regs[:h]), (t1, regs[h:])):
        rs = list(rs)
        if len(rs) == 1: L.append(f'v_mov_b32 v{t}, v{rs[0]}'); continue
        if len(rs) == 2: L.append(f'v_max_u32 v{t}, v{rs[0]}, v{rs[1]}'); continue
        L.append(f'v_max3_u32 v{t}, v{rs[0]}, v{rs[1]}, v{rs[2]}'); rs = rs[3:]
        while len(rs) >= 2:
            L.append(f'v_max3_u32 v{t}, v{t}, v{rs[0]}, v{rs[1]}'); rs = rs[2:]
        if rs: L.append(f'v_max_u32 v{t}, v{t}, v{rs[0]}')
    L.append(f'v_max_u32 v{t0}, v{t0}, v{t1}')
    return L

STUBS = []
def check(a, tag, regs, t0, t1, reissue, nwait=0):
    a.label(f'{tag}_chk')
    for l in maxchain(regs, t0, t1): a.e(l)
    a.e(f'''
    v_cmp_eq_u32 vcc, -1, v{t0}
    s_nop 1
    s_cbranch_vccnz {tag}_stub
    ''')
    a.label(f'{tag}_ok')
    STUBS.append((tag, reissue, nwait))
def emit_stubs(a):
    for tag, reissue, nwait in STUBS:
        a.label(f'{tag}_stub'); a.fence()
        a.e(f'''
        s_cmp_eq_u32 s79, 0
        s_cbranch_scc1 {tag}_ok
        s_sub_u32 s79, s79, 1
        s_sleep {opt('RSLEEP', 6)}
        ''')
        for l in reissue: a.e(l)
        a.e(f's_waitcnt vmcnt({nwait})\ns_branch {tag}_chk')
    STUBS.clear()

def fft_loads():
    return [f'buffer_load_dwordx4 {q(XA+16*t+4*u)}, v6, s[44:47], s{69+(u>>1)} offen offset:{(u&1)*2048 + t*256}' for u in range(4) for t in range(2)]
def fft_setup(a):
    srd(a, 44, 22, OFF_Z1, SZ_Z1)
    srd(a, 48, 22, OFF_WT, SZ_WT)
    fl_srd(a, 40)
    a.e(f'''
    v_and_b32 v1, 15, v0                 ; l15
    v_lshrrev_b32 v2, 4, v0              ; q
    v_lshlrev_b32 v3, 4, v0              ; lane*16
    s_mul_i32 s69, s62, {ZS1}
    s_add_u32 s70, s69, 4096
    v_and_b32 v5, 1, v0
    v_lshlrev_b32 v5, 7, v5
    v_lshrrev_b32 v6, 1, v1
    v_lshl_add_u32 v5, v6, 4, v5
    v_lshl_add_u32 v5, v2, 10, v5        ; q*1024 + par*128 + (l15>>1)*16
    v_lshlrev_b32 v6, 4, v1
    v_lshl_add_u32 v6, v2, 9, v6         ; q*512 + l15*16
    s_mul_i32 s71, s63, {WS}
    s_lshl_b32 s72, s64, 8
    s_add_u32 s71, s71, s72
    s_add_u32 s71, s71, {WS}
    s_add_u32 s72, s71, 4096
    s_and_b32 s65, s63, 63
    s_lshl_b32 s65, s65, 7
    v_mov_b32 v18, s65
    s_and_b32 s65, s63, 3
    s_lshl_b32 s65, s65, 7
    s_add_u32 s65, s65, {FW}
    s_lshr_b32 s68, s63, 5
    s_lshl_b32 s68, s68, 9
    s_add_u32 s68, s68, s65
    v_writelane_b32 v18, s68, 1
    s_add_u32 s68, s63, 1
    s_lshr_b32 s68, s68, 5
    s_lshl_b32 s68, s68, 9
    s_add_u32 s68, s68, s65
    s_add_u32 s68, s68, 4096
    v_writelane_b32 v18, s68, 2
    s_lshl_b32 s65, s64, 13
    s_lshl_b32 s68, s63, 2
    s_add_u32 s65, s65, s68
    s_add_u32 s65, s65, {FZ}
    v_lshlrev_b32 v28, 10, v0
    v_add_u32 v28, s65, v28
    v_mov_b32 v19, 0x40000000
    v_cmp_gt_u32 vcc, 8, v0
    v_cndmask_b32 v28, v19, v28, vcc
    ''')
def fft_issue(a, vm):
    for l in fft_loads(): vm.issue(l, 'xa')
def wt_issue(a, vm):
    for tm in range(2):
        vm.issue(f'buffer_load_dwordx4 {q(WV+4*tm)}, v5, s[48:51], s{71+tm} offen', 'wv')

def fft_body(a, vm):
    a.label('fft_body'); a.fence()
    a.e(f'''
    s_lshl_b32 s65, s64, 2
    s_add_u32 s65, s65, {FLG}
    v_mov_b32 v8, s65
    v_mov_b32 v9, 1
    ds_write_b32 v8, v9
    ''')
    def hook(pos):
        for c in HOOK.get(pos, []):
            a.e(f's_cmp_eq_u32 s76, 0\ns_cbranch_scc1 hk{c}')
            a.label(f'hk{c}_ret')
            for it in ITEMS:
                if WHEN[it] == c:
                    for _ in range(4): vm.note(it)
    hook(-1)
    m2(a, 3, 4)
    a.e('s_cmp_lg_u32 s64, 0\ns_cbranch_scc1 fd_w')
    poll1(a, 'fd', 17, 18, opt('WSLP', 4), val=32)
    a.e('ds_write_b32 v8, v9 offset:48\ns_branch fd_go')
    a.label('fd_w'); a.fence()
    lds_spin(a, 'fd_sp', FLG + 48, va=18, vd=17, slp=1)
    a.label('fd_go'); a.fence()
    if opt('FPRIO', 0): a.e('s_setprio 3')
    m2(a, 4, 4)
    fft_issue(a, vm)
    wt_issue(a, vm)
    hook(0)
    a.e(f's_cmp_eq_u32 s76, 0\ns_cbranch_scc1 w2_x\ns_waitcnt vmcnt(0)')
    a.label('w2_x')
    vm.wait('wv')
    a.e('ds_write_b32 v8, v9 offset:32')
    m2(a, 1, 2)
    srd(a, 44, 22, OFF_Z3, SZ_Z3)
    a.e(f's_cmp_lg_u32 s62, 0\ns_cbranch_scc1 fft_nofix')
    a.e(f's_cmp_eq_u32 s63, 224\ns_cselect_b32 s68, 16, 0')
    for r in range(XA, XA+32):
        a.e(f'v_lshrrev_b32 v{r}, s68, v{r}\nv_and_b32 v{r}, 0xffff, v{r}')
    a.e('s_nop 1')
    a.label('fft_nofix'); a.fence()
    def mm(d, A, B, first):
        c = '0' if first else q(d)
        a.e(f'v_mfma_f32_16x16x32_bf16 {q(d)}, {q(A)}, {q(B)}, {c}')
    for u in range(4):
        for t in range(2):
            mm(DR+4*t, XA+16*t+4*u, C64R+4*u, u == 0)
            mm(DI+4*t, XA+16*t+4*u, C64I+4*u, u == 0)
    def twiddle(R, I, TW, out):
        for t in range(2):
            for i in range(4):
                c = TW + 2*(4*t+i); s = c + 1
                r = R + 4*t + i; im = I + 4*t + i
                t0 = 8 + 2*i
                a.e(f'''
                v_mul_f32 v{t0}, v{r}, v{c}
                v_mul_f32 v{t0+1}, v{im}, v{c}
                v_fmac_f32 v{t0}, v{im}, v{s}
                v_fma_f32 v{t0+1}, -v{r}, v{s}, v{t0+1}
                v_cvt_pk_bf16_f32 v{out+4*t+i}, v{t0}, v{t0+1}
                ''')
    hook(1)
    twiddle(DR, DI, TW1, PK)
    hook(2)
    for t in range(2):
        for tm in range(2):
            mm(ER+4*tm, C32R+8*tm+4*t, PK+4*t, t == 0)
            mm(EI+4*tm, C32I+8*tm+4*t, PK+4*t, t == 0)
    hook(3)
    for tm in range(2):
        for i in range(4):
            n = 4*tm + i
            for c in range(2):
                src = WV + 4*tm + 2*c + (i >> 1)
                if i & 1: a.e(f'v_and_b32 v{WU+8*c+n}, 0xffff0000, v{src}')
                else: a.e(f'v_lshlrev_b32 v{WU+8*c+n}, 16, v{src}')
    for tm in range(2):
        for i in range(4):
            n = 4*tm + i
            xr_ = ER + n; xi = EI + n; wr = WU + n; wi = WU + 8 + n
            t0 = 8 + 2*i
            a.e(f'''
            v_mul_f32 v{t0}, v{xr_}, v{wr}
            v_mul_f32 v{t0+1}, v{xr_}, v{wi}
            v_fma_f32 v{t0}, -v{xi}, v{wi}, v{t0}
            v_fmac_f32 v{t0+1}, v{xi}, v{wr}
            v_cvt_pk_bf16_f32 v{PK+n}, v{t0}, -v{t0+1}
            ''')
    hook(4)
    for tm in range(2):
        for tn in range(2):
            mm(DR+4*tn, PK+4*tm, C32R+8*tn+4*tm, tm == 0)
            mm(DI+4*tn, PK+4*tm, C32I+8*tn+4*tm, tm == 0)
    a.e(f'''
    s_lshl_b32 s68, s64, 11
    s_add_u32 s65, s68, {XCH}
    v_add_u32 v16, s65, v3
    v_add_u32 v7, {XCH}, v3
    v_mov_b32 v4, {XCNT}
    v_mov_b32 v5, 1
    ''')
    hook(5)
    twiddle(DR, DI, TW2, PK)
    a.e(f'''
    ds_write_b128 v16, {q(PK)}
    ds_write_b128 v16, {q(PK+4)} offset:1024
    s_waitcnt lgkmcnt(0)
    s_mov_b64 exec, 1
    ds_add_u32 v4, v5
    s_mov_b64 exec, -1
    s_mul_i32 s69, s63, {ZS3}
    s_add_u32 s68, s68, s69
    ''')
    hook(6)
    a.e('s_mov_b32 s77, 400000')
    a.label('fft_sp'); a.fence()
    a.e(f'''
    ds_read_b32 v5, v4
    s_waitcnt lgkmcnt(0)
    v_readfirstlane_b32 s65, v5
    s_sub_u32 s77, s77, 1
    s_cbranch_scc1 fft_spok
    s_cmp_lt_u32 s65, 4
    s_cbranch_scc1 fft_sp
    ''')
    a.label('fft_spok'); a.fence()
    for u in range(4):
        for tn in range(2):
            a.e(f'ds_read_b128 {q(XA+16*tn+4*u)}, v7 offset:{(2*u+tn)*1024}')
    for u in range(4):
        a.e(f's_waitcnt lgkmcnt({6-2*u})')
        for tn in range(2):
            mm(ER+4*tn, C64R+4*u, XA+16*tn+4*u, u == 0)
            mm(EI+4*tn, C64I+4*u, XA+16*tn+4*u, u == 0)
    for n in range(8):
        a.e(f'v_cvt_pk_bf16_f32 v{PK+n}, v{ER+n}, v{EI+n}')
    for tn in range(2):
        vm.issue(f'buffer_store_dwordx4 {q(PK+4*tn)}, v6, s[44:47], s68 offen offset:{tn*256}{SS}', 'z3')
    hook(7)
    if opt('FPRIO', 0): a.e('s_setprio 0')
    m2(a, 2, 2)

ACC2, AF, HR, GF_ = 192, 128, 16, 72
NH = 7
ROT2 = opt('ROT2', 1)
def wd_addr(a, vr, t0, t1):
    a.e(f'''
    v_lshrrev_b32 v{t0}, 3, v0
    v_bfe_u32 v{t1}, v0, 4, 1
    v_lshlrev_b32 v{t1}, 2, v{t1}
    v_and_b32 v{vr}, 7, v0
    v_xor_b32 v{t1}, v{t1}, v{vr}
    v_mul_u32_u24 v{vr}, 896, v{t0}
    v_lshl_add_u32 v{vr}, v{t1}, 4, v{vr}
    ''')

def g_gen(a):
    a.e(f'''
    s_mul_i32 s65, s64, 56
    v_lshlrev_b32 v8, 2, v5
    v_add_u32 v8, s65, v8                ; p0
    v_cmp_eq_u32 s[80:81], 0, v8
    v_cvt_f32_u32 v8, v8
    s_lshl_b32 s75, s61, 6
    v_add_u32 v9, s75, v4                ; d (b=0)
    v_lshlrev_b32 v12, 31, v9
    v_xor_b32 v12, 0.5, v12              ; +-0.5
    v_cvt_f32_u32 v9, v9
    ''')
    for b in range(2):
        if b: a.e(f'v_add_f32 v9, {fh(32.0)}, v9')
        a.e(f'v_mul_f32 v10, {fh(1/448)}, v9')
        for z in range(7):
            a.e(f'v_add_f32 v11, {fh(8.0*z)}, v8\nv_mul_f32 v11, v11, v10')
            for j in range(4):
                a.e(f'''
                v_cos_f32 v14, v11
                v_sin_f32 v15, v11
                v_add_f32 v11, v11, v10
                ''')
                if z == 0 and j == 0:
                    a.e(f'''
                    v_cndmask_b32 v14, v14, 0.5, s[80:81]
                    v_cndmask_b32 v15, v15, v12, s[80:81]
                    ''')
                a.e(f'v_cvt_pk_bf16_f32 v{GF_+8*z+4*b+j}, v14, v15')

HK = opt('HK', 1)
FLG2, FLG3 = 16, 32
def lds_spin(a, tag, addr, off=0, val=1, va=14, vd=15, slp=0):
    a.e(f'v_mov_b32 v{va}, {addr}\ns_mov_b32 s77, 400000')
    if slp: a.e(f's_branch {tag}_1')
    a.label(tag); a.fence()
    if slp: a.e(f's_sleep {slp}'); a.label(f'{tag}_1')
    a.e(f"""
    ds_read_b32 v{vd}, v{va} offset:{off}
    s_waitcnt lgkmcnt(0)
    v_readfirstlane_b32 s73, v{vd}
    s_sub_u32 s77, s77, 1
    s_cbranch_scc1 {tag}_ok
    s_cmp_lt_u32 s73, {val}
    s_cbranch_scc1 {tag}
    """)
    a.label(f'{tag}_ok'); a.fence()

def probe(a, tag, reg):
    if DIAG != 8: return
    a.e('s_mov_b32 s77, 0')
    mark(a, 1)
    a.label(tag); a.fence()
    for i in range(200): a.e(f'v_add_u32 v{reg}, 0x12345, v{reg}')
    a.e('s_mov_b64 s[92:93], s[94:95]')
    mark(a, 3)
    a.e(f's_waitcnt lgkmcnt(0)\ns_add_u32 s77, s77, 1\ns_cmp_lt_u32 s77, 2\ns_cbranch_scc1 {tag}')

def gemm2(a):
    a.label('gemm2'); a.fence()
    vm = VM(a)
    PA = sum(SLOT[('a', i)] << (4*i) for i in range(4)); PB = sum(SLOT[('b', i)] << (4*i) for i in range(4))
    SP = [x for x in range(9) if x not in [SLOT[(k, i)] for k in 'ab' for i in range(4)]][0]
    LOCS = [SLOT[('a', i)] for i in (0, 1, 2, 3, 0, 1, 2)] + [SLOT[('b', i)] for i in range(4)] + [SLOT[('a', 3)], SP, SLOT[('a', 0)]]
    NH = 14; XR = 16; ZR = 128; T224 = 184
    def common():
        a.e(f"""
        s_lshl_b32 s87, s64, 12
        s_lshl_b32 s86, s64, 2
        s_add_u32 s86, s86, {FLG}
        v_lshrrev_b32 v5, 5, v0              ; h
        v_and_b32 v4, 31, v0                 ; l31
        v_lshlrev_b32 v3, 4, v0              ; lane*16
        """)
    def outaddr():
        srd(a, 48, 18, 0, SZ_X)
        a.e(f"""
        s_lshr_b32 s65, s3, 1
        s_and_b32 s76, s65, 1                ; aa
        s_lshl_b32 s76, s76, 2
        s_lshr_b32 s78, s60, 1
        s_lshl_b32 s78, s78, 3
        s_add_u32 s76, s76, s78
        s_and_b32 s78, s60, 1
        s_add_u32 s76, s76, s78              ; rows/16
        s_mul_i32 s76, s76, {16*896}
        s_lshr_b32 s65, s65, 1               ; b
        s_lshl_b32 s78, s61, 1
        s_add_u32 s78, s78, s65
        s_lshl_b32 s78, s78, 6
        s_add_u32 s76, s76, s78
        s_and_b32 s78, s3, 1
        s_lshl_b32 s78, s78, 5
        s_add_u32 s76, s76, s78
        v_and_b32 v12, 15, v0
        v_bfe_u32 v13, v0, 4, 1
        v_lshl_add_u32 v12, v13, 5, v12
        v_mul_u32_u24 v12, 896, v12
        v_lshrrev_b32 v14, 5, v0
        v_lshl_add_u32 v13, v14, 3, v12
        v_lshl_add_u32 v12, v14, 4, v12
        """)
    XL = [f'buffer_load_dwordx2 {d2(XR+2*g)}, v13, s[24:27], s76 offen offset:{16*g}' for g in range(2)]
    def mf(A, B, first):
        for aa in range(2):
            for b in range(2):
                d = ACC2 + 16 * (2*b + aa)
                c = '0' if first else f'v[{d}:{d+15}]'
                a.e(f'v_mfma_f32_32x32x16_bf16 v[{d}:{d+15}], {q(A+4*b)}, {q(B+4*aa)}, {c}')
    common()
    a.e(f"""
    v_bfe_u32 v1, v0, 2, 2               ; r
    v_lshl_add_u32 v2, v5, 2, v1         ; 4h + r
    v_lshlrev_b32 v2, 7, v2
    v_lshrrev_b32 v1, 1, v1
    v_lshl_add_u32 v2, v1, 6, v2
    v_bfe_u32 v1, v0, 4, 1
    v_lshl_add_u32 v2, v1, 5, v2
    v_and_b32 v1, 3, v0
    v_lshl_add_u32 v2, v1, 3, v2
    v_add_u32 v2, s87, v2
    """)
    def tr(k):
        sl = k % 8; L = []
        if k % 2 == 0: L += [f'v_add_u32 v1, {LOCS[k>>1]*16384}, v2', 'v_xor_b32 v5, 64, v1']
        for b in range(2):
            for rho in range(2):
                L.append(f'ds_read_b64_tr_b16 {d2(AF + 8*sl + 4*b + 2*rho)}, v{5 if b else 1} offset:{(k&1)*2048 + rho*1024}')
        return L
    for k in range(8):
        for l in tr(k): a.e(l)
    a.e(f"""
    s_mul_i32 s65, s3, 14
    s_mul_i32 s73, s60, 224
    s_add_u32 s73, s73, s65
    s_lshl_b32 s73, s73, 10
    s_add_u32 s65, s73, 114688
    """)
    assert OFF_HF == 0
    srd(a, 28, 22, 's73', 57344 + 14336)
    srd(a, 32, 22, 's65', 57344 + 14336)
    srd(a, 52, 22, OFF_ST, SZ_ST)
    fl_srd(a, 40)
    a.e(f"""
    s_mul_i32 s74, s3, {224*896}
    s_lshl_b32 s75, s61, 7
    s_add_u32 s74, s74, s75
    v_lshlrev_b32 v10, 2, v4
    s_lshl_b32 s85, s60, 8
    s_add_u32 s85, s85, 8192
    v_mov_b32 v8, v29
    v_add_u32 v9, 57344, v3
    v_mov_b32 v30, 1
    """)
    for qq in range(7):
        if ROT2: a.e(f's_add_u32 s{66+qq}, s61, {qq}\ns_cmp_ge_u32 s{66+qq}, 7\ns_cselect_b32 s75, 7, 0\ns_sub_u32 s{66+qq}, s{66+qq}, s75\ns_lshl_b32 s{66+qq}, s{66+qq}, 11')
        else: a.e(f's_mov_b32 s{66+qq}, {qq*2048}')
    def dma(P):
        a.e(f's_mul_i32 s73, s{66+P%7}, 14\ns_add_u32 s73, s73, s74')
        for i in range(4):
            a.e(f's_add_u32 s75, s73, {i*7168 + (P//7)*4*224*896}\ns_add_u32 m0, s87, {LOCS[P]*16384 + i*1024}')
            vm.issue(f'buffer_load_dwordx4 v8, s[36:39], s75 offen lds', ('wd', P))
    own = [4, 5, 6] + [7 + i for i in range(4) if WHEN[('b', i)] > LB + HK] + [11, 12]
    NPRE = opt('NPRE', 2); NMID = opt('NMID', 3)
    a.e('s_waitcnt lgkmcnt(0)')
    assert NPRE <= 3
    for P in own[:NPRE]: dma(P)
    a.e(f's_waitcnt vmcnt({4*NPRE})')
    vm.issue(f'buffer_store_dword v30, v28, s[40:43], 0 offen{HSS}', 'fl')
    m2(a, 3, 2)
    lds_spin(a, 'g2_rc', RCNT, 4*14, 4)
    RL = [f'buffer_load_dword v{6+aa}, v10, s[52:55], s85 offen offset:{aa*128} sc1' for aa in range(2)]
    for l in RL: vm.issue(l, 'r2')
    for P in own[NPRE:NPRE+NMID]: dma(P)
    late = own[NPRE+NMID:] + [13]
    a.e(f"""
    s_lshr_b32 s65, s60, 1
    s_lshl_b32 s65, s65, 3
    s_add_u32 s65, s65, s3
    s_lshl_b32 s65, s65, 7
    s_add_u32 s65, s65, {FH}
    v_and_b32 v1, 7, v0
    v_min_u32 v1, 6, v1
    v_lshlrev_b32 v1, 2, v1
    v_bfe_u32 v11, v0, 3, 1
    v_lshl_add_u32 v1, v11, 9, v1
    v_add_u32 v1, s65, v1
    v_mov_b32 v11, 1
    """)
    m2(a, 4, 2)
    poll1(a, 'fh', 14, 1, opt('HSLP', 2), first=True, sc=HPL)
    vm.all_done()
    m2(a, 1, 6)
    m2(a, 2, 7)
    def issue(k):
        r = HR + 8 * (k % NH); o = (k & 1) * 1024
        for j in range(2):
            vm.issue(f'buffer_load_dwordx4 {q(r+4*j)}, v{3 if k < 14 else 9}, s[{28+4*j}:{31+4*j}], s{66+(k>>1)%7} offen offset:{o}{HS}', ('h', k))
    for k in range(NH): issue(k)
    m2(a, 1, 7)
    outaddr()
    LK = {}
    for n, P in enumerate(late): LK[max(2*n + 1, 9 if P == 13 else 0)] = P
    for k in range(28):
        vm.wait(('h', k))
        if k >= 8: a.e(f's_waitcnt lgkmcnt({4*min(3, 27-k)})')
        mf(AF + 8*(k % 8), HR + 8 * (k % NH), k == 0)
        if k + NH < 28: issue(k + NH)
        if k in LK: dma(LK[k])
        if k == 15:
            for l in XL: vm.issue(l, 'xr')
        if k == 0: m2(a, 3, 3)
        if k == 0: m2(a, 3, 7)
        if k == 1: m2(a, 4, 7)
        if k == 13: m2(a, 4, 3)
        if k in (3, 7, 20): m2(a, {3: 2, 7: 3, 20: 4}[k], 6)
        if k == 10: lds_spin(a, 'g2_b', 's86', FLG3)
        if k == 22: a.e(f'v_mov_b32 v14, s86\nds_write_b32 v14, v11 offset:{FLG2}\ns_waitcnt lgkmcnt(0)')
        if 4 <= k < 24:
            if k % 2 == 0: vm.wait(('wd', (k + 4) >> 1))
            for l in tr(k + 4): a.e(l)
    check(a, 'g2_r2', [6, 7], 14, 15, RL, 0)
    a.e('s_nop 7')
    for tl in range(4):
        for i in range(16):
            a.e(f'v_mul_f32 v{ACC2+16*tl+i}, v{ACC2+16*tl+i}, v{6+(tl&1)}')
    for i in range(4): a.e(f's_add_u32 s{82+i}, s87, {SLOT[("a", i)]*16384}')
    a.e('s_branch g2_red')
    a.label('gemm2h'); a.fence()
    probe(a, 'pr2', 31)
    vm = VM(a)
    common()
    outaddr()
    for l in XL: vm.issue(l, 'xr')
    g_gen(a)
    a.e('v_mov_b32 v30, 1\ns_waitcnt vmcnt(2)')
    a.e(f'buffer_store_dword v30, v28, s[40:43], 0 offen{SS}')
    m2(a, 3, 2)
    outaddr()
    a.e(f"""
    v_and_b32 v10, 15, v0
    v_lshlrev_b32 v10, 4, v10            ; l15*16
    v_bfe_u32 v11, v0, 4, 1
    v_lshl_add_u32 v11, v5, 2, v11       ; 4h + b16
    v_mul_u32_u24 v8, {ZS3}, v11
    v_add_u32 v8, v8, v10
    v_add_u32 v9, {2*ZS3}, v8
    s_mul_i32 s74, s64, {56*ZS3}
    s_lshl_b32 s75, s60, 8
    s_add_u32 s74, s74, s75              ; z3 base
    s_add_u32 s75, s75, {224*ZS3}
    s_cmp_eq_u32 s64, 0
    s_cselect_b32 s75, s75, 0x40000000
    s_cselect_b32 s65, 16, 0
    v_cmp_gt_u32 vcc, s65, v0
    v_mov_b32 v11, 0x40000000
    v_cndmask_b32 v10, v11, v10, vcc
    v_mov_b32 v11, -1
    v_mov_b32 v14, 0xffff
    v_cndmask_b32 v11, v11, v14, vcc
    s_mul_i32 s65, s64, 224
    s_cmp_eq_u32 s64, 0
    s_cselect_b32 s73, 896, s65
    v_lshlrev_b32 v15, 2, v0
    v_add_u32 v15, s65, v15
    v_mov_b32 v14, s73
    v_cmp_gt_u32 vcc, 56, v0
    v_cndmask_b32 v15, v14, v15, vcc
    s_lshl_b32 s65, s60, 10
    s_add_u32 s65, s65, {FZ}
    v_add_u32 v15, s65, v15
    """)
    for i in range(4): a.e(f's_add_u32 s{82+i}, s87, {SLOT[("b", i)]*16384}')
    m2(a, 4, 2)
    poll1(a, 'fz', 14, 15, opt('ZSLP', 4), first=True)
    vm.all_done()
    m2(a, 1, 6)
    for z in range(7):
        r = ZR + 8*z
        a.e(f's_add_u32 s65, s74, {z*8*ZS3}')
        vm.issue(f'buffer_load_dwordx4 {q(r)}, v8, s[44:47], s65 offen{HS}', ('z', z))
        vm.issue(f'buffer_load_dwordx4 {q(r+4)}, v9, s[44:47], s65 offen{HS}', ('z', z))
        if z == 0: vm.issue(f'buffer_load_dwordx4 {q(T224)}, v10, s[44:47], s75 offen{HS}', ('z', z))
    for z in range(7):
        r = ZR + 8*z
        vm.wait(('z', z))
        if z == 0:
            for t in range(4):
                a.e(f'v_and_b32 v{r+t}, v{r+t}, v11\nv_lshl_or_b32 v{r+t}, v{T224+t}, 16, v{r+t}')
        for t in (0, 2, 4, 6):
            a.e(f'v_permlane16_swap_b32 v{r+t}, v{r+t+1}')
        a.e(f'v_swap_b32 v{r+2}, v{r+4}\nv_swap_b32 v{r+3}, v{r+5}')
        mf(GF_ + 8*z, r, z == 0)
        if z == 0: m2(a, 3, 3)
    m2(a, 4, 3)
    lds_spin(a, 'g2_bf', 's86', FLG2, slp=1)
    a.e('s_nop 7')
    a.label('g2_red'); a.fence()
    m2(a, 1, 3)
    for tl in range(4):
        a.e(f'v_add_u32 v{8+tl}, s{82+tl}, v3')
    for tl in range(4):
        for c in range(4):
            a.e(f'ds_write_b128 v{8+tl}, {q(ACC2+16*tl+4*c)} offset:{c*1024}')
    a.e(f'''
    s_lshr_b32 s65, s3, 1
    s_lshl_b32 s65, s65, 2
    s_lshr_b32 s66, {PA}, s65
    s_and_b32 s66, s66, 15
    s_lshl_b32 s66, s66, 14
    s_lshr_b32 s67, {PB}, s65
    s_and_b32 s67, s67, 15
    s_lshl_b32 s67, s67, 14
    s_and_b32 s65, s3, 1
    s_lshl_b32 s65, s65, 11
    s_add_u32 s66, s66, s65
    s_add_u32 s67, s67, s65
    v_add_u32 v2, s66, v3
    v_add_u32 v7, s67, v3
    s_waitcnt vmcnt(0)
    ''')
    for g in range(2):
        for c in range(2):
            a.e(f'v_lshlrev_b32 v{96+4*g+2*c}, 16, v{XR+2*g+c}\nv_and_b32 v{96+4*g+2*c+1}, 0xffff0000, v{XR+2*g+c}')
    a.e('s_waitcnt lgkmcnt(0)\ns_barrier')
    m2(a, 2, 3)
    for sw in range(8):
        for c in range(2):
            a.e(f'ds_read_b128 {q(16+8*sw+4*c)}, v{2 if sw < 4 else 7} offset:{(sw&3)*4096 + c*1024}')
    for sw in range(8):
        a.e(f's_waitcnt lgkmcnt({14-2*sw})')
        for r in range(8):
            a.e(f'v_add_f32 v{96+r}, v{96+r}, v{16+8*sw+r}')
    for g in range(2):
        for c in range(2):
            a.e(f'v_cvt_pk_bf16_f32 v{112+2*g+c}, v{96+4*g+2*c}, v{96+4*g+2*c+1}')
    for c in range(2):
        a.e(f'v_permlane32_swap_b32 v{112+c}, v{114+c}')
    a.e(f'buffer_store_dwordx4 {q(112)}, v12, s[48:51], s76 offen' + ['', ' sc0 sc1', ' nt', ' sc1'][opt('OSM', 0)])
    endpgm(a, 0, 22)
    emit_stubs(a)

def emit(a, x):
    if callable(x): x()
    else: a.e(x)

def gu(a):
    vm = VM(a)
    a.e(f'''
    v_lshrrev_b32 v5, 4, v0
    v_lshlrev_b32 v6, 2, v5
    v_and_b32 v7, 15, v0
    v_xor_b32 v6, v6, v7
    v_mul_u32_u24 v11, 3584, v5
    v_lshl_add_u32 v11, v6, 4, v11
    s_lshl_b32 s69, s58, 8               ; ct*256
    s_sub_u32 s70, {SZ_WG}, s69
    s_lshl_b32 s65, s59, 3
    s_bfe_u32 s66, s3, {(1<<16)|1}
    s_lshl_b32 s66, s66, 2
    s_add_u32 s66, s66, s65
    s_lshr_b32 s67, s3, 2
    s_add_u32 s66, s66, s67
    s_and_b32 s67, s3, 1
    s_lshl_b32 s67, s67, 1
    s_add_u32 s66, s66, s67
    s_mul_i32 s66, s66, {16*896}
    s_mul_i32 s68, s3, 14336
    s_lshl_b32 s71, s3, 10
    s_lshl_b32 s72, s3, 11
    s_add_u32 s78, s59, s58
    s_mul_i32 s67, s78, 37
    s_lshr_b32 s67, s67, 8
    s_mul_i32 s67, s67, 7
    s_sub_u32 s78, s78, s67
    s_mul_i32 s78, s78, {128*opt('ROT1', 0)}
    s_add_u32 s66, s66, s78
    s_mul_i32 s67, s78, 1792
    s_add_u32 s68, s68, s67
    s_waitcnt lgkmcnt(0)
    ''')
    srd(a, 24, 4, 0, SZ_X)
    for jj in range(2):
        a.e(f's_add_u32 m0, s72, {SLOT[("x",0)]*16384 + jj*1024}')
        vm.issue(f'buffer_load_dwordx4 v{12+jj}, s[24:27], s66 offen lds', ('x', 0))
    srd(a, 28, 12, 's69', 's70')
    srd(a, 32, 14, 's69', 's70')
    for c in range(2):
        if c: a.e(f's_add_u32 s68, s68, 114688')
        for mat in range(2):
            a.e(f's_add_u32 m0, s71, {SLOT[("w",c)]*16384 + mat*8192}')
            vm.issue(f'buffer_load_dwordx4 v11, s[{28+4*mat}:{31+4*mat}], s68 offen lds', ('w', c))
    a.e(f's_mov_b32 s79, {TMO}')
    a.e('s_cmp_ge_u32 s3, 4\ns_cbranch_scc1 gu_helper')
    vmh = vm.copy()
    dbg_srd(a)
    a.e('''
    v_mov_b32 v30, 1
    v_lshlrev_b32 v31, 20, v0
    ''')
    srd(a, 28, 22, OFF_HF, SZ_HF)
    a.e(f'''
    s_mul_i32 s65, s59, {4*112}
    s_lshl_b32 s66, s58, 3
    s_add_u32 s65, s65, s66
    s_lshl_b32 s66, s64, 1
    s_add_u32 s65, s65, s66
    s_lshl_b32 s65, s65, 10
    s_add_u32 s66, s65, {112*1024}
    s_add_u32 s67, s65, {2*112*1024}
    s_add_u32 s68, s65, {3*112*1024}
    s_lshl_b32 s71, s58, 2
    s_add_u32 s71, s71, s64              ; pair P
    s_mul_i32 s72, s71, 37
    s_lshr_b32 s72, s72, 8               ; P / 7
    s_mul_i32 s73, s72, 7
    s_sub_u32 s71, s71, s73
    s_lshl_b32 s71, s71, 2
    s_lshl_b32 s73, s59, 3
    s_add_u32 s72, s72, s73
    s_lshl_b32 s72, s72, 7
    s_add_u32 s71, s71, s72
    s_add_u32 s71, s71, {FH}
    v_lshlrev_b32 v1, 4, v0
    ''')
    srd(a, 36, 16, 0, SZ_WG)
    srd(a, 52, 22, OFF_ST, SZ_ST)
    wd_addr(a, 29, 5, 6)
    a.e(f'''
    v_and_b32 v14, 31, v0                ; l31
    v_lshrrev_b32 v3, 5, v0              ; h
    v_bfe_u32 v9, v0, 1, 3
    v_xor_b32 v9, v9, v3
    v_lshlrev_b32 v9, 4, v9
    v_lshl_add_u32 v8, v14, 7, v9        ; X base0
    v_lshlrev_b32 v14, 2, v14
    v_bfe_u32 v9, v0, 2, 2               ; r
    v_lshl_add_u32 v10, v3, 3, v9        ; 8h + r
    v_lshlrev_b32 v2, 8, v10
    v_xor_b32 v9, s64, v9
    v_lshl_add_u32 v2, v9, 6, v2
    v_bfe_u32 v9, v0, 4, 1
    v_lshl_add_u32 v2, v9, 5, v2
    v_and_b32 v9, 3, v0
    v_lshl_add_u32 v2, v9, 3, v2
    v_add_u32 v3, 0x10000, v2
    v_add_u32 v4, 0x20000, v2
    v_mov_b32 v7, {RCNT}
    v_mov_b32 v16, 0
    v_mov_b32 v17, 0
    v_mov_b32 v18, 0
    v_mov_b32 v19, 0
    s_mov_b32 s85, 0xffff0000
    s_lshl_b32 s70, s59, 9
    ''')
    for r in range(84, 108): a.e(f'v_mov_b32 v{r}, 0')
    ML = [f'buffer_load_dword v{84+4*t}, v14, s[52:55], s70 offen offset:{t*128} sc1' for t in range(4)]
    extras = {}
    CLRA = opt('CLRA', 5)
    extras.setdefault(opt('L1K', 5), []).insert(0, lambda: l1_issue(vm, 28, 31))
    L1N = []
    srd(a, 32, 6, 0, SZ_WR)
    srd(a, 44, 8, 0, SZ_WR)
    srd(a, 48, 22, OFF_WT, SZ_WT)
    a.e(f'''
    s_mul_i32 s74, s64, 224
    s_add_u32 s74, s74, s62              ; task G
    s_lshr_b32 s75, s74, 6               ; (tm,q)
    s_lshl_b32 s75, s75, 8
    s_bfe_u32 s76, s74, {(2<<16)|4}      ; w
    s_lshl_b32 s76, s76, 4
    s_add_u32 s75, s75, s76
    s_bfe_u32 s76, s74, {(1<<16)|3}      ; par
    s_add_u32 s75, s75, s76              ; s0 (g = 0)
    s_mul_i32 s75, s75, 450
    s_and_b32 s75, s75, -4
    s_and_b32 s77, s74, 7                ; cb
    s_lshl_b32 s78, s77, 6
    s_add_u32 s75, s75, s78
    v_and_b32 v9, 7, v0
    v_lshrrev_b32 v10, 3, v0
    v_lshl_add_u32 v12, v9, 3, v10
    v_lshlrev_b32 v12, 2, v12
    v_mul_u32_u24 v11, 900, v10
    v_lshl_add_u32 v11, v9, 3, v11
    v_mul_u32_u24 v15, {4*WS}, v10
    v_lshl_add_u32 v15, v9, 4, v15
    s_lshl_b32 s77, s77, 5
    s_add_u32 s77, s77, 1
    s_sub_u32 s77, s77, s76
    s_mul_i32 s77, s77, {WS}
    s_and_b32 s76, s74, 15
    s_lshl_b32 s76, s76, 9
    s_add_u32 s76, s76, {FW}
    s_lshr_b32 s78, s74, 3
    s_lshl_b32 s78, s78, 7
    s_cmp_lt_u32 s74, 512
    s_cselect_b32 s74, s78, 0x40000000
    s_cselect_b32 s76, s76, 0x40000000
    s_add_u32 s74, s74, s77
    s_mov_b32 s82, 0x05040100
    s_mov_b32 s83, 0x07060302
    v_lshlrev_b32 v13, 7, v0
    v_cmp_gt_u32 vcc, 4, v0
    v_cndmask_b32 v13, v31, v13, vcc
    ''')
    for i in range(4):
        for mat in range(2):
            vm.issue(f'buffer_load_dwordx2 {d2(108+8*mat+2*i)}, v11, s[{32+12*mat}:{35+12*mat}], s75 offen', 'ja')
        if i < 3: a.e(f's_add_u32 s75, s75, {64*450}')
    fl_srd(a, 44)
    def jb(h):
        vm.wait('ja')
        for r in range(8*h, 8*h + 8): a.e(f'ds_bpermute_b32 v{108+r}, v12, v{108+r}')
    def js(c):
        for mat in range(2):
            for ip in range(2):
                r = 108 + 8*mat + 4*ip + (c >> 1)
                a.e(f'v_perm_b32 v{124+2*mat+ip}, v{r+2}, v{r}, s{82+(c&1)}')
        vm.issue(f'buffer_store_dwordx4 {q(124)}, v15, s[48:51], s74 offen{SS}', 'wt')
        if c < 3: a.e(f's_add_u32 s74, s74, {WS}')
    def jsig():
        vm.wait('wt')
        vm.issue('buffer_atomic_add v30, v13, s[44:47], s76 offen sc1', 'fw')
    JB = opt('JB', 4)
    for h in range(2): extras.setdefault(JB + h, []).append(lambda h=h: jb(h))
    for c in range(4): extras.setdefault(JB + 2 + c, []).append(lambda c=c: js(c))
    assert opt('JSK', 14) >= 2*CLRA + 2
    extras.setdefault(opt('JSK', 14), []).append(jsig)
    def flag(n):
        if n == 'a': L1N.append(len(vm.ops) - 1 - vm.ops.index('l1'))
        a.e(f's_cmp_eq_u32 s3, 0\ns_cbranch_scc1 gu_fl{n}')
        a.label(f'gu_fl{n}_ret')
    extras.setdefault(2*CLRA - 1, []).insert(0, lambda: flag('a'))
    for l in ML: extras.setdefault(opt('MLK', 23), []).append(lambda l=l: vm.issue(l, 'ml'))
    def preb(c):
        tag = {0: ('w', 0), 1: ('w', 1), }.get(c)
        if tag:
            n = vm.cnt(tag)
            if n is not None: return f' vmcnt({n})'
        return ''
    def reads(k):
        buf = k & 1; ksl = k & 3; u = k >> 2
        xb = 5 + (k & 1)
        XB = [f'ds_read_b128 {q(48+16*buf+4*t)}, v{xb} offset:{t*4096}' for t in range(4)]
        c = k >> 1; slot = SLOT[('w', c)]; kk = k & 1
        WA = []
        for i in range(2):
            for rho in range(2):
                d = 32 + 8*buf + 4*i + 2*rho
                off = (slot & 3)*16384 + i*8192 + kk*4096 + rho*1024
                WA.append(f'ds_read_b64_tr_b16 {d2(d)}, v{2 + (slot >> 2)} offset:{off}')
        return [WA[0], WA[1], XB[0], WA[2], WA[3], XB[1], XB[2], XB[3]]
    def xbase(k):
        return f'v_xor_b32 v{5 + (k & 1)}, {SLOT[("x", k >> 2)]*16384 + (k & 3)*32}, v8'
    def cs(k):
        buf = k & 1; L = []
        n = 0
        for i in range(2):
            for dd in range(4):
                r = 32 + 8*buf + 4*i + dd; t = 20 + 2*(n & 3); n += 1
                L += [f'v_lshlrev_b32 v{t}, 16, v{r}', f'v_and_b32 v{t+1}, s85, v{r}',
                      f'v_add_f32 v{16+2*i}, v{16+2*i}, v{t}', f'v_add_f32 v{17+2*i}, v{17+2*i}, v{t+1}']
        return L
    def mfmas(k):
        buf = k & 1
        return [f'v_mfma_f32_32x32x16_bf16 v[{acc(i,t)}:{acc(i,t)+15}], {q(32+8*buf+4*i)}, {q(48+16*buf+4*t)}, ' + ('0' if k == 0 else f'v[{acc(i,t)}:{acc(i,t)+15}]')
                for t in range(4) for i in range(2)]
    a.e(xbase(0)); a.e(xbase(1))
    a.e(f's_waitcnt lgkmcnt(0){preb(0)}')
    m2(a, 1, 1)
    a.e('s_barrier')
    m2(a, 2, 1)
    for l in reads(0): a.e(l)
    for k in range(28):
        M = mfmas(k)
        if k & 1:
            if k == 2*CLRA - 1: m2(a, 4, 5)
            a.e(f's_waitcnt lgkmcnt(0){preb((k+1)//2)}')
        else:
            a.e('s_waitcnt lgkmcnt(0)')
        R = reads(k+1) if k < 27 else []
        V = cs(k) if opt('CS', 1) else []
        if k + 2 < 28: V = V[:16] + [xbase(k+2)] + V[16:]
        X = extras.get(k, [])
        for g in range(8):
            a.e(M[g])
            if g == 0 and (k & 1):
                if (k+1)//2 <= LB: a.e('s_barrier')
                else: a.e(f's_mov_b64 exec, 1\nds_add_u32 v7, v30 offset:{4*((k+1)//2)}\ns_mov_b64 exec, -1')
                if (k+1)//2 in (3, 6, 9, 12): m2(a, (k+1)//6, 4)
            nr = 2 if g < 4 else 0
            nv = (3 if g < 4 else 6) if R else 5
            for l in R[2*g:2*g+nr]: a.e(l)
            for l in V[:nv]: a.e(l)
            V = V[nv:]
            if g >= 2 and X: emit(a, X.pop(0))
        for l in V: a.e(l)
        for l in X: emit(a, l)
    m2(a, 3, 1)
    for i in range(2):
        a.e(f'''
        v_add_f32 v{16+2*i}, v{16+2*i}, v{17+2*i}
        v_cvt_pk_bf16_f32 v{20+i}, v{16+2*i}, v{16+2*i}
        v_and_b32 v{20+i}, s85, v{20+i}
        v_sub_f32 v{20+i}, v{16+2*i}, v{20+i}
        v_cvt_pk_bf16_f32 v{100+4*i}, v{16+2*i}, v{20+i}
        ''')
    vm.wait('ml')
    check(a, 'gu_m', [84, 88, 92, 96], 20, 21, ML, 0)
    for t in range(4):
        for i in range(2):
            a.e(f'v_mfma_f32_32x32x16_bf16 v[{acc(i,t)}:{acc(i,t)+15}], {q(100+4*i)}, {q(84+4*t)}, v[{acc(i,t)}:{acc(i,t)+15}]')
    n = 0
    for t in range(4):
        for jp in range(2):
            o = 32 + 4 * n; n += 1
            for dd in range(4):
                g0 = acc(0, t) + 8*jp + 2*dd; u0 = acc(1, t) + 8*jp + 2*dd
                a.e(f'''
                v_max_f32 v{g0}, 0, v{g0}
                v_max_f32 v{g0+1}, 0, v{g0+1}
                v_mul_f32 v{g0}, v{g0}, v{u0}
                v_mul_f32 v{g0+1}, v{g0+1}, v{u0+1}
                v_cvt_pk_bf16_f32 v{o+dd}, v{g0}, v{g0+1}
                ''')
            vm.issue(f'buffer_store_dwordx4 {q(o)}, v1, s[28:31], s{65+t} offen offset:{jp*1024}{HSS}', 'hst')
    m2(a, 4, 1)
    a.e('v_add_u32 v28, s71, v31')
    m2(a, 1, 2)
    a.e(f'''
    s_lshl_b32 s65, s64, 2
    s_add_u32 s65, s65, {FLG}
    v_mov_b32 v4, s65
    s_mov_b32 s77, 400000
    ''')
    a.label('gu_sp'); a.fence()
    a.e(f'''
    ds_read_b32 v5, v4
    s_waitcnt lgkmcnt(0)
    v_readfirstlane_b32 s65, v5
    s_sub_u32 s77, s77, 1
    s_cbranch_scc1 gu_spok
    s_cmp_eq_u32 s65, 0
    s_cbranch_scc1 gu_sp
    ''')
    a.label('gu_spok'); a.fence()
    probe(a, 'pr3', 5)
    m2(a, 2, 2)
    a.e('s_branch gemm2')
    emit_stubs(a)
    a.label('gu_fla'); a.fence()
    m2(a, 1, 5)
    a.e(f's_waitcnt vmcnt({L1N[0]})')
    m2(a, 2, 5)
    l1_check(a, 'gua', 28, 31)
    m2(a, 3, 5)
    a.e('s_branch gu_fla_ret')
    a.label('gu_helper'); a.fence()
    vm = vmh
    a.e(f'''
    s_and_b32 s66, s64, 1
    s_lshl_b32 s66, s66, 2
    s_add_u32 s66, s66, s65
    s_lshr_b32 s67, s64, 1
    s_add_u32 s66, s66, s67
    s_mul_i32 s82, s66, {16*896}
    s_add_u32 s83, s82, {32*896}
    s_mul_i32 s84, s64, 28672
    s_lshl_b32 s86, s64, 11
    s_lshl_b32 s87, s64, 12
    ''')
    def item(it):
        L = []
        kind, n = it; sb = SLOT[it] * 16384
        if kind == 'x':
            for jj in range(4):
                def f(jj=jj):
                    if jj == 0:
                        a.e(f's_add_u32 s78, s78, 128\ns_cmp_eq_u32 s78, 896\ns_cselect_b32 s78, 0, s78\ns_mul_i32 s85, s78, 1792\ns_add_u32 s85, s85, s84')
                    if jj % 2 == 0: a.e(f's_add_u32 s73, s{82+(jj>>1)}, s78')
                    a.e(f's_add_u32 m0, s87, {sb + jj*1024}')
                    vm.issue(f'buffer_load_dwordx4 v{12+(jj&1)}, s[24:27], s73 offen lds', it)
                L.append(f)
        elif kind == 'w':
            for e in range(2):
                for mat in range(2):
                    def f(e=e, mat=mat):
                        if mat == 0: a.e(f's_add_u32 s73, s85, {(n&1)*114688 + e*14336}')
                        a.e(f's_add_u32 m0, s86, {sb + mat*8192 + e*1024}')
                        vm.issue(f'buffer_load_dwordx4 v11, s[{28+4*mat}:{31+4*mat}], s73 offen lds', it)
                    L.append(f)
        else:
            for i in range(4):
                def f(i=i):
                    if i == 0:
                        a.e(f's_add_u32 s85, s61, {n}\ns_cmp_ge_u32 s85, 7\ns_cselect_b32 s73, 7, 0\ns_sub_u32 s85, s85, s73' if ROT2 else f's_mov_b32 s85, {n}')
                        a.e(f's_mul_i32 s85, s85, 28672\ns_add_u32 s85, s85, s{74 if kind == "a" else 75}')
                    a.e(f's_add_u32 s73, s85, {i*7168}\ns_add_u32 m0, s87, {sb + i*1024}')
                    vm.issue(f'buffer_load_dwordx4 v29, s[36:39], s73 offen lds', it)
                L.append(f)
        return L
    for it in ITEMS[3:]:
        if WHEN[it] == -1:
            for f in item(it): f()
    srd(a, 36, 16, 0, SZ_WG)
    wd_addr(a, 29, 5, 6)
    a.e(f'''
    s_mul_i32 s74, s64, {224*896}
    s_lshl_b32 s75, s61, 7
    s_add_u32 s74, s74, s75
    s_add_u32 s75, s74, {4*224*896}
    v_lshlrev_b32 v30, 2, v0
    v_add_u32 v30, {XCNT}, v30
    v_mov_b32 v31, 0
    ds_write_b32 v30, v31
    ''')
    import re
    K = [re.sub(r'\bv28\b', 'v53', l) for l in fft_consts()]
    KPRE = opt('KPRE', 40)
    for l in K[:KPRE]: a.e(l)
    K = K[KPRE:]
    KS = [int(x) for x in os.environ.get('KS', '0,1,2,3,4,5,6,7').split(',')]
    kper = -(-len(K) // len(KS))
    for c in range(LB + 1):
        ns = [vm.cnt(t) for t in ([('w', c)] if c < LB else [('w', 13)]) + ([('x', c // 2)] if c % 2 == 0 and c <= 12 else [])]
        ns = [n for n in ns if n is not None]
        a.e('s_waitcnt lgkmcnt(0)' + (f' vmcnt({min(ns)})' if ns else ''))
        if c == 0: m2(a, 1, 1)
        a.e('s_barrier')
        if c == 0: m2(a, 2, 1)
        if c == 8: fft_setup(a)
        work = []
        for it in ITEMS:
            if WHEN[it] == c: work += item(it)
        if c == LB: work += ['s_lshl_b32 s73, s64, 28', lambda: vm.issue('buffer_load_dword v17, v18, s[40:43], s73 offen sc1', 'fd')]
        if c in KS: work += K[KS.index(c)*kper:(KS.index(c)+1)*kper]
        for w in work: emit(a, w)
        if c == 5: m2(a, 1, 4)
    m2(a, 2, 4)
    vm.wait('fd')
    m2(a, 3, 1)
    a.e(f's_mov_b32 s76, 0\nv_mov_b32 v30, {RCNT}')
    for c in range(LB + 1, LB + 1 + HK): HOOK.setdefault(-1, []).append(c)
    fft_body(a, vm)
    a.e('s_cmp_lg_u32 s76, 0\ns_cbranch_scc1 fft_end')
    a.e('s_branch gemm2h')
    vm = VM(a)
    for c in range(LB + 1, LB + 1 + HK):
        a.label(f'hk{c}'); a.fence()
        a.e('s_mov_b32 s77, 400000')
        a.label(f'hk{c}_sp'); a.fence()
        a.e(f'''
        ds_read_b32 v31, v30 offset:{4*c}
        s_waitcnt lgkmcnt(0)
        v_readfirstlane_b32 s73, v31
        s_sub_u32 s77, s77, 1
        s_cbranch_scc1 hk{c}_go
        s_cmp_lt_u32 s73, 4
        s_cbranch_scc1 hk{c}_sp
        ''')
        a.label(f'hk{c}_go'); a.fence()
        for it in ITEMS:
            if WHEN[it] == c:
                for f in item(it): f()
        a.e(f's_branch hk{c}_ret')
    a.label('fft_end'); a.fence()
    a.e(f'v_mov_b32 v30, 1\ns_waitcnt vmcnt(0)\nbuffer_store_dword v30, v28, s[40:43], 0 offen{SS}')
    endpgm(a, 0, 22)
    emit_stubs(a)

WIMG = 57344
SSCR = WIMG + 65536
def dft(a):
    a.label('dft_wg'); a.fence()
    vm = VM(a)
    RAW, PM = 32, 16
    FPRE = opt('FPRE', 4); assert FPRE <= 5
    def FR(par, qq): return 176 + 8*(qq % (FPRE + 1)) + 4*par
    AC = 64
    WS_ = 64
    a.e(f'''
    s_sub_u32 s57, s57, 28
    s_lshr_b32 s59, s56, 1
    s_lshl_b32 s59, s59, 1
    s_and_b32 s65, s56, 1
    s_lshl_b32 s65, s65, 3
    s_add_u32 s59, s59, s65
    s_lshr_b32 s65, s57, 1
    s_add_u32 s59, s59, s65              ; g
    s_and_b32 s58, s57, 1                ; hf
    s_lshl_b32 s60, s56, 2
    s_add_u32 s60, s60, s57              ; di
    s_lshl_b32 s65, s59, 3
    s_and_b32 s66, s3, 6
    s_add_u32 s65, s65, s66
    s_add_u32 s65, s65, s58
    s_mul_i32 s65, s65, {16*896}
    s_and_b32 s66, s3, 1
    s_cmp_eq_u32 s66, 1
    s_cselect_b64 vcc, -1, 0
    v_cndmask_b32 v12, v12, v13, vcc
    s_lshl_b32 s71, s3, 10
    v_lshrrev_b32 v3, 5, v0              ; h
    v_and_b32 v1, 31, v0                 ; l31
    s_cmp_eq_u32 s3, 7
    s_waitcnt lgkmcnt(0)
    s_cbranch_scc1 l1_clr
    ''')
    a.label('l1_ret')
    srd(a, 24, 4, 0, SZ_X)
    a.e('s_mov_b32 s73, s65')
    def xdma(vm, u):
        a.e(f's_add_u32 s67, s73, {u*128}\ns_add_u32 m0, s71, {u*8192}')
        vm.issue(f'buffer_load_dwordx4 v12, s[24:27], s67 offen lds', ('x', u))
    for u in range(7): xdma(vm, u)
    srd(a, 44, 22, OFF_Z1, SZ_Z1)
    a.e(f's_mov_b32 s79, {TMO}')
    a.e(f'''
    s_lshl_b32 s83, s59, 9
    s_lshl_b32 s69, s58, 8
    s_add_u32 s83, s83, s69              ; g*512 + hf*256
    ''')
    a.e(f'''
    v_lshlrev_b32 v2, 5, v1
    v_lshl_add_u32 v2, v3, 13, v2
    v_bfe_u32 v6, v0, 3, 1
    v_lshl_add_u32 v2, v6, 4, v2
    v_add_u32 v2, s71, v2
    v_xor_b32 v6, 16, v2
    s_mov_b32 s70, 0x05040100
    s_mov_b32 s71, 0x07060302
    s_cmp_eq_u32 s3, 7
    s_cbranch_scc1 dft_stat
    ''')
    def prep(prs, regs):
        for pr, R in zip(prs, regs):
            if pr == 3: a.e('s_mov_b32 exec_hi, 0')
            a.e(f'ds_read_b128 {q(R)}, v2 offset:{pr*16384}\nds_read_b128 {q(R+4)}, v6 offset:{pr*16384}')
        if 3 in prs: a.e('s_mov_b64 exec, -1')
        for n, (pr, R) in enumerate(zip(prs, regs)):
            a.e(f's_waitcnt lgkmcnt({2*(len(prs) - 1)})')
            for par in range(2):
                for jj in range(4):
                    a.e(f'v_perm_b32 v{R+8+4*par+jj}, v{R+2*jj+1}, v{R+2*jj}, s{70+par}')
            if pr == 3: a.e('s_mov_b32 exec_hi, 0')
            a.e(f'ds_write_b128 v2, {q(R+8)} offset:{pr*16384}\nds_write_b128 v6, {q(R+12)} offset:{pr*16384}')
        if 3 in prs: a.e('s_mov_b64 exec, -1')
        a.e('s_waitcnt lgkmcnt(0)')
    vms = vm.copy()
    a.e(f'''
    v_and_b32 v8, 15, v0
    v_lshlrev_b32 v8, 4, v8              ; l15*16
    v_lshrrev_b32 v9, 4, v0              ; 2h + b16
    v_mul_u32_u24 v10, {ZS1}, v9
    v_add_u32 v10, v10, v8
    v_sub_u32 v11, 3, v9
    v_mul_u32_u24 v11, {ZS1}, v11
    v_add_u32 v11, v11, v8
    s_lshl_b32 s65, s3, 4                ; 16 i
    s_mul_i32 s84, s65, {ZS1}
    s_add_u32 s84, s84, s83
    s_sub_u32 s66, 221, s65
    s_mul_i32 s66, s66, {ZS1}
    s_add_u32 s86, s66, s83
    v_add_u32 v13, s66, v11
    v_add_u32 v8, {112*ZS1}, v8
    s_cmp_eq_u32 s3, 0
    s_cselect_b32 s80, -1, 0
    s_mov_b32 s81, 0                     ; s[80:81]: wave 0, h = 0
    s_cselect_b32 s66, 16, 0
    v_cmp_gt_u32 vcc, s66, v0
    v_cndmask_b32 v13, v13, v8, vcc
    ''')
    def z1st(kind, n, r, tag):
        if kind == 0:
            a.e(f's_add_u32 s67, s84, {4*n*ZS1}')
            vm.issue(f'buffer_store_dwordx4 {q(r)}, v10, s[44:47], s67 offen{SS}', tag)
        elif n == 0:
            vm.issue(f'buffer_store_dwordx4 {q(r)}, v13, s[44:47], s83 offen{SS}', tag)
        else:
            a.e(f's_sub_u32 s67, s86, {4*n*ZS1}')
            vm.issue(f'buffer_store_dwordx4 {q(r)}, v11, s[44:47], s67 offen{SS}', tag)
    a.e(f'''
    v_lshrrev_b32 v8, 1, v1
    v_add_u32 v8, s65, v8                ; p
    v_and_b32 v9, 1, v1
    v_cvt_f32_u32 v14, v9
    v_mul_f32 v14, 0x3e800000, v14       ; phase O
    v_cmp_eq_u32 vcc, 1, v1
    s_cmp_eq_u32 s3, 0
    s_cselect_b64 vcc, vcc, 0
    v_mov_b32 v9, 112
    v_cndmask_b32 v8, v8, v9, vcc
    v_cndmask_b32 v15, v14, 0, vcc       ; phase E
    v_cvt_f32_u32 v8, v8
    v_mul_f32 v8, {fh(1/448)}, v8        ; p/448
    v_mul_f32 v9, {fh(32.0)}, v8
    v_cos_f32 v4, v9
    v_add_f32 v4, v4, v4
    v_lshlrev_b32 v16, 4, v3
    v_cvt_f32_u32 v16, v16             ; 16 h
    v_fma_f32 v15, v16, v8, v15         ; arg E (j=0,q=0)
    v_fma_f32 v14, v16, v8, v14
    v_add_f32 v14, v14, v8               ; arg O
    v_add_f32 v16, v8, v8               ; 2 step
    s_mov_b32 s87, 0x05040100
    s_mov_b32 s78, 0x07060302
    ''')
    P0, P1 = 144, 160
    for par in range(2):
        ar = 15 - par
        for j in range(8):
            a.e(f'''
            v_sub_f32 v17, v{ar}, v9
            v_cos_f32 v{P0+8*par+j}, v{ar}
            v_cos_f32 v{P1+8*par+j}, v17
            v_add_f32 v{ar}, v{ar}, v16
            ''')
    def fgen(qq):
        cur, prv = (P0, P1) if qq % 2 == 0 else (P1, P0)
        L = []
        for par in range(2):
            for jj in range(4):
                L.append(f'v_cvt_pk_bf16_f32 v{FR(par, qq)+jj}, v{cur+8*par+2*jj}, v{cur+8*par+2*jj+1}')
        if qq < 13:
            for r in range(0, 16, 2):
                L.append(f'v_pk_fma_f32 {d2(prv+r)}, v[4:5], {d2(cur+r)}, {d2(prv+r)} op_sel_hi:[0,1,1] neg_lo:[0,0,1] neg_hi:[0,0,1]')
        return L
    for qq in range(FPRE):
        for l in fgen(qq): a.e(l)
    a.e(f'''
    v_bfe_u32 v9, v0, 1, 3
    v_lshlrev_b32 v8, 1, v3
    v_xor_b32 v9, v9, v8
    v_lshlrev_b32 v9, 4, v9
    v_lshl_add_u32 v8, v1, 7, v9
    v_xor_b32 v9, 16, v8
    v_xor_b32 v14, 64, v8
    v_xor_b32 v15, 80, v8
    ''')
    m2(a, 1, 3)
    vm.wait(('x', 1))
    prep([0], [16])
    m2(a, 1, 1)
    a.e('s_barrier')
    m2(a, 2, 1)
    def rd(qq):
        b = RAW + 16 * (qq & 1)
        base = (8, 9) if qq % 2 == 0 else (14, 15)
        return [f'ds_read_b128 {q(b+8*tau+4*e)}, v{base[e]} offset:{(qq>>1)*8192 + tau*4096}' for tau in range(2) for e in range(2)]
    for l in rd(0): a.e(l)
    JR = 128
    for qq in range(14):
        b = RAW + 16 * (qq & 1)
        nxt = rd(qq+1) if qq < 13 else []
        a.e('s_waitcnt lgkmcnt(0)')
        if qq == 3:
            m2(a, 2, 3)
            vm.wait(('x', 6))
            prep([1, 2, 3], [16, 128, 240])
            a.e('s_barrier')
            m2(a, 3, 3)
        if qq == 5: m2(a, 1, 2)
        if qq == 10: m2(a, 4, 2)
        if qq == 12: m2(a, 1, 4)
        if qq == 7: m2(a, 2, 2)
        for l in nxt: a.e(l)
        G = fgen(qq + FPRE) if qq + FPRE < 14 else []
        def ge(l): vm.issue(l, 'wt') if l.startswith('buffer') else a.e(l)
        ng = (len(G) + 3) // 4
        for tau in range(2):
            for par in range(2):
                d = AC + 16*(2*par + tau)
                a.e(f'v_mfma_f32_32x32x16_bf16 v[{d}:{d+15}], {q(FR(par, qq))}, {q(b+8*tau+4*par)}, ' + ('0' if qq == 0 else f'v[{d}:{d+15}]'))
                for l in G[:ng]: ge(l)
                G = G[ng:]
        assert not G
    m2(a, 3, 1)
    a.e(f'''
    v_lshlrev_b32 v8, 3, v1
    v_add_u32 v8, {SSCR + 512}, v8
    ''')
    m2(a, 2, 4)
    a.e(f'v_mov_b32 v9, {RCNT}\ns_mov_b32 s77, 400000')
    a.label('df_sp'); a.fence()
    a.e(f'''
    ds_read_b32 v20, v9
    ds_read_b64 v[16:17], v8
    ds_read_b64 v[18:19], v8 offset:256
    s_waitcnt lgkmcnt(0)
    v_readfirstlane_b32 s67, v20
    s_sub_u32 s77, s77, 1
    s_cbranch_scc1 df_spok
    s_cmp_eq_u32 s67, 0
    s_cbranch_scc1 df_sp
    ''')
    a.label('df_spok'); a.fence()
    m2(a, 3, 4)
    m2(a, 4, 3)
    for n in range(4):
        LO = 144 + 8*n; HI = LO + 4
        for e in range(2):
            aa = 2*n + e
            for tau in range(2):
                E = AC + 16*tau + 2*aa; O = AC + 32 + 16*tau + 2*aa; r = 16 + 2*tau
                t = 20 + 6*tau
                a.e(f'''
                v_mul_f32 v{O}, v{O}, v{r}
                v_mul_f32 v{O+1}, v{O+1}, v{r}
                v_fma_f32 v{t}, v{E}, v{r}, v{O}
                v_fma_f32 v{t+1}, v{E+1}, v{r}, v{O+1}
                v_fma_f32 v{t+2}, v{E}, v{r}, -v{O}
                v_fma_f32 v{t+3}, -v{E+1}, v{r}, v{O+1}
                ''')
                if aa == 0:
                    a.e(f'''
                    v_mul_f32 v{t+4}, v{E+1}, v{r}
                    v_sub_f32 v{t+5}, v{t}, v{r+1}
                    v_cndmask_b32 v{t}, v{t}, v{t+5}, s[80:81]
                    v_cndmask_b32 v{t+1}, v{t+1}, v{t+2}, s[80:81]
                    v_cndmask_b32 v{t+2}, v{t+2}, v{t+4}, s[80:81]
                    v_cndmask_b32 v{t+3}, v{t+3}, v{O+1}, s[80:81]
                    ''')
                a.e(f'''
                v_cvt_pk_bf16_f32 v{LO+2*tau+e}, v{t}, v{t+1}
                v_cvt_pk_bf16_f32 v{HI+2*tau+e}, v{t+2}, v{t+3}
                ''')
        for r in (LO, LO+2, HI, HI+2):
            a.e(f'v_permlane16_swap_b32 v{r}, v{r+1}')
        z1st(0, n, LO, 'z1'); z1st(1, n, HI, 'z1')
    m2(a, 4, 1)
    a.e('s_waitcnt vmcnt(0)\ns_barrier')
    m2(a, 4, 4)
    a.label('dft_tail'); a.fence()
    a.e('s_cmp_lg_u32 s2, 0\ns_cbranch_scc1 dft_end\ns_cmp_lt_u32 s3, 4\ns_cbranch_scc1 dft_end')
    vm = VM(a)
    for l in fft_consts(): a.e(l)
    a.e(f's_mov_b32 s62, 0\ns_mov_b32 s63, 224\ns_mov_b32 s76, 1\nv_mov_b32 v29, 0\nv_mov_b32 v17, 0')
    fft_setup(a)
    a.e('s_branch fft_body')
    a.label('dft_end'); a.fence()
    endpgm(a, 0, 22)
    a.label('l1_clr'); a.fence()
    assert OFF_FL == OFF_ST + SZ_ST and SZ_FL <= 24*3072
    srd(a, 48, 22, OFF_ST, SZ_ST + SZ_FL)
    a.e(f'''
    v_lshlrev_b32 v24, 4, v0
    s_lshl_b32 s80, s60, 11
    s_add_u32 s67, s80, 2048
    s_mul_i32 s81, s60, 3072
    s_sub_u32 s81, s81, {8*3072 - SZ_ST}
    s_cmp_lt_u32 s60, 8
    s_cselect_b32 s80, s80, s81
    s_cselect_b32 s50, s67, s50
    s_cselect_b32 s67, -1, 0
    ''')
    for i in range(4): a.e(f'v_mov_b32 v{16+i}, s67')
    for i in range(3): a.e(f'buffer_store_dwordx4 {q(16)}, v24, s[48:51], s80 offen offset:{i*1024}{SS}')
    a.e('s_branch l1_ret')
    a.label('dft_stat'); a.fence()
    vm = vms
    srd(a, 52, 22, OFF_ST, SZ_ST)
    dbg_srd(a)
    fl_srd(a, 36)
    a.e(f'''
    v_lshlrev_b32 v4, 2, v0
    v_lshlrev_b32 v23, 20, v0
    v_mov_b32 v22, 1
    ''')
    a.e(f'''
    v_add_u32 v30, {XCNT}, v4
    v_mov_b32 v31, 0
    ds_write_b32 v30, v31
    v_and_b32 v8, 15, v0                 ; n
    v_lshrrev_b32 v9, 4, v0              ; q4
    v_bfe_u32 v10, v0, 1, 3              ; f
    v_xor_b32 v10, v10, v9
    v_lshlrev_b32 v10, 4, v10
    v_lshl_add_u32 v10, v8, 7, v10       ; kk = 0
    v_xor_b32 v11, 64, v10               ; kk = 1
    v_mov_b32 v144, 0x3f803f80
    v_mov_b32 v145, 0x3f803f80
    v_mov_b32 v146, 0x3f803f80
    v_mov_b32 v147, 0x3f803f80
    v_lshlrev_b32 v8, 3, v8
    v_add_u32 v8, {SSCR}, v8
    v_lshlrev_b32 v9, 3, v0
    v_add_u32 v9, {SSCR}, v9
    v_and_b32 v13, 3, v0
    v_cmp_eq_u32 s[68:69], 1, v13
    v_cmp_eq_u32 s[86:87], 2, v13
    v_cmp_eq_u32 s[74:75], 3, v13
    s_mov_b32 s85, 0xffff0000
    s_waitcnt vmcnt(7)
    ''')
    vm.issue('buffer_atomic_add v22, v23, s[40:43], 0 offen sc1', 'l1s')
    m2(a, 1, 5)
    m2(a, 2, 5)
    vm.wait(('x', 1))
    a.e('s_waitcnt lgkmcnt(0)')
    prep([0], [96])
    m2(a, 1, 1)
    a.e('s_barrier')
    m2(a, 2, 1)
    a.e('s_setprio 2')
    QA, SA, RB = 160, 176, 32
    def srd_(u):
        b = RB + 32 * (u & 1)
        return [f'ds_read_b128 {q(b+16*kk+4*tt)}, v{10+kk} offset:{u*8192 + tt*2048}' for kk in range(2) for tt in range(4)]
    for l in srd_(0): a.e(l)
    for u in range(7):
        b = RB + 32 * (u & 1)
        a.e('s_waitcnt lgkmcnt(0)')
        if u == 1:
            vm.wait(('x', 6))
            prep([1, 2, 3], [96, 112, 128])
            a.e('s_barrier')
            l1_issue(vm, 24, 23)
        if u < 6:
            for l in srd_(u+1): a.e(l)
        for kk in range(2):
            for tt in range(4):
                r = b + 16*kk + 4*tt; first = (u == 0 and kk == 0)
                a.e(f'v_mfma_f32_16x16x32_bf16 {q(QA+4*tt)}, {q(r)}, {q(r)}, ' + ('0' if first else q(QA+4*tt)))
                a.e(f'v_mfma_f32_16x16x32_bf16 {q(SA+4*tt)}, {q(144)}, {q(r)}, ' + ('0' if first else q(SA+4*tt)))
    for tt in range(4):
        a.e(f'''
        v_cndmask_b32 v{SA+4*tt+1}, v{QA+4*tt}, v{QA+4*tt+1}, s[68:69]
        v_cndmask_b32 v{SA+4*tt+1}, v{SA+4*tt+1}, v{QA+4*tt+2}, s[86:87]
        v_cndmask_b32 v{SA+4*tt+1}, v{SA+4*tt+1}, v{QA+4*tt+3}, s[74:75]
        ''')
    a.e('s_mov_b32 exec_lo, 0x00f0000f\ns_mov_b32 exec_hi, 0xf0000f00')
    for tt in range(4):
        a.e(f'ds_write_b64 v8, {d2(SA+4*tt)} offset:{tt*128}')
    a.e(f'''
    s_mov_b64 exec, -1
    s_mov_b32 s84, {fh(1.0/448)}
    s_waitcnt lgkmcnt(0)
    ds_read_b64 v[16:17], v9
    s_waitcnt lgkmcnt(0)
    ''')
    for st in STAT_STEPS[:6]: a.e(st.format(m=16, v=17, t=18))
    a.e('v_cvt_pk_bf16_f32 v20, -v16, -v16')
    for st in STAT_STEPS[6:]: a.e(st.format(m=16, v=17, t=18))
    a.e(f'''
    v_mul_f32 v21, v17, v17
    v_mov_b32 v18, v17
    v_mul_f32 v19, {fh(448.0)}, v16
    s_add_u32 s84, s83, 8192
    ''')
    m2(a, 1, 2)
    a.e(f'''
    ds_write_b64 v9, v[18:19] offset:512
    v_mov_b32 v30, {RCNT}
    s_waitcnt lgkmcnt(0)
    ds_write_b32 v30, v22
    ''')
    vm.wait('l1')
    l1_check(a, 'dfs', 24, 23)
    vm.issue(f'buffer_store_dword v20, v4, s[52:55], s83 offen{SS}', 'st')
    vm.issue(f'buffer_store_dword v21, v4, s[52:55], s84 offen{SS}', 'st')
    a.e('s_setprio 0')
    m2(a, 3, 1)
    m2(a, 3, 2)
    a.e(f'''
    v_lshlrev_b32 v14, 7, v0
    s_lshl_b32 s67, s60, 2
    s_waitcnt vmcnt(0)
    ''')
    m2(a, 4, 1)
    a.e(f'''
    s_barrier
    buffer_atomic_add v22, v14, s[36:39], 0 offen sc1
    s_branch dft_tail
    ''')

def gen_v2(a, name):
    a.raw('.p2align 8')
    a.label(name)
    a.e(f'''
    s_cmp_ge_u32 s2, 256
    s_cbranch_scc1 f_end
    ''')
    diag_start(a)
    a.e(f'''
    s_load_dwordx16 s[4:19], s[0:1], 0
    s_load_dwordx4 s[20:23], s[0:1], 64
    ''')
    if opt('IPF', 1):
        a.raw('  s_getpc_b64 s[86:87]')
        a.raw('pc0:')
        a.raw('  v_lshlrev_b32 v252, 7, v0')
        a.raw('  v_min_u32 v252, f_end-pc0, v252')
        a.raw('  v_mov_b32 v253, s87')
        a.raw('  v_add_co_u32 v252, vcc, s86, v252')
        a.raw('  v_addc_co_u32 v253, vcc, 0, v253, vcc')
        a.raw('  global_load_dword v255, v[252:253], off')
    a.e(f'''
    v_lshrrev_b32 v1, 6, v0
    v_and_b32 v0, 63, v0
    v_readfirstlane_b32 s3, v1
    v_lshrrev_b32 v3, 3, v0              ; r
    v_and_b32 v4, 7, v0                  ; a
    v_lshrrev_b32 v5, 4, v0              ; r>>1
    v_xor_b32 v4, v4, v5
    v_mul_u32_u24 v12, 896, v3
    v_lshl_add_u32 v12, v4, 4, v12
    v_xor_b32 v13, 64, v12
    v_add_u32 v13, {8*896}, v13
    s_and_b32 s56, s2, 7
    s_lshr_b32 s57, s2, 3
    s_add_u32 s57, s57, 28
    s_and_b32 s57, s57, 31
    s_and_b32 s64, s3, 3
    s_cmp_ge_u32 s57, 28
    s_cbranch_scc1 dft_wg
    s_lshr_b32 s65, s56, 1
    s_mul_i32 s65, s65, 28
    s_add_u32 s65, s65, s57
    s_lshr_b32 s58, s65, 3               ; ct
    s_and_b32 s59, s65, 7
    s_and_b32 s65, s56, 1
    s_lshl_b32 s65, s65, 3
    s_add_u32 s59, s59, s65              ; rb
    ''')
    if opt('LOC', 0): a.e('''
    s_lshr_b32 s58, s57, 1
    s_and_b32 s59, s57, 1
    s_lshl_b32 s65, s56, 1
    s_add_u32 s59, s59, s65
    ''')
    a.e(f'''
    s_mul_i32 s60, s57, 37
    s_lshr_b32 s60, s60, 8               ; j/7
    s_mul_i32 s61, s60, 7
    s_sub_u32 s61, s57, s61              ; dt64
    s_lshl_b32 s65, s56, 2
    s_add_u32 s60, s60, s65              ; st64
    s_mul_i32 s62, s56, 28
    s_add_u32 s62, s62, s57              ; p
    s_mov_b32 s63, s62
    ''')
    gu(a)
    gemm2(a)
    dft(a)
    a.label('f_end')
    a.e('s_endpgm')
```

```python
from dsl import *
from c2 import *
import fused
from fused import VM, q, d2, m2, fft_consts, STAT_STEPS
from fused import C64R, C64I, C32R, C32I, TW1, TW2, XA, WV, DR, DI, ER, EI, PK, WU

SS = {0: ' sc0 sc1', 1: ' sc1', 2: ' sc0 sc1 nt', 3: ' sc1 nt'}[int(os.environ.get('SSM', '0'))]
MISC = 9 * 16384
XCH = MISC
XCNT = MISC + 8192
FLG = MISC + 8192 + 64
TMO = 20000
def acc(i, t): return 128 + 16 * (i * 4 + t)
def opt(name, dflt): return int(os.environ.get(name, str(dflt)))

ITEMS = []
for u in range(7): ITEMS += [('x', u), ('w', 2*u), ('w', 2*u+1)]
ITEMS += [('a', i) for i in range(4)] + [('b', i) for i in range(4)]
def schedule():
    la = opt('LA', 2)
    pre = opt('PRE', 5)
    free = list(range(9)); slot = {}; when = {}
    n = 0
    for _ in range(pre):
        slot[ITEMS[n]] = free.pop(0); when[ITEMS[n]] = -1; n += 1
    for c in range(15):
        if c >= 1: free.append(slot[('w', c-1)])
        if c >= 2 and c % 2 == 0: free.append(slot[('x', c//2 - 1)])
        k = 0
        while n < len(ITEMS) and free and (k < la or c == 14):
            slot[ITEMS[n]] = free.pop(0); when[ITEMS[n]] = c; n += 1; k += 1
    assert n == len(ITEMS)
    return slot, when
FFT_ISSUE = opt('FFT_ISSUE', 11)
LB = opt('LB', 11)
SLOT, WHEN = schedule()
assert all(WHEN[('a', i)] <= LB for i in range(4)), WHEN
RCNT = XCNT + 128
HOOK = {}

NOCLR = opt('NOCLR', 0)
HSS = '' if opt('FAST', 0) else SS
HPL = ' nt' if opt('FAST', 0) == 1 else ' sc1'
HS = ['', ' sc1', ' nt'][opt('HSM', 0)]
_iss = VM.issue
def _issue(self, text, tag):
    if tag in ('clr', 'cla') and NOCLR: return
    _iss(self, text, tag)
VM.issue = _issue
_cnt = VM.cnt
def _cnt2(self, tag):
    if tag not in self.ops: return None
    return _cnt(self, tag)
VM.cnt = _cnt2
def dbg_srd(a, d=40): srd(a, d, 20, 0, 256)
def fl_srd(a, d): srd(a, d, 22, OFF_FL, SZ_FL)
def poll1(a, tag, vd, va, slp, R=40, first=False, sc=' sc1', val=1):
    a.e(f's_mov_b32 s77, {TMO}')
    if first: a.e(f's_branch {tag}_ld')
    a.label(f'{tag}_pl'); a.fence()
    a.e(f'''
    v_cmp_ne_u32 vcc, {val}, v{vd}
    s_nop 1
    s_cbranch_vccz {tag}_ok
    s_sub_u32 s77, s77, 1
    s_cbranch_scc1 {tag}_ok
    s_sub_u32 s79, s79, {1 if DIAG else 0}
    s_sleep {slp}
    ''')
    a.label(f'{tag}_ld'); a.fence()
    a.e(f'''
    buffer_load_dword v{vd}, v{va}, s[{R}:{R+3}], 0 offen{sc}
    s_waitcnt vmcnt(0)
    s_branch {tag}_pl
    ''')
    a.label(f'{tag}_ok'); a.fence()
FPL = '' if opt('CPLAIN', 1) else ' sc1'
def l1_issue(vm, vd, vz, sc=FPL):
    vm.issue(f'buffer_load_dword v{vd}, v{vz}, s[40:43], 0 offen{sc}', 'l1')
def l1_check(a, tag, vd, vz, slp=8, sr=80):
    a.e(f's_mov_b32 s77, {TMO}')
    a.label(f'{tag}_l1'); a.fence()
    a.e(f'''
    v_readfirstlane_b32 s{sr}, v{vd}
    s_cmp_eq_u32 s{sr}, 32
    s_cbranch_scc1 {tag}_l1ok
    s_sub_u32 s77, s77, 1
    s_cbranch_scc1 {tag}_l1ok
    s_sleep {slp}
    buffer_load_dword v{vd}, v{vz}, s[40:43], 0 offen sc1
    s_waitcnt vmcnt(0)
    s_branch {tag}_l1
    ''')
    a.label(f'{tag}_l1ok'); a.fence()
def fl_loads(vd, va, R, offs, sc):
    return [f'buffer_load_dwordx4 {q(vd+4*i)}, v{va}, s[{R}:{R+3}], 0 offen offset:{o}{sc}' for i, o in enumerate(offs)]
def fl_check(a, tag, vd, va, R, offs, ves, slp=8, alt=None, sr=80):
    a.e(f's_mov_b32 s77, {TMO}')
    a.label(f'{tag}_fl'); a.fence()
    for i in range(len(offs)):
        a.e(f'v_and_b32 v{vd+4*i}, v{vd+4*i}, v{vd+4*i+2}')
        a.e(f'v_cmp_ne_u32 ' + ('vcc' if i == 0 else f's[{sr}:{sr+1}]') + f', {ves[i]}, v{vd+4*i}')
        if i: a.e(f's_or_b64 vcc, vcc, s[{sr}:{sr+1}]')
    a.e(f'''
    s_nop 1
    s_cbranch_vccz {tag}_flok
    s_sub_u32 s77, s77, 1
    s_cbranch_scc1 {tag}_flok
    s_sleep {slp}
    ''')
    if alt:
        a.e(f's_add_u32 s{sr}, s77, {alt}\ns_and_b32 s{sr}, s{sr}, 7\ns_cmp_eq_u32 s{sr}, 0\ns_cbranch_scc1 {tag}_fs')
        for l in fl_loads(vd, va, R, offs, ''): a.e(l)
        a.e(f's_waitcnt vmcnt(0)\ns_branch {tag}_fl')
        a.label(f'{tag}_fs'); a.fence()
    for l in fl_loads(vd, va, R, offs, ' sc1'): a.e(l)
    a.e(f's_waitcnt vmcnt(0)\ns_branch {tag}_fl')
    a.label(f'{tag}_flok'); a.fence()

def maxchain(regs, t0, t1):
    L = []; regs = list(regs)
    h = (len(regs) + 1) // 2
    for t, rs in ((t0, regs[:h]), (t1, regs[h:])):
        rs = list(rs)
        if len(rs) == 1: L.append(f'v_mov_b32 v{t}, v{rs[0]}'); continue
        if len(rs) == 2: L.append(f'v_max_u32 v{t}, v{rs[0]}, v{rs[1]}'); continue
        L.append(f'v_max3_u32 v{t}, v{rs[0]}, v{rs[1]}, v{rs[2]}'); rs = rs[3:]
        while len(rs) >= 2:
            L.append(f'v_max3_u32 v{t}, v{t}, v{rs[0]}, v{rs[1]}'); rs = rs[2:]
        if rs: L.append(f'v_max_u32 v{t}, v{t}, v{rs[0]}')
    L.append(f'v_max_u32 v{t0}, v{t0}, v{t1}')
    return L

STUBS = []
def check(a, tag, regs, t0, t1, reissue, nwait=0):
    a.label(f'{tag}_chk')
    for l in maxchain(regs, t0, t1): a.e(l)
    a.e(f'''
    v_cmp_eq_u32 vcc, -1, v{t0}
    s_nop 1
    s_cbranch_vccnz {tag}_stub
    ''')
    a.label(f'{tag}_ok')
    STUBS.append((tag, reissue, nwait))
def emit_stubs(a):
    for tag, reissue, nwait in STUBS:
        a.label(f'{tag}_stub'); a.fence()
        a.e(f'''
        s_cmp_eq_u32 s79, 0
        s_cbranch_scc1 {tag}_ok
        s_sub_u32 s79, s79, 1
        s_sleep {opt('RSLEEP', 6)}
        ''')
        for l in reissue: a.e(l)
        a.e(f's_waitcnt vmcnt({nwait})\ns_branch {tag}_chk')
    STUBS.clear()

def fft_loads():
    return [f'buffer_load_dwordx4 {q(XA+16*t+4*u)}, v6, s[44:47], s{69+(u>>1)} offen offset:{(u&1)*2048 + t*256}' for u in range(4) for t in range(2)]
def fd_addr(a, v, t0, t1):
    a.e(f'''
    s_and_b32 s{t0}, s63, 63
    s_lshl_b32 s{t0}, s{t0}, 7
    v_mov_b32 v{v}, s{t0}
    s_and_b32 s{t0}, s63, 3
    s_lshl_b32 s{t0}, s{t0}, 7
    s_add_u32 s{t0}, s{t0}, {FW}
    s_lshr_b32 s{t1}, s63, 5
    s_lshl_b32 s{t1}, s{t1}, 9
    s_add_u32 s{t1}, s{t1}, s{t0}
    v_writelane_b32 v{v}, s{t1}, 1
    s_add_u32 s{t1}, s63, 1
    s_lshr_b32 s{t1}, s{t1}, 5
    s_lshl_b32 s{t1}, s{t1}, 9
    s_add_u32 s{t1}, s{t1}, s{t0}
    s_add_u32 s{t1}, s{t1}, 4096
    v_writelane_b32 v{v}, s{t1}, 2
    ''')
def fft_setup(a):
    srd(a, 44, 22, OFF_Z1, SZ_Z1)
    srd(a, 48, 22, OFF_WT, SZ_WT)
    fl_srd(a, 40)
    a.e(f'''
    v_and_b32 v1, 15, v0                 ; l15
    v_lshrrev_b32 v2, 4, v0              ; q
    v_lshlrev_b32 v3, 4, v0              ; lane*16
    s_mul_i32 s69, s62, {ZS1}
    s_add_u32 s70, s69, 4096
    v_and_b32 v5, 1, v0
    v_lshlrev_b32 v5, 7, v5
    v_lshrrev_b32 v6, 1, v1
    v_lshl_add_u32 v5, v6, 4, v5
    v_lshl_add_u32 v5, v2, 10, v5        ; q*1024 + par*128 + (l15>>1)*16
    v_lshlrev_b32 v6, 4, v1
    v_lshl_add_u32 v6, v2, 9, v6         ; q*512 + l15*16
    s_mul_i32 s71, s63, {WS}
    s_lshl_b32 s72, s64, 8
    s_add_u32 s71, s71, s72
    s_add_u32 s71, s71, {WS}
    s_add_u32 s72, s71, 4096
    ''')
    fd_addr(a, 18, 65, 68)
    a.e(f'''
    s_lshl_b32 s65, s64, 13
    s_lshl_b32 s68, s63, 2
    s_add_u32 s65, s65, s68
    s_add_u32 s65, s65, {FZ}
    v_lshlrev_b32 v28, 10, v0
    v_add_u32 v28, s65, v28
    v_mov_b32 v19, 0x40000000
    v_cmp_gt_u32 vcc, 8, v0
    v_cndmask_b32 v28, v19, v28, vcc
    ''')
def fft_issue(a, vm):
    for l in fft_loads(): vm.issue(l, 'xa')
def wt_issue(a, vm):
    for tm in range(2):
        vm.issue(f'buffer_load_dwordx4 {q(WV+4*tm)}, v5, s[48:51], s{71+tm} offen', 'wv')

def fft_body(a, vm):
    a.label('fft_body'); a.fence()
    a.e(f'''
    s_lshl_b32 s65, s64, 2
    s_add_u32 s65, s65, {FLG}
    v_mov_b32 v8, s65
    v_mov_b32 v9, 1
    ''')
    def hook(pos):
        for c in HOOK.get(pos, []):
            a.e(f's_cmp_eq_u32 s76, 0\ns_cbranch_scc1 hk{c}')
            a.label(f'hk{c}_ret')
            for it in ITEMS:
                if WHEN[it] == c:
                    for _ in range(4): vm.note(it)
    m2(a, 3, 4)
    a.e('''
    s_waitcnt lgkmcnt(0)
    v_readfirstlane_b32 s73, v17
    s_cmp_eq_u32 s73, 0
    s_cbranch_scc1 fd_slow
    ''')
    a.label('fd_go'); a.fence()
    m2(a, 4, 4)
    fft_issue(a, vm)
    wt_issue(a, vm)
    a.e('s_waitcnt vmcnt(10)\nds_write_b32 v8, v9')
    hook(0)
    a.e(f's_cmp_eq_u32 s76, 0\ns_cbranch_scc1 w2_x\ns_waitcnt vmcnt(0)')
    a.label('w2_x')
    vm.wait('wv')
    if opt('FPRIO', 0): a.e('s_setprio 3')
    m2(a, 1, 2)
    srd(a, 44, 22, OFF_Z3, SZ_Z3)
    a.e(f's_cmp_lg_u32 s62, 0\ns_cbranch_scc1 fft_nofix')
    a.e(f's_cmp_eq_u32 s63, 224\ns_cselect_b32 s68, 16, 0')
    for r in range(XA, XA+32):
        a.e(f'v_lshrrev_b32 v{r}, s68, v{r}\nv_and_b32 v{r}, 0xffff, v{r}')
    a.e('s_nop 1')
    a.label('fft_nofix'); a.fence()
    def mm(d, A, B, first):
        c = '0' if first else q(d)
        a.e(f'v_mfma_f32_16x16x32_bf16 {q(d)}, {q(A)}, {q(B)}, {c}')
    for u in range(4):
        for t in range(2):
            mm(DR+4*t, XA+16*t+4*u, C64R+4*u, u == 0)
            mm(DI+4*t, XA+16*t+4*u, C64I+4*u, u == 0)
    def twiddle(R, I, TW, out):
        for t in range(2):
            for i in range(4):
                c = TW + 2*(4*t+i); s = c + 1
                r = R + 4*t + i; im = I + 4*t + i
                t0 = 8 + 2*i
                a.e(f'''
                v_mul_f32 v{t0}, v{r}, v{c}
                v_mul_f32 v{t0+1}, v{im}, v{c}
                v_fmac_f32 v{t0}, v{im}, v{s}
                v_fma_f32 v{t0+1}, -v{r}, v{s}, v{t0+1}
                v_cvt_pk_bf16_f32 v{out+4*t+i}, v{t0}, v{t0+1}
                ''')
    hook(1)
    twiddle(DR, DI, TW1, PK)
    hook(2)
    for t in range(2):
        for tm in range(2):
            mm(ER+4*tm, C32R+8*tm+4*t, PK+4*t, t == 0)
            mm(EI+4*tm, C32I+8*tm+4*t, PK+4*t, t == 0)
    hook(3)
    for tm in range(2):
        for i in range(4):
            n = 4*tm + i
            for c in range(2):
                src = WV + 4*tm + 2*c + (i >> 1)
                if i & 1: a.e(f'v_and_b32 v{WU+8*c+n}, 0xffff0000, v{src}')
                else: a.e(f'v_lshlrev_b32 v{WU+8*c+n}, 16, v{src}')
    for tm in range(2):
        for i in range(4):
            n = 4*tm + i
            xr_ = ER + n; xi = EI + n; wr = WU + n; wi = WU + 8 + n
            t0 = 8 + 2*i
            a.e(f'''
            v_mul_f32 v{t0}, v{xr_}, v{wr}
            v_mul_f32 v{t0+1}, v{xr_}, v{wi}
            v_fma_f32 v{t0}, -v{xi}, v{wi}, v{t0}
            v_fmac_f32 v{t0+1}, v{xi}, v{wr}
            v_cvt_pk_bf16_f32 v{PK+n}, v{t0}, -v{t0+1}
            ''')
    hook(4)
    for tm in range(2):
        for tn in range(2):
            mm(DR+4*tn, PK+4*tm, C32R+8*tn+4*tm, tm == 0)
            mm(DI+4*tn, PK+4*tm, C32I+8*tn+4*tm, tm == 0)
    a.e(f'''
    s_lshl_b32 s68, s64, 11
    s_add_u32 s65, s68, {XCH}
    v_add_u32 v16, s65, v3
    v_add_u32 v7, {XCH}, v3
    v_mov_b32 v4, {XCNT}
    v_mov_b32 v5, 1
    ''')
    hook(5)
    twiddle(DR, DI, TW2, PK)
    a.e(f'''
    ds_write_b128 v16, {q(PK)}
    ds_write_b128 v16, {q(PK+4)} offset:1024
    s_waitcnt lgkmcnt(0)
    s_mov_b64 exec, 1
    ds_add_u32 v4, v5
    s_mov_b64 exec, -1
    s_mul_i32 s69, s63, {ZS3}
    s_add_u32 s68, s68, s69
    ''')
    hook(6)
    a.e('s_mov_b32 s77, 400000')
    if opt('FPRIO', 0): a.e('s_setprio 0')
    a.label('fft_sp'); a.fence()
    a.e(f'''
    ds_read_b32 v5, v4
    s_waitcnt lgkmcnt(0)
    v_readfirstlane_b32 s65, v5
    s_sub_u32 s77, s77, 1
    s_cbranch_scc1 fft_spok
    s_cmp_lt_u32 s65, 4
    s_cbranch_scc1 fft_sp
    ''')
    a.label('fft_spok'); a.fence()
    if opt('FPRIO', 0): a.e('s_setprio 3')
    for u in range(4):
        for tn in range(2):
            a.e(f'ds_read_b128 {q(XA+16*tn+4*u)}, v7 offset:{(2*u+tn)*1024}')
    for u in range(4):
        a.e(f's_waitcnt lgkmcnt({6-2*u})')
        for tn in range(2):
            mm(ER+4*tn, C64R+4*u, XA+16*tn+4*u, u == 0)
            mm(EI+4*tn, C64I+4*u, XA+16*tn+4*u, u == 0)
    for n in range(8):
        a.e(f'v_cvt_pk_bf16_f32 v{PK+n}, v{ER+n}, v{EI+n}')
    for tn in range(2):
        vm.issue(f'buffer_store_dwordx4 {q(PK+4*tn)}, v6, s[44:47], s68 offen offset:{tn*256}{SS}', 'z3')
    hook(7)
    if opt('FPRIO', 0): a.e('s_setprio 0')
    m2(a, 2, 2)

ACC2, AF, HR, GF_ = 192, 128, 16, 72
NH = 7
ROT2 = opt('ROT2', 1)
def wd_addr(a, vr, t0, t1):
    a.e(f'''
    v_lshrrev_b32 v{t0}, 3, v0
    v_bfe_u32 v{t1}, v0, 4, 1
    v_lshlrev_b32 v{t1}, 2, v{t1}
    v_and_b32 v{vr}, 7, v0
    v_xor_b32 v{t1}, v{t1}, v{vr}
    v_mul_u32_u24 v{vr}, 896, v{t0}
    v_lshl_add_u32 v{vr}, v{t1}, 4, v{vr}
    ''')

def g_gen(a, mid=None, at=2):
    a.e(f'''
    s_mul_i32 s65, s64, 56
    v_lshlrev_b32 v8, 2, v5
    v_add_u32 v8, s65, v8                ; p0
    v_cmp_eq_u32 s[80:81], 0, v8
    v_cvt_f32_u32 v8, v8
    s_lshl_b32 s75, s61, 6
    v_add_u32 v9, s75, v4                ; d (b=0)
    v_lshlrev_b32 v12, 31, v9
    v_xor_b32 v12, 0.5, v12              ; +-0.5
    v_cvt_f32_u32 v9, v9
    ''')
    for b in range(2):
        if b == at: mid()
        if b: a.e(f'v_add_f32 v9, {fh(32.0)}, v9')
        a.e(f'v_mul_f32 v10, {fh(1/448)}, v9')
        for z in range(7):
            a.e(f'v_add_f32 v11, {fh(8.0*z)}, v8\nv_mul_f32 v11, v11, v10')
            for j in range(4):
                a.e(f'''
                v_cos_f32 v14, v11
                v_sin_f32 v15, v11
                v_add_f32 v11, v11, v10
                ''')
                if z == 0 and j == 0:
                    a.e(f'''
                    v_cndmask_b32 v14, v14, 0.5, s[80:81]
                    v_cndmask_b32 v15, v15, v12, s[80:81]
                    ''')
                a.e(f'v_cvt_pk_bf16_f32 v{GF_+8*z+4*b+j}, v14, v15')
    if at == 2: mid()

HK = opt('HK', 1)
FLG2, FLG3 = 16, 32
def lds_spin(a, tag, addr, off=0, val=1, va=14, vd=15, slp=0):
    a.e(f'v_mov_b32 v{va}, {addr}\ns_mov_b32 s77, 400000')
    if slp: a.e(f's_branch {tag}_1')
    a.label(tag); a.fence()
    if slp: a.e(f's_sleep {slp}'); a.label(f'{tag}_1')
    a.e(f"""
    ds_read_b32 v{vd}, v{va} offset:{off}
    s_waitcnt lgkmcnt(0)
    v_readfirstlane_b32 s73, v{vd}
    s_sub_u32 s77, s77, 1
    s_cbranch_scc1 {tag}_ok
    s_cmp_lt_u32 s73, {val}
    s_cbranch_scc1 {tag}
    """)
    a.label(f'{tag}_ok'); a.fence()

def probe(a, tag, reg):
    if DIAG != 8: return
    a.e('s_mov_b32 s77, 0')
    mark(a, 1)
    a.label(tag); a.fence()
    for i in range(200): a.e(f'v_add_u32 v{reg}, 0x12345, v{reg}')
    a.e('s_mov_b64 s[92:93], s[94:95]')
    mark(a, 3)
    a.e(f's_waitcnt lgkmcnt(0)\ns_add_u32 s77, s77, 1\ns_cmp_lt_u32 s77, 2\ns_cbranch_scc1 {tag}')

def gemm2(a):
    a.label('gemm2'); a.fence()
    vm = VM(a)
    PA = sum(SLOT[('a', i)] << (4*i) for i in range(4)); PB = sum(SLOT[('b', i)] << (4*i) for i in range(4))
    SP = [x for x in range(9) if x not in [SLOT[(k, i)] for k in 'ab' for i in range(4)]][0]
    LOCS = [SLOT[('a', i)] for i in (0, 1, 2, 3, 0, 1, 2)] + [SLOT[('b', i)] for i in range(4)] + [SLOT[('a', 3)], SP, SLOT[('a', 0)]]
    NH = 14; XR = 16; ZR = 128; T224 = 184
    def common():
        a.e(f"""
        s_lshl_b32 s87, s64, 12
        s_lshl_b32 s86, s64, 2
        s_add_u32 s86, s86, {FLG}
        v_lshrrev_b32 v5, 5, v0              ; h
        v_and_b32 v4, 31, v0                 ; l31
        v_lshlrev_b32 v3, 4, v0              ; lane*16
        """)
    def outaddr():
        srd(a, 48, 18, 0, SZ_X)
        a.e(f"""
        s_lshr_b32 s65, s3, 1
        s_and_b32 s76, s65, 1                ; aa
        s_lshl_b32 s76, s76, 2
        s_lshr_b32 s78, s60, 1
        s_lshl_b32 s78, s78, 3
        s_add_u32 s76, s76, s78
        s_and_b32 s78, s60, 1
        s_add_u32 s76, s76, s78              ; rows/16
        s_mul_i32 s76, s76, {16*896}
        s_lshr_b32 s65, s65, 1               ; b
        s_lshl_b32 s78, s61, 1
        s_add_u32 s78, s78, s65
        s_lshl_b32 s78, s78, 6
        s_add_u32 s76, s76, s78
        s_and_b32 s78, s3, 1
        s_lshl_b32 s78, s78, 5
        s_add_u32 s76, s76, s78
        v_and_b32 v12, 15, v0
        v_bfe_u32 v13, v0, 4, 1
        v_lshl_add_u32 v12, v13, 5, v12
        v_mul_u32_u24 v12, 896, v12
        v_lshrrev_b32 v14, 5, v0
        v_lshl_add_u32 v13, v14, 3, v12
        v_lshl_add_u32 v12, v14, 4, v12
        """)
    XL = [f'buffer_load_dwordx2 {d2(XR+2*g)}, v13, s[24:27], s76 offen offset:{16*g}' for g in range(2)]
    def mf(A, B, first):
        for aa in range(2):
            for b in range(2):
                d = ACC2 + 16 * (2*b + aa)
                c = '0' if first else f'v[{d}:{d+15}]'
                a.e(f'v_mfma_f32_32x32x16_bf16 v[{d}:{d+15}], {q(A+4*b)}, {q(B+4*aa)}, {c}')
    common()
    a.e(f"""
    v_bfe_u32 v1, v0, 2, 2               ; r
    v_lshl_add_u32 v2, v5, 2, v1         ; 4h + r
    v_lshlrev_b32 v2, 7, v2
    v_lshrrev_b32 v1, 1, v1
    v_lshl_add_u32 v2, v1, 6, v2
    v_bfe_u32 v1, v0, 4, 1
    v_lshl_add_u32 v2, v1, 5, v2
    v_and_b32 v1, 3, v0
    v_lshl_add_u32 v2, v1, 3, v2
    v_add_u32 v2, s87, v2
    """)
    def tr(k):
        sl = k % 8; L = []
        if k % 2 == 0: L += [f'v_add_u32 v1, {LOCS[k>>1]*16384}, v2', 'v_xor_b32 v5, 64, v1']
        for b in range(2):
            for rho in range(2):
                L.append(f'ds_read_b64_tr_b16 {d2(AF + 8*sl + 4*b + 2*rho)}, v{5 if b else 1} offset:{(k&1)*2048 + rho*1024}')
        return L
    for k in range(8):
        for l in tr(k): a.e(l)
    a.e(f"""
    s_mul_i32 s65, s3, 14
    s_mul_i32 s73, s60, 224
    s_add_u32 s73, s73, s65
    s_lshl_b32 s73, s73, 10
    s_add_u32 s65, s73, 114688
    """)
    assert OFF_HF == 0
    srd(a, 28, 22, 's73', 57344 + 14336)
    srd(a, 32, 22, 's65', 57344 + 14336)
    srd(a, 52, 22, OFF_ST, SZ_ST)
    fl_srd(a, 40)
    a.e(f"""
    s_mul_i32 s74, s3, {224*896}
    s_lshl_b32 s75, s61, 7
    s_add_u32 s74, s74, s75
    v_lshlrev_b32 v10, 2, v4
    s_lshl_b32 s85, s60, 8
    s_add_u32 s85, s85, 8192
    v_mov_b32 v8, v29
    v_add_u32 v9, 57344, v3
    v_mov_b32 v30, 1
    """)
    for qq in range(7):
        if ROT2: a.e(f's_add_u32 s{66+qq}, s61, {qq}\ns_cmp_ge_u32 s{66+qq}, 7\ns_cselect_b32 s75, 7, 0\ns_sub_u32 s{66+qq}, s{66+qq}, s75\ns_lshl_b32 s{66+qq}, s{66+qq}, 11')
        else: a.e(f's_mov_b32 s{66+qq}, {qq*2048}')
    def dma(P):
        a.e(f's_mul_i32 s73, s{66+P%7}, 14\ns_add_u32 s73, s73, s74')
        for i in range(4):
            a.e(f's_add_u32 s75, s73, {i*7168 + (P//7)*4*224*896}\ns_add_u32 m0, s87, {LOCS[P]*16384 + i*1024}')
            vm.issue(f'buffer_load_dwordx4 v8, s[36:39], s75 offen lds', ('wd', P))
    own = [4, 5, 6] + [7 + i for i in range(4) if WHEN[('b', i)] > LB + HK] + [11, 12]
    NPRE = opt('NPRE', 2); NMID = opt('NMID', 5)
    a.e('s_waitcnt lgkmcnt(0)')
    assert NPRE <= 3
    for P in own[:NPRE]: dma(P)
    a.e(f's_waitcnt vmcnt({4*NPRE})')
    vm.issue(f'buffer_store_dword v30, v28, s[40:43], 0 offen{HSS}', 'fl')
    m2(a, 3, 2)
    lds_spin(a, 'g2_rc', RCNT, 4*14, 4)
    RL = [f'buffer_load_dword v{6+aa}, v10, s[52:55], s85 offen offset:{aa*128} sc1' for aa in range(2)]
    for l in RL: vm.issue(l, 'r2')
    a.e(f"""
    s_lshr_b32 s65, s60, 1
    s_lshl_b32 s65, s65, 3
    s_add_u32 s65, s65, s3
    s_lshl_b32 s65, s65, 7
    s_add_u32 s65, s65, {FH}
    v_and_b32 v1, 7, v0
    v_min_u32 v1, 6, v1
    v_lshlrev_b32 v1, 2, v1
    v_bfe_u32 v11, v0, 3, 1
    v_lshl_add_u32 v1, v11, 9, v1
    v_add_u32 v1, s65, v1
    v_mov_b32 v11, 1
    """)
    NE = opt('NE', 0)
    mid = own[NPRE:NPRE+NMID]
    for n, P in enumerate(mid):
        e = n - (len(mid) - NE)
        if e >= 0: vm.issue(f'buffer_load_dword v{193+e}, v1, s[40:43], 0 offen sc1', ('fh', e))
        dma(P)
    late = own[NPRE+NMID:] + [13]
    vm.issue(f'buffer_load_dword v192, v1, s[40:43], 0 offen sc1', 'fhl')
    m2(a, 4, 2)
    vm2 = vm.copy()
    for e in range(NE):
        vm2.wait(('fh', e))
        a.e(f'v_cmp_ne_u32 vcc, 1, v{193+e}\ns_nop 1\ns_cbranch_vccz fh_ok')
    a.e('s_waitcnt vmcnt(0)')
    poll1(a, 'fh', 192, 1, opt('HSLP', 2))
    if NE: vm.cnt(('fh', 0))
    else: vm.all_done()
    m2(a, 1, 6)
    m2(a, 2, 7)
    def issue(k):
        r = HR + 8 * (k % NH); o = (k & 1) * 1024
        for j in range(2):
            vm.issue(f'buffer_load_dwordx4 {q(r+4*j)}, v{3 if k < 14 else 9}, s[{28+4*j}:{31+4*j}], s{66+(k>>1)%7} offen offset:{o}{HS}', ('h', k))
    HB = opt('HB', 1)
    for k in range(NH):
        if HB and k == HB - 1: lds_spin(a, 'g2_b', 's86', FLG3, slp=1)
        issue(k)
    m2(a, 1, 7)
    outaddr()
    LK = {}
    for n, P in enumerate(late): LK[max(2*n + 1, 9 if P == 13 else 0)] = P
    for k in range(28):
        vm.wait(('h', k))
        if k >= 8: a.e(f's_waitcnt lgkmcnt({4*min(3, 27-k)})')
        mf(AF + 8*(k % 8), HR + 8 * (k % NH), k == 0)
        if k + NH < 28: issue(k + NH)
        if k in LK: dma(LK[k])
        if k == 15:
            for l in XL: vm.issue(l, 'xr')
        if k == 0: m2(a, 3, 3)
        if k == 0: m2(a, 3, 7)
        if k == 1: m2(a, 4, 7)
        if k == 13: m2(a, 4, 3)
        if k in (3, 7, 20): m2(a, {3: 2, 7: 3, 20: 4}[k], 6)
        if k == 10 and HB == 0: lds_spin(a, 'g2_b', 's86', FLG3)
        if k == 22: a.e(f'v_mov_b32 v14, s86\nds_write_b32 v14, v11 offset:{FLG2}\ns_waitcnt lgkmcnt(0)')
        if 4 <= k < 24:
            if k % 2 == 0: vm.wait(('wd', (k + 4) >> 1))
            for l in tr(k + 4): a.e(l)
    check(a, 'g2_r2', [6, 7], 14, 15, RL, 0)
    a.e('s_nop 7')
    for tl in range(4):
        for i in range(16):
            a.e(f'v_mul_f32 v{ACC2+16*tl+i}, v{ACC2+16*tl+i}, v{6+(tl&1)}')
    for i in range(4): a.e(f's_add_u32 s{82+i}, s87, {SLOT[("a", i)]*16384}')
    a.e('s_branch g2_red')
    a.label('gemm2h'); a.fence()
    probe(a, 'pr2', 31)
    vm = VM(a)
    common()
    def zflag():
        a.e('v_mov_b32 v30, 1\ns_waitcnt vmcnt(0)')
        a.e(f'buffer_store_dword v30, v28, s[40:43], 0 offen{SS}')
        a.e(f'v_mov_b32 v14, s86\nds_write_b32 v14, v30 offset:{FLG3}')
        m2(a, 3, 2)
    g_gen(a, zflag, opt('GH', 0))
    outaddr()
    a.e(f"""
    v_and_b32 v10, 15, v0
    v_lshlrev_b32 v10, 4, v10            ; l15*16
    v_bfe_u32 v11, v0, 4, 1
    v_lshl_add_u32 v11, v5, 2, v11       ; 4h + b16
    v_mul_u32_u24 v8, {ZS3}, v11
    v_add_u32 v8, v8, v10
    v_add_u32 v9, {2*ZS3}, v8
    s_mul_i32 s74, s64, {56*ZS3}
    s_lshl_b32 s75, s60, 8
    s_add_u32 s74, s74, s75              ; z3 base
    s_add_u32 s75, s75, {224*ZS3}
    s_cmp_eq_u32 s64, 0
    s_cselect_b32 s75, s75, 0x40000000
    s_cselect_b32 s65, 16, 0
    v_cmp_gt_u32 vcc, s65, v0
    v_mov_b32 v11, 0x40000000
    v_cndmask_b32 v10, v11, v10, vcc
    v_mov_b32 v11, -1
    v_mov_b32 v14, 0xffff
    v_cndmask_b32 v11, v11, v14, vcc
    s_mul_i32 s65, s64, 224
    s_cmp_eq_u32 s64, 0
    s_cselect_b32 s73, 896, s65
    v_lshlrev_b32 v15, 2, v0
    v_add_u32 v15, s65, v15
    v_mov_b32 v14, s73
    v_cmp_gt_u32 vcc, 56, v0
    v_cndmask_b32 v15, v14, v15, vcc
    s_lshl_b32 s65, s60, 10
    s_add_u32 s65, s65, {FZ}
    v_add_u32 v15, s65, v15
    """)
    for i in range(4): a.e(f's_add_u32 s{82+i}, s87, {SLOT[("b", i)]*16384}')
    for l in XL: vm.issue(l, 'xr')
    m2(a, 4, 2)
    poll1(a, 'fz', 14, 15, opt('ZSLP', 4), first=True)
    vm.all_done()
    m2(a, 1, 6)
    for z in range(7):
        r = ZR + 8*z
        a.e(f's_add_u32 s65, s74, {z*8*ZS3}')
        vm.issue(f'buffer_load_dwordx4 {q(r)}, v8, s[44:47], s65 offen{HS}', ('z', z))
        vm.issue(f'buffer_load_dwordx4 {q(r+4)}, v9, s[44:47], s65 offen{HS}', ('z', z))
        if z == 0: vm.issue(f'buffer_load_dwordx4 {q(T224)}, v10, s[44:47], s75 offen{HS}', ('z', z))
    for z in range(7):
        r = ZR + 8*z
        vm.wait(('z', z))
        if z == 0:
            for t in range(4):
                a.e(f'v_and_b32 v{r+t}, v{r+t}, v11\nv_lshl_or_b32 v{r+t}, v{T224+t}, 16, v{r+t}')
        for t in (0, 2, 4, 6):
            a.e(f'v_permlane16_swap_b32 v{r+t}, v{r+t+1}')
        a.e(f'v_swap_b32 v{r+2}, v{r+4}\nv_swap_b32 v{r+3}, v{r+5}')
        mf(GF_ + 8*z, r, z == 0)
        if z == 0: m2(a, 3, 3)
    m2(a, 4, 3)
    lds_spin(a, 'g2_bf', 's86', FLG2, slp=1)
    a.e('s_nop 7')
    a.label('g2_red'); a.fence()
    m2(a, 1, 3)
    for tl in range(4):
        a.e(f'v_add_u32 v{8+tl}, s{82+tl}, v3')
    for tl in range(4):
        for c in range(4):
            a.e(f'ds_write_b128 v{8+tl}, {q(ACC2+16*tl+4*c)} offset:{c*1024}')
    a.e(f'''
    s_lshr_b32 s65, s3, 1
    s_lshl_b32 s65, s65, 2
    s_lshr_b32 s66, {PA}, s65
    s_and_b32 s66, s66, 15
    s_lshl_b32 s66, s66, 14
    s_lshr_b32 s67, {PB}, s65
    s_and_b32 s67, s67, 15
    s_lshl_b32 s67, s67, 14
    s_and_b32 s65, s3, 1
    s_lshl_b32 s65, s65, 11
    s_add_u32 s66, s66, s65
    s_add_u32 s67, s67, s65
    v_add_u32 v2, s66, v3
    v_add_u32 v7, s67, v3
    s_waitcnt vmcnt(0)
    ''')
    for g in range(2):
        for c in range(2):
            a.e(f'v_lshlrev_b32 v{96+4*g+2*c}, 16, v{XR+2*g+c}\nv_and_b32 v{96+4*g+2*c+1}, 0xffff0000, v{XR+2*g+c}')
    a.e('s_waitcnt lgkmcnt(0)\ns_barrier')
    m2(a, 2, 3)
    for sw in range(8):
        for c in range(2):
            a.e(f'ds_read_b128 {q(16+8*sw+4*c)}, v{2 if sw < 4 else 7} offset:{(sw&3)*4096 + c*1024}')
    for sw in range(8):
        a.e(f's_waitcnt lgkmcnt({14-2*sw})')
        for r in range(0, 8, 2):
            a.e(f'v_pk_add_f32 {d2(96+r)}, {d2(96+r)}, {d2(16+8*sw+r)}')
    for g in range(2):
        for c in range(2):
            a.e(f'v_cvt_pk_bf16_f32 v{112+2*g+c}, v{96+4*g+2*c}, v{96+4*g+2*c+1}')
    for c in range(2):
        a.e(f'v_permlane32_swap_b32 v{112+c}, v{114+c}')
    a.e(f'buffer_store_dwordx4 {q(112)}, v12, s[48:51], s76 offen' + ['', ' sc0 sc1', ' nt', ' sc1'][opt('OSM', 0)])
    endpgm(a, 0, 22)
    emit_stubs(a)

def emit(a, x):
    if callable(x): x()
    else: a.e(x)

def gu(a):
    vm = VM(a)
    a.e(f'''
    v_lshrrev_b32 v5, 4, v0
    v_lshlrev_b32 v6, 2, v5
    v_and_b32 v7, 15, v0
    v_xor_b32 v6, v6, v7
    v_mul_u32_u24 v11, 3584, v5
    v_lshl_add_u32 v11, v6, 4, v11
    s_lshl_b32 s69, s58, 8               ; ct*256
    s_sub_u32 s70, {SZ_WG}, s69
    s_lshl_b32 s65, s59, 3
    s_bfe_u32 s66, s3, {(1<<16)|1}
    s_lshl_b32 s66, s66, 2
    s_add_u32 s66, s66, s65
    s_lshr_b32 s67, s3, 2
    s_add_u32 s66, s66, s67
    s_and_b32 s67, s3, 1
    s_lshl_b32 s67, s67, 1
    s_add_u32 s66, s66, s67
    s_mul_i32 s66, s66, {16*896}
    s_mul_i32 s68, s3, 14336
    s_lshl_b32 s71, s3, 10
    s_lshl_b32 s72, s3, 11
    s_add_u32 s78, s59, s58
    s_mul_i32 s67, s78, 37
    s_lshr_b32 s67, s67, 8
    s_mul_i32 s67, s67, 7
    s_sub_u32 s78, s78, s67
    s_mul_i32 s78, s78, {128*opt('ROT1', 0)}
    s_add_u32 s66, s66, s78
    s_mul_i32 s67, s78, 1792
    s_add_u32 s68, s68, s67
    s_waitcnt lgkmcnt(0)
    ''')
    srd(a, 24, 4, 0, SZ_X)
    for jj in range(2):
        a.e(f's_add_u32 m0, s72, {SLOT[("x",0)]*16384 + jj*1024}')
        vm.issue(f'buffer_load_dwordx4 v{12+jj}, s[24:27], s66 offen lds', ('x', 0))
    srd(a, 28, 12, 's69', 's70')
    srd(a, 32, 14, 's69', 's70')
    for c in range(2):
        if c: a.e(f's_add_u32 s68, s68, 114688')
        for mat in range(2):
            a.e(f's_add_u32 m0, s71, {SLOT[("w",c)]*16384 + mat*8192}')
            vm.issue(f'buffer_load_dwordx4 v11, s[{28+4*mat}:{31+4*mat}], s68 offen lds', ('w', c))
    a.e(f's_mov_b32 s79, {TMO}')
    a.e('s_cmp_ge_u32 s3, 4\ns_cbranch_scc1 gu_helper')
    vmh = vm.copy()
    dbg_srd(a)
    a.e('''
    v_mov_b32 v30, 1
    v_lshlrev_b32 v31, 20, v0
    ''')
    srd(a, 28, 22, OFF_HF, SZ_HF)
    a.e(f'''
    s_mul_i32 s65, s59, {4*112}
    s_lshl_b32 s66, s58, 3
    s_add_u32 s65, s65, s66
    s_lshl_b32 s66, s64, 1
    s_add_u32 s65, s65, s66
    s_lshl_b32 s65, s65, 10
    s_add_u32 s66, s65, {112*1024}
    s_add_u32 s67, s65, {2*112*1024}
    s_add_u32 s68, s65, {3*112*1024}
    s_lshl_b32 s71, s58, 2
    s_add_u32 s71, s71, s64              ; pair P
    s_mul_i32 s72, s71, 37
    s_lshr_b32 s72, s72, 8               ; P / 7
    s_mul_i32 s73, s72, 7
    s_sub_u32 s71, s71, s73
    s_lshl_b32 s71, s71, 2
    s_lshl_b32 s73, s59, 3
    s_add_u32 s72, s72, s73
    s_lshl_b32 s72, s72, 7
    s_add_u32 s71, s71, s72
    s_add_u32 s71, s71, {FH}
    v_lshlrev_b32 v1, 4, v0
    ''')
    srd(a, 36, 16, 0, SZ_WG)
    srd(a, 52, 22, OFF_ST, SZ_ST)
    wd_addr(a, 29, 5, 6)
    a.e(f'''
    v_and_b32 v14, 31, v0                ; l31
    v_lshrrev_b32 v3, 5, v0              ; h
    v_bfe_u32 v9, v0, 1, 3
    v_xor_b32 v9, v9, v3
    v_lshlrev_b32 v9, 4, v9
    v_lshl_add_u32 v8, v14, 7, v9        ; X base0
    v_lshlrev_b32 v14, 2, v14
    v_bfe_u32 v9, v0, 2, 2               ; r
    v_lshl_add_u32 v10, v3, 3, v9        ; 8h + r
    v_lshlrev_b32 v2, 8, v10
    v_xor_b32 v9, s64, v9
    v_lshl_add_u32 v2, v9, 6, v2
    v_bfe_u32 v9, v0, 4, 1
    v_lshl_add_u32 v2, v9, 5, v2
    v_and_b32 v9, 3, v0
    v_lshl_add_u32 v2, v9, 3, v2
    v_add_u32 v3, 0x10000, v2
    v_add_u32 v4, 0x20000, v2
    v_mov_b32 v7, {RCNT}
    v_mov_b32 v16, 0
    v_mov_b32 v17, 0
    v_mov_b32 v18, 0
    v_mov_b32 v19, 0
    s_mov_b32 s85, 0xffff0000
    s_lshl_b32 s70, s59, 9
    ''')
    for r in range(84, 108): a.e(f'v_mov_b32 v{r}, 0')
    ML = [f'buffer_load_dword v{84+4*t}, v14, s[52:55], s70 offen offset:{t*128} sc1' for t in range(4)]
    extras = {}
    CLRA = opt('CLRA', 5)
    extras.setdefault(opt('L1K', 5), []).insert(0, lambda: l1_issue(vm, 28, 31))
    L1N = []
    srd(a, 32, 6, 0, SZ_WR)
    srd(a, 44, 8, 0, SZ_WR)
    srd(a, 48, 22, OFF_WT, SZ_WT)
    a.e(f'''
    s_mul_i32 s74, s64, 224
    s_add_u32 s74, s74, s62              ; task G
    s_lshr_b32 s75, s74, 6               ; (tm,q)
    s_lshl_b32 s75, s75, 8
    s_bfe_u32 s76, s74, {(2<<16)|4}      ; w
    s_lshl_b32 s76, s76, 4
    s_add_u32 s75, s75, s76
    s_bfe_u32 s76, s74, {(1<<16)|3}      ; par
    s_add_u32 s75, s75, s76              ; s0 (g = 0)
    s_mul_i32 s75, s75, 450
    s_and_b32 s75, s75, -4
    s_and_b32 s77, s74, 7                ; cb
    s_lshl_b32 s78, s77, 6
    s_add_u32 s75, s75, s78
    v_and_b32 v9, 7, v0
    v_lshrrev_b32 v10, 3, v0
    v_lshl_add_u32 v12, v9, 3, v10
    v_lshlrev_b32 v12, 2, v12
    v_mul_u32_u24 v11, 900, v10
    v_lshl_add_u32 v11, v9, 3, v11
    v_mul_u32_u24 v15, {4*WS}, v10
    v_lshl_add_u32 v15, v9, 4, v15
    s_lshl_b32 s77, s77, 5
    s_add_u32 s77, s77, 1
    s_sub_u32 s77, s77, s76
    s_mul_i32 s77, s77, {WS}
    s_and_b32 s76, s74, 15
    s_lshl_b32 s76, s76, 9
    s_add_u32 s76, s76, {FW}
    s_lshr_b32 s78, s74, 3
    s_lshl_b32 s78, s78, 7
    s_cmp_lt_u32 s74, 512
    s_cselect_b32 s74, s78, 0x40000000
    s_cselect_b32 s76, s76, 0x40000000
    s_add_u32 s74, s74, s77
    s_mov_b32 s82, 0x05040100
    s_mov_b32 s83, 0x07060302
    v_lshlrev_b32 v13, 7, v0
    v_cmp_gt_u32 vcc, 4, v0
    v_cndmask_b32 v13, v31, v13, vcc
    ''')
    def jl(i):
        for mat in range(2):
            vm.issue(f'buffer_load_dwordx2 {d2(108+8*mat+2*i)}, v11, s[{32+12*mat}:{35+12*mat}], s75 offen', 'ja')
        if i < 3: a.e(f's_add_u32 s75, s75, {64*450}')
        else: fl_srd(a, 44)
    JLK = opt('JLK', 0); JLS = opt('JLS', 1)
    for i in range(4):
        if JLK < 0: jl(i)
        else: extras.setdefault(JLK + (i * JLS) // 2, []).append(lambda i=i: jl(i))
    def jb(h):
        vm.wait('ja')
        for r in range(8*h, 8*h + 8): a.e(f'ds_bpermute_b32 v{108+r}, v12, v{108+r}')
    def js(c):
        for mat in range(2):
            for ip in range(2):
                r = 108 + 8*mat + 4*ip + (c >> 1)
                a.e(f'v_perm_b32 v{124+2*mat+ip}, v{r+2}, v{r}, s{82+(c&1)}')
        vm.issue(f'buffer_store_dwordx4 {q(124)}, v15, s[48:51], s74 offen{SS}', 'wt')
        if c < 3: a.e(f's_add_u32 s74, s74, {WS}')
    def jsig():
        vm.wait('wt')
        vm.issue('buffer_atomic_add v30, v13, s[44:47], s76 offen sc1', 'fw')
    fd_addr(a, 9, 77, 78)
    a.e('s_lshl_b32 s78, s64, 28')
    def fdchk():
        vm.wait('fd')
        a.e('''
        v_cmp_ne_u32 vcc, 32, v10
        s_nop 1
        s_cmp_eq_u64 vcc, 0
        s_cselect_b64 exec, 1, 0
        ds_write_b32 v7, v30 offset:4
        s_mov_b64 exec, -1
        ''')
    if opt('FDK', 18):
        extras.setdefault(opt('FDK', 18), []).append(lambda: vm.issue('buffer_load_dword v10, v9, s[44:47], s78 offen sc1', 'fd'))
        extras.setdefault(2*LB - 2, []).append(fdchk)
    JB = opt('JB', 5)
    for h in range(2): extras.setdefault(JB + h, []).append(lambda h=h: jb(h))
    for c in range(4): extras.setdefault(JB + 2 + c, []).append(lambda c=c: js(c))
    assert opt('JSK', 14) >= 2*CLRA + 2
    extras.setdefault(opt('JSK', 14), []).append(jsig)
    def flag(n):
        if n == 'a': L1N.append(len(vm.ops) - 1 - vm.ops.index('l1'))
        a.e(f's_cmp_eq_u32 s3, 0\ns_cbranch_scc1 gu_fl{n}')
        a.label(f'gu_fl{n}_ret')
    extras.setdefault(2*CLRA - 1, []).insert(0, lambda: flag('a'))
    for l in ML: extras.setdefault(opt('MLK', 20), []).append(lambda l=l: vm.issue(l, 'ml'))
    def preb(c):
        tag = {0: ('w', 0), 1: ('w', 1), }.get(c)
        if tag:
            n = vm.cnt(tag)
            if n is not None: return f' vmcnt({n})'
        return ''
    def reads(k):
        buf = k & 1; ksl = k & 3; u = k >> 2
        xb = 5 + (k & 1)
        XB = [f'ds_read_b128 {q(48+16*buf+4*t)}, v{xb} offset:{t*4096}' for t in range(4)]
        c = k >> 1; slot = SLOT[('w', c)]; kk = k & 1
        WA = []
        for i in range(2):
            for rho in range(2):
                d = 32 + 8*buf + 4*i + 2*rho
                off = (slot & 3)*16384 + i*8192 + kk*4096 + rho*1024
                WA.append(f'ds_read_b64_tr_b16 {d2(d)}, v{2 + (slot >> 2)} offset:{off}')
        return [WA[0], WA[1], XB[0], WA[2], WA[3], XB[1], XB[2], XB[3]]
    def xbase(k):
        return f'v_xor_b32 v{5 + (k & 1)}, {SLOT[("x", k >> 2)]*16384 + (k & 3)*32}, v8'
    def cs(k):
        buf = k & 1; L = []
        n = 0
        for i in range(2):
            for dd in range(4):
                r = 32 + 8*buf + 4*i + dd; t = 20 + 2*(n & 3); n += 1
                L += [f'v_lshlrev_b32 v{t}, 16, v{r}', f'v_and_b32 v{t+1}, s85, v{r}',
                      f'v_add_f32 v{16+2*i}, v{16+2*i}, v{t}', f'v_add_f32 v{17+2*i}, v{17+2*i}, v{t+1}']
        return L
    def mfmas(k):
        buf = k & 1
        return [f'v_mfma_f32_32x32x16_bf16 v[{acc(i,t)}:{acc(i,t)+15}], {q(32+8*buf+4*i)}, {q(48+16*buf+4*t)}, ' + ('0' if k == 0 else f'v[{acc(i,t)}:{acc(i,t)+15}]')
                for t in range(4) for i in range(2)]
    a.e(xbase(0)); a.e(xbase(1))
    a.e(f's_waitcnt lgkmcnt(0){preb(0)}')
    m2(a, 1, 1)
    a.e('s_barrier')
    m2(a, 2, 1)
    for l in reads(0): a.e(l)
    for k in range(28):
        M = mfmas(k)
        if k & 1:
            if k == 2*CLRA - 1: m2(a, 4, 5)
            a.e(f's_waitcnt lgkmcnt(0){preb((k+1)//2)}')
        else:
            a.e('s_waitcnt lgkmcnt(0)')
        R = reads(k+1) if k < 27 else []
        V = cs(k) if opt('CS', 1) else []
        if k + 2 < 28: V = V[:16] + [xbase(k+2)] + V[16:]
        X = extras.get(k, [])
        for g in range(8):
            a.e(M[g])
            if g == 0 and (k & 1):
                if (k+1)//2 <= LB: a.e('s_barrier')
                else: a.e(f's_mov_b64 exec, 1\nds_add_u32 v7, v30 offset:{4*((k+1)//2)}\ns_mov_b64 exec, -1')
                if (k+1)//2 in (3, 6, 9, 12): m2(a, (k+1)//6, 4)
            nr = 2 if g < 4 else 0
            nv = (3 if g < 4 else 6) if R else 5
            for l in R[2*g:2*g+nr]: a.e(l)
            for l in V[:nv]: a.e(l)
            V = V[nv:]
            if g >= 2 and X: emit(a, X.pop(0))
        for l in V: a.e(l)
        for l in X: emit(a, l)
    m2(a, 3, 1)
    for i in range(2):
        a.e(f'''
        v_add_f32 v{16+2*i}, v{16+2*i}, v{17+2*i}
        v_cvt_pk_bf16_f32 v{20+i}, v{16+2*i}, v{16+2*i}
        v_and_b32 v{20+i}, s85, v{20+i}
        v_sub_f32 v{20+i}, v{16+2*i}, v{20+i}
        v_cvt_pk_bf16_f32 v{100+4*i}, v{16+2*i}, v{20+i}
        ''')
    vm.wait('ml')
    check(a, 'gu_m', [84, 88, 92, 96], 20, 21, ML, 0)
    for t in range(4):
        for i in range(2):
            a.e(f'v_mfma_f32_32x32x16_bf16 v[{acc(i,t)}:{acc(i,t)+15}], {q(100+4*i)}, {q(84+4*t)}, v[{acc(i,t)}:{acc(i,t)+15}]')
    n = 0
    for t in range(4):
        for jp in range(2):
            o = 32 + 4 * n; n += 1
            for dd in range(4):
                g0 = acc(0, t) + 8*jp + 2*dd; u0 = acc(1, t) + 8*jp + 2*dd
                a.e(f'''
                v_max_f32 v{g0}, 0, v{g0}
                v_max_f32 v{g0+1}, 0, v{g0+1}
                v_mul_f32 v{g0}, v{g0}, v{u0}
                v_mul_f32 v{g0+1}, v{g0+1}, v{u0+1}
                v_cvt_pk_bf16_f32 v{o+dd}, v{g0}, v{g0+1}
                ''')
            vm.issue(f'buffer_store_dwordx4 {q(o)}, v1, s[28:31], s{65+t} offen offset:{jp*1024}{HSS}', 'hst')
    m2(a, 4, 1)
    a.e('v_add_u32 v28, s71, v31')
    m2(a, 1, 2)
    a.e(f'''
    s_lshl_b32 s65, s64, 2
    s_add_u32 s65, s65, {FLG}
    v_mov_b32 v4, s65
    s_mov_b32 s77, 400000
    ''')
    a.label('gu_sp'); a.fence()
    a.e(f'''
    ds_read_b32 v5, v4
    s_waitcnt lgkmcnt(0)
    v_readfirstlane_b32 s65, v5
    s_sub_u32 s77, s77, 1
    s_cbranch_scc1 gu_spok
    s_cmp_eq_u32 s65, 0
    s_cbranch_scc1 gu_sp
    ''')
    a.label('gu_spok'); a.fence()
    probe(a, 'pr3', 5)
    m2(a, 2, 2)
    a.e('s_branch gemm2')
    emit_stubs(a)
    a.label('gu_fla'); a.fence()
    m2(a, 1, 5)
    a.e(f's_waitcnt vmcnt({L1N[0]})')
    m2(a, 2, 5)
    l1_check(a, 'gua', 28, 31)
    m2(a, 3, 5)
    a.e('s_branch gu_fla_ret')
    a.label('gu_helper'); a.fence()
    vm = vmh
    a.e(f'''
    s_and_b32 s66, s64, 1
    s_lshl_b32 s66, s66, 2
    s_add_u32 s66, s66, s65
    s_lshr_b32 s67, s64, 1
    s_add_u32 s66, s66, s67
    s_mul_i32 s82, s66, {16*896}
    s_add_u32 s83, s82, {32*896}
    s_mul_i32 s84, s64, 28672
    s_lshl_b32 s86, s64, 11
    s_lshl_b32 s87, s64, 12
    ''')
    def item(it):
        L = []
        kind, n = it; sb = SLOT[it] * 16384
        if kind == 'x':
            for jj in range(4):
                def f(jj=jj):
                    if jj == 0:
                        a.e(f's_add_u32 s78, s78, 128\ns_cmp_eq_u32 s78, 896\ns_cselect_b32 s78, 0, s78\ns_mul_i32 s85, s78, 1792\ns_add_u32 s85, s85, s84')
                    if jj % 2 == 0: a.e(f's_add_u32 s73, s{82+(jj>>1)}, s78')
                    a.e(f's_add_u32 m0, s87, {sb + jj*1024}')
                    vm.issue(f'buffer_load_dwordx4 v{12+(jj&1)}, s[24:27], s73 offen lds', it)
                L.append(f)
        elif kind == 'w':
            for e in range(2):
                for mat in range(2):
                    def f(e=e, mat=mat):
                        if mat == 0: a.e(f's_add_u32 s73, s85, {(n&1)*114688 + e*14336}')
                        a.e(f's_add_u32 m0, s86, {sb + mat*8192 + e*1024}')
                        vm.issue(f'buffer_load_dwordx4 v11, s[{28+4*mat}:{31+4*mat}], s73 offen lds', it)
                    L.append(f)
        else:
            for i in range(4):
                def f(i=i):
                    if i == 0:
                        a.e(f's_add_u32 s85, s61, {n}\ns_cmp_ge_u32 s85, 7\ns_cselect_b32 s73, 7, 0\ns_sub_u32 s85, s85, s73' if ROT2 else f's_mov_b32 s85, {n}')
                        a.e(f's_mul_i32 s85, s85, 28672\ns_add_u32 s85, s85, s{74 if kind == "a" else 75}')
                    a.e(f's_add_u32 s73, s85, {i*7168}\ns_add_u32 m0, s87, {sb + i*1024}')
                    vm.issue(f'buffer_load_dwordx4 v29, s[36:39], s73 offen lds', it)
                L.append(f)
        return L
    for it in ITEMS[3:]:
        if WHEN[it] == -1:
            for f in item(it): f()
    srd(a, 36, 16, 0, SZ_WG)
    wd_addr(a, 29, 5, 6)
    a.e(f'''
    s_mul_i32 s74, s64, {224*896}
    s_lshl_b32 s75, s61, 7
    s_add_u32 s74, s74, s75
    s_add_u32 s75, s74, {4*224*896}
    v_lshlrev_b32 v30, 2, v0
    v_add_u32 v30, {XCNT}, v30
    v_mov_b32 v31, 0
    ds_write_b32 v30, v31
    ''')
    import re
    K = [re.sub(r'\bv28\b', 'v53', l) for l in fft_consts()]
    KPRE = opt('KPRE', 40)
    for l in K[:KPRE]: a.e(l)
    K = K[KPRE:]
    KS = [int(x) for x in os.environ.get('KS', '0,1,2,3,4,5,6,7').split(',')]
    kper = -(-len(K) // len(KS))
    for c in range(LB + 1):
        ns = [vm.cnt(t) for t in ([('w', c)] if c < LB else [('w', 13)]) + ([('x', c // 2)] if c % 2 == 0 and c <= 12 else [])]
        ns = [n for n in ns if n is not None]
        a.e('s_waitcnt lgkmcnt(0)' + (f' vmcnt({min(ns)})' if ns else ''))
        if c == 0: m2(a, 1, 1)
        a.e('s_barrier')
        if c == 0: m2(a, 2, 1)
        if c == 8: fft_setup(a)
        work = []
        for it in ITEMS:
            if WHEN[it] == c: work += item(it)
        if c == LB: work = [f's_mov_b32 s76, 0\nv_mov_b32 v30, {RCNT}\nds_read_b32 v17, v30 offset:4'] + work
        if c in KS: work += K[KS.index(c)*kper:(KS.index(c)+1)*kper]
        for w in work: emit(a, w)
        if c == 5: m2(a, 1, 4)
    m2(a, 2, 4)
    m2(a, 3, 1)
    for c in range(LB + 1, LB + 1 + HK): HOOK.setdefault(0 if c == LB + 1 else opt('HP2', 4), []).append(c)
    fft_body(a, vm)
    a.e('s_cmp_lg_u32 s76, 0\ns_cbranch_scc1 fft_end')
    a.e('s_branch gemm2h')
    vm = VM(a)
    for c in range(LB + 1, LB + 1 + HK):
        a.label(f'hk{c}'); a.fence()
        a.e('s_mov_b32 s77, 400000')
        a.label(f'hk{c}_sp'); a.fence()
        a.e(f'''
        ds_read_b32 v31, v30 offset:{4*c}
        s_waitcnt lgkmcnt(0)
        v_readfirstlane_b32 s73, v31
        s_sub_u32 s77, s77, 1
        s_cbranch_scc1 hk{c}_go
        s_cmp_lt_u32 s73, 4
        s_cbranch_scc1 hk{c}_sp
        ''')
        a.label(f'hk{c}_go'); a.fence()
        for it in ITEMS:
            if WHEN[it] == c:
                for f in item(it): f()
        a.e(f's_branch hk{c}_ret')
    a.label('fd_slow'); a.fence()
    a.e('s_waitcnt vmcnt(0)\nds_write_b32 v8, v9\ns_cmp_lg_u32 s64, 0\ns_cbranch_scc1 fd_w')
    poll1(a, 'fd', 17, 18, opt('WSLP', 4), val=32, first=True)
    a.e(f'v_mov_b32 v18, {RCNT}\nds_write_b32 v18, v9 offset:4\ns_branch fd_go')
    a.label('fd_w'); a.fence()
    lds_spin(a, 'fd_sp', RCNT + 4, va=18, vd=17, slp=1)
    a.e('s_branch fd_go')
    a.label('fft_end'); a.fence()
    a.e(f'v_mov_b32 v30, 1\ns_waitcnt vmcnt(0)\nbuffer_store_dword v30, v28, s[40:43], 0 offen{SS}')
    endpgm(a, 0, 22)
    emit_stubs(a)

WIMG = 57344
SSCR = WIMG + 65536
def dft(a):
    a.label('dft_wg'); a.fence()
    vm = VM(a)
    RAW, PM = 32, 16
    FPRE = opt('FPRE', 5); assert FPRE <= 5
    def FR(par, qq): return 176 + 8*(qq % (FPRE + 1)) + 4*par
    AC = 64
    WS_ = 64
    a.e(f'''
    s_sub_u32 s57, s57, 28
    s_lshr_b32 s59, s56, 1
    s_lshl_b32 s59, s59, 1
    s_and_b32 s65, s56, 1
    s_lshl_b32 s65, s65, 3
    s_add_u32 s59, s59, s65
    s_lshr_b32 s65, s57, 1
    s_add_u32 s59, s59, s65              ; g
    s_and_b32 s58, s57, 1                ; hf
    s_lshl_b32 s60, s56, 2
    s_add_u32 s60, s60, s57              ; di
    s_lshl_b32 s65, s59, 3
    s_and_b32 s66, s3, 6
    s_add_u32 s65, s65, s66
    s_add_u32 s65, s65, s58
    s_mul_i32 s65, s65, {16*896}
    s_and_b32 s66, s3, 1
    s_cmp_eq_u32 s66, 1
    s_cselect_b64 vcc, -1, 0
    v_cndmask_b32 v12, v12, v13, vcc
    s_lshl_b32 s71, s3, 10
    v_lshrrev_b32 v3, 5, v0              ; h
    v_and_b32 v1, 31, v0                 ; l31
    s_cmp_eq_u32 s3, 7
    s_waitcnt lgkmcnt(0)
    s_cbranch_scc1 l1_clr
    ''')
    a.label('l1_ret')
    srd(a, 24, 4, 0, SZ_X)
    a.e('s_mov_b32 s73, s65')
    def xdma(vm, u):
        a.e(f's_add_u32 s67, s73, {u*128}\ns_add_u32 m0, s71, {u*8192}')
        vm.issue(f'buffer_load_dwordx4 v12, s[24:27], s67 offen lds', ('x', u))
    for u in range(7): xdma(vm, u)
    srd(a, 44, 22, OFF_Z1, SZ_Z1)
    a.e(f's_mov_b32 s79, {TMO}')
    a.e(f'''
    s_lshl_b32 s83, s59, 9
    s_lshl_b32 s69, s58, 8
    s_add_u32 s83, s83, s69              ; g*512 + hf*256
    ''')
    a.e(f'''
    v_lshlrev_b32 v2, 5, v1
    v_lshl_add_u32 v2, v3, 13, v2
    v_bfe_u32 v6, v0, 3, 1
    v_lshl_add_u32 v2, v6, 4, v2
    v_add_u32 v2, s71, v2
    v_xor_b32 v6, 16, v2
    s_mov_b32 s70, 0x05040100
    s_mov_b32 s71, 0x07060302
    s_cmp_eq_u32 s3, 7
    s_cbranch_scc1 dft_stat
    ''')
    def prep(prs, regs):
        for pr, R in zip(prs, regs):
            if pr == 3: a.e('s_mov_b32 exec_hi, 0')
            a.e(f'ds_read_b128 {q(R)}, v2 offset:{pr*16384}\nds_read_b128 {q(R+4)}, v6 offset:{pr*16384}')
        if 3 in prs: a.e('s_mov_b64 exec, -1')
        for n, (pr, R) in enumerate(zip(prs, regs)):
            a.e(f's_waitcnt lgkmcnt({2*(len(prs) - 1)})')
            for par in range(2):
                for jj in range(4):
                    a.e(f'v_perm_b32 v{R+8+4*par+jj}, v{R+2*jj+1}, v{R+2*jj}, s{70+par}')
            if pr == 3: a.e('s_mov_b32 exec_hi, 0')
            a.e(f'ds_write_b128 v2, {q(R+8)} offset:{pr*16384}\nds_write_b128 v6, {q(R+12)} offset:{pr*16384}')
        if 3 in prs: a.e('s_mov_b64 exec, -1')
        a.e('s_waitcnt lgkmcnt(0)')
    vms = vm.copy()
    a.e(f'''
    v_and_b32 v8, 15, v0
    v_lshlrev_b32 v8, 4, v8              ; l15*16
    v_lshrrev_b32 v9, 4, v0              ; 2h + b16
    v_mul_u32_u24 v10, {ZS1}, v9
    v_add_u32 v10, v10, v8
    v_sub_u32 v11, 3, v9
    v_mul_u32_u24 v11, {ZS1}, v11
    v_add_u32 v11, v11, v8
    s_lshl_b32 s65, s3, 4                ; 16 i
    s_mul_i32 s84, s65, {ZS1}
    s_add_u32 s84, s84, s83
    s_sub_u32 s66, 221, s65
    s_mul_i32 s66, s66, {ZS1}
    s_add_u32 s86, s66, s83
    v_add_u32 v13, s66, v11
    v_add_u32 v8, {112*ZS1}, v8
    s_cmp_eq_u32 s3, 0
    s_cselect_b32 s80, -1, 0
    s_mov_b32 s81, 0                     ; s[80:81]: wave 0, h = 0
    s_cselect_b32 s66, 16, 0
    v_cmp_gt_u32 vcc, s66, v0
    v_cndmask_b32 v13, v13, v8, vcc
    ''')
    def z1st(kind, n, r, tag):
        if kind == 0:
            a.e(f's_add_u32 s67, s84, {4*n*ZS1}')
            vm.issue(f'buffer_store_dwordx4 {q(r)}, v10, s[44:47], s67 offen{SS}', tag)
        elif n == 0:
            vm.issue(f'buffer_store_dwordx4 {q(r)}, v13, s[44:47], s83 offen{SS}', tag)
        else:
            a.e(f's_sub_u32 s67, s86, {4*n*ZS1}')
            vm.issue(f'buffer_store_dwordx4 {q(r)}, v11, s[44:47], s67 offen{SS}', tag)
    a.e(f'''
    v_lshrrev_b32 v8, 1, v1
    v_add_u32 v8, s65, v8                ; p
    v_and_b32 v9, 1, v1
    v_cvt_f32_u32 v14, v9
    v_mul_f32 v14, 0x3e800000, v14       ; phase O
    v_cmp_eq_u32 vcc, 1, v1
    s_cmp_eq_u32 s3, 0
    s_cselect_b64 vcc, vcc, 0
    v_mov_b32 v9, 112
    v_cndmask_b32 v8, v8, v9, vcc
    v_cndmask_b32 v15, v14, 0, vcc       ; phase E
    v_cvt_f32_u32 v8, v8
    v_mul_f32 v8, {fh(1/448)}, v8        ; p/448
    v_mul_f32 v9, {fh(32.0)}, v8
    v_cos_f32 v4, v9
    v_add_f32 v4, v4, v4
    v_lshlrev_b32 v16, 4, v3
    v_cvt_f32_u32 v16, v16             ; 16 h
    v_fma_f32 v15, v16, v8, v15         ; arg E (j=0,q=0)
    v_fma_f32 v14, v16, v8, v14
    v_add_f32 v14, v14, v8               ; arg O
    v_add_f32 v16, v8, v8               ; 2 step
    s_mov_b32 s87, 0x05040100
    s_mov_b32 s78, 0x07060302
    ''')
    P0, P1 = 144, 160
    for par in range(2):
        ar = 15 - par
        for j in range(8):
            a.e(f'''
            v_sub_f32 v17, v{ar}, v9
            v_cos_f32 v{P0+8*par+j}, v{ar}
            v_cos_f32 v{P1+8*par+j}, v17
            v_add_f32 v{ar}, v{ar}, v16
            ''')
    a.e('v_mov_b32 v5, v4')
    def fgen(qq):
        cur, prv = (P0, P1) if qq % 2 == 0 else (P1, P0)
        L = []
        for par in range(2):
            for jj in range(4):
                L.append(f'v_cvt_pk_bf16_f32 v{FR(par, qq)+jj}, v{cur+8*par+2*jj}, v{cur+8*par+2*jj+1}')
        if qq < 13:
            if opt('PKF', 0):
                for r in range(0, 16, 2):
                    L.append(f'v_pk_fma_f32 {d2(prv+r)}, v[4:5], {d2(cur+r)}, {d2(prv+r)} neg_lo:[0,0,1] neg_hi:[0,0,1]')
            else:
                for r in range(16):
                    L.append(f'v_fma_f32 v{prv+r}, v4, v{cur+r}, -v{prv+r}')
        return L
    for qq in range(FPRE):
        for l in fgen(qq): a.e(l)
    a.e(f'''
    v_bfe_u32 v9, v0, 1, 3
    v_lshlrev_b32 v8, 1, v3
    v_xor_b32 v9, v9, v8
    v_lshlrev_b32 v9, 4, v9
    v_lshl_add_u32 v8, v1, 7, v9
    v_xor_b32 v9, 16, v8
    v_xor_b32 v14, 64, v8
    v_xor_b32 v15, 80, v8
    ''')
    m2(a, 1, 3)
    vm.wait(('x', 1))
    prep([0], [16])
    m2(a, 1, 1)
    a.e('s_barrier')
    m2(a, 2, 1)
    def rd(qq):
        b = RAW + 16 * (qq & 1)
        base = (8, 9) if qq % 2 == 0 else (14, 15)
        return [f'ds_read_b128 {q(b+8*tau+4*e)}, v{base[e]} offset:{(qq>>1)*8192 + tau*4096}' for tau in range(2) for e in range(2)]
    for l in rd(0): a.e(l)
    JR = 128
    for qq in range(14):
        b = RAW + 16 * (qq & 1)
        nxt = rd(qq+1) if qq < 13 else []
        a.e('s_waitcnt lgkmcnt(0)')
        if qq == 3:
            m2(a, 2, 3)
            vm.wait(('x', 6))
            prep([1, 2, 3], [16, 128, 240])
            a.e('s_barrier')
            m2(a, 3, 3)
        if qq == 5: m2(a, 1, 2)
        if qq == 10: m2(a, 4, 2)
        if qq == 12: m2(a, 1, 4)
        if qq == 7: m2(a, 2, 2)
        for l in nxt: a.e(l)
        G = fgen(qq + FPRE) if qq + FPRE < 14 else []
        def ge(l): vm.issue(l, 'wt') if l.startswith('buffer') else a.e(l)
        ng = (len(G) + 3) // 4
        for tau in range(2):
            for par in range(2):
                d = AC + 16*(2*par + tau)
                a.e(f'v_mfma_f32_32x32x16_bf16 v[{d}:{d+15}], {q(FR(par, qq))}, {q(b+8*tau+4*par)}, ' + ('0' if qq == 0 else f'v[{d}:{d+15}]'))
                for l in G[:ng]: ge(l)
                G = G[ng:]
        assert not G
    m2(a, 3, 1)
    a.e(f'''
    v_lshlrev_b32 v8, 3, v1
    v_add_u32 v8, {SSCR + 512}, v8
    ''')
    m2(a, 2, 4)
    a.e(f'v_mov_b32 v9, {RCNT}\ns_mov_b32 s77, 400000')
    a.label('df_sp'); a.fence()
    a.e(f'''
    ds_read_b32 v20, v9
    ds_read_b64 v[16:17], v8
    ds_read_b64 v[18:19], v8 offset:256
    s_waitcnt lgkmcnt(0)
    v_readfirstlane_b32 s67, v20
    s_sub_u32 s77, s77, 1
    s_cbranch_scc1 df_spok
    s_cmp_eq_u32 s67, 0
    s_cbranch_scc1 df_sp
    ''')
    a.label('df_spok'); a.fence()
    m2(a, 3, 4)
    m2(a, 4, 3)
    for n in range(4):
        LO = 144 + 8*n; HI = LO + 4
        for e in range(2):
            aa = 2*n + e
            for tau in range(2):
                E = AC + 16*tau + 2*aa; O = AC + 32 + 16*tau + 2*aa; r = 16 + 2*tau
                t = 20 + 6*tau
                a.e(f'''
                v_mul_f32 v{O}, v{O}, v{r}
                v_mul_f32 v{O+1}, v{O+1}, v{r}
                v_fma_f32 v{t}, v{E}, v{r}, v{O}
                v_fma_f32 v{t+1}, v{E+1}, v{r}, v{O+1}
                v_fma_f32 v{t+2}, v{E}, v{r}, -v{O}
                v_fma_f32 v{t+3}, -v{E+1}, v{r}, v{O+1}
                ''')
                if aa == 0:
                    a.e(f'''
                    v_mul_f32 v{t+4}, v{E+1}, v{r}
                    v_sub_f32 v{t+5}, v{t}, v{r+1}
                    v_cndmask_b32 v{t}, v{t}, v{t+5}, s[80:81]
                    v_cndmask_b32 v{t+1}, v{t+1}, v{t+2}, s[80:81]
                    v_cndmask_b32 v{t+2}, v{t+2}, v{t+4}, s[80:81]
                    v_cndmask_b32 v{t+3}, v{t+3}, v{O+1}, s[80:81]
                    ''')
                a.e(f'''
                v_cvt_pk_bf16_f32 v{LO+2*tau+e}, v{t}, v{t+1}
                v_cvt_pk_bf16_f32 v{HI+2*tau+e}, v{t+2}, v{t+3}
                ''')
        for r in (LO, LO+2, HI, HI+2):
            a.e(f'v_permlane16_swap_b32 v{r}, v{r+1}')
        z1st(0, n, LO, 'z1'); z1st(1, n, HI, 'z1')
    m2(a, 4, 1)
    a.e('s_waitcnt vmcnt(0)\ns_barrier')
    m2(a, 4, 4)
    a.label('dft_tail'); a.fence()
    a.e('s_cmp_lg_u32 s2, 0\ns_cbranch_scc1 dft_end\ns_cmp_lt_u32 s3, 4\ns_cbranch_scc1 dft_end')
    vm = VM(a)
    for l in fft_consts(): a.e(l)
    a.e(f's_mov_b32 s62, 0\ns_mov_b32 s63, 224\ns_mov_b32 s76, 1\nv_mov_b32 v29, 0\nv_mov_b32 v17, 0')
    fft_setup(a)
    a.e('s_branch fft_body')
    a.label('dft_end'); a.fence()
    if opt('WPF', 1):
        srd(a, 28, 16, 0, SZ_WG)
        a.e(f'''
        v_mul_u32_u24 v8, 896, v1
        s_and_b32 s65, s60, 3
        s_mul_i32 s65, s65, {224*896}
        s_lshl_b32 s66, s3, 7
        s_add_u32 s65, s65, s66
        s_cmp_eq_u32 s3, 7
        s_cselect_b32 s65, 0x40000000, s65
        ''')
        for n, P in enumerate([4, 5, 6, 9, 10, 11, 12, 13]):
            a.e(f'''
            s_add_u32 s66, s3, {P % 7}
            s_cmp_ge_u32 s66, 7
            s_cselect_b32 s67, 7, 0
            s_sub_u32 s66, s66, s67
            s_mul_i32 s66, s66, 28672
            s_add_u32 s66, s66, s65
            s_add_u32 s66, s66, {(P // 7) * 4 * 224 * 896}
            buffer_load_dword v{16+n}, v8, s[28:31], s66 offen
            ''')
        a.e('s_waitcnt vmcnt(0)')
    endpgm(a, 0, 22)
    a.label('l1_clr'); a.fence()
    assert OFF_FL == OFF_ST + SZ_ST and SZ_FL <= 24*3072
    srd(a, 48, 22, OFF_ST, SZ_ST + SZ_FL)
    a.e(f'''
    v_lshlrev_b32 v24, 4, v0
    s_lshl_b32 s80, s60, 11
    s_add_u32 s67, s80, 2048
    s_mul_i32 s81, s60, 3072
    s_sub_u32 s81, s81, {8*3072 - SZ_ST}
    s_cmp_lt_u32 s60, 8
    s_cselect_b32 s80, s80, s81
    s_cselect_b32 s50, s67, s50
    s_cselect_b32 s67, -1, 0
    ''')
    for i in range(4): a.e(f'v_mov_b32 v{16+i}, s67')
    for i in range(3): a.e(f'buffer_store_dwordx4 {q(16)}, v24, s[48:51], s80 offen offset:{i*1024}{SS}')
    a.e('s_branch l1_ret')
    a.label('dft_stat'); a.fence()
    vm = vms
    srd(a, 52, 22, OFF_ST, SZ_ST)
    dbg_srd(a)
    fl_srd(a, 36)
    a.e(f'''
    v_lshlrev_b32 v4, 2, v0
    v_lshlrev_b32 v23, 20, v0
    v_mov_b32 v22, 1
    ''')
    a.e(f'''
    v_add_u32 v30, {XCNT}, v4
    v_mov_b32 v31, 0
    ds_write_b32 v30, v31
    v_and_b32 v8, 15, v0                 ; n
    v_lshrrev_b32 v9, 4, v0              ; q4
    v_bfe_u32 v10, v0, 1, 3              ; f
    v_xor_b32 v10, v10, v9
    v_lshlrev_b32 v10, 4, v10
    v_lshl_add_u32 v10, v8, 7, v10       ; kk = 0
    v_xor_b32 v11, 64, v10               ; kk = 1
    v_mov_b32 v144, 0x3f803f80
    v_mov_b32 v145, 0x3f803f80
    v_mov_b32 v146, 0x3f803f80
    v_mov_b32 v147, 0x3f803f80
    v_lshlrev_b32 v8, 3, v8
    v_add_u32 v8, {SSCR}, v8
    v_lshlrev_b32 v9, 3, v0
    v_add_u32 v9, {SSCR}, v9
    v_and_b32 v13, 3, v0
    v_cmp_eq_u32 s[68:69], 1, v13
    v_cmp_eq_u32 s[86:87], 2, v13
    v_cmp_eq_u32 s[74:75], 3, v13
    s_mov_b32 s85, 0xffff0000
    s_waitcnt vmcnt(7)
    ''')
    vm.issue('buffer_atomic_add v22, v23, s[40:43], 0 offen sc1', 'l1s')
    m2(a, 1, 5)
    m2(a, 2, 5)
    vm.wait(('x', 1))
    a.e('s_waitcnt lgkmcnt(0)')
    prep([0], [96])
    m2(a, 1, 1)
    a.e('s_barrier')
    m2(a, 2, 1)
    a.e('s_setprio 2')
    QA, SA, RB = 160, 176, 32
    def srd_(u):
        b = RB + 32 * (u & 1)
        return [f'ds_read_b128 {q(b+16*kk+4*tt)}, v{10+kk} offset:{u*8192 + tt*2048}' for kk in range(2) for tt in range(4)]
    for l in srd_(0): a.e(l)
    for u in range(7):
        b = RB + 32 * (u & 1)
        a.e('s_waitcnt lgkmcnt(0)')
        if u == 1:
            vm.wait(('x', 6))
            prep([1, 2, 3], [96, 112, 128])
            a.e('s_barrier')
            l1_issue(vm, 24, 23)
        if u < 6:
            for l in srd_(u+1): a.e(l)
        for kk in range(2):
            for tt in range(4):
                r = b + 16*kk + 4*tt; first = (u == 0 and kk == 0)
                a.e(f'v_mfma_f32_16x16x32_bf16 {q(QA+4*tt)}, {q(r)}, {q(r)}, ' + ('0' if first else q(QA+4*tt)))
                a.e(f'v_mfma_f32_16x16x32_bf16 {q(SA+4*tt)}, {q(144)}, {q(r)}, ' + ('0' if first else q(SA+4*tt)))
    for tt in range(4):
        a.e(f'''
        v_cndmask_b32 v{SA+4*tt+1}, v{QA+4*tt}, v{QA+4*tt+1}, s[68:69]
        v_cndmask_b32 v{SA+4*tt+1}, v{SA+4*tt+1}, v{QA+4*tt+2}, s[86:87]
        v_cndmask_b32 v{SA+4*tt+1}, v{SA+4*tt+1}, v{QA+4*tt+3}, s[74:75]
        ''')
    a.e('s_mov_b32 exec_lo, 0x00f0000f\ns_mov_b32 exec_hi, 0xf0000f00')
    for tt in range(4):
        a.e(f'ds_write_b64 v8, {d2(SA+4*tt)} offset:{tt*128}')
    a.e(f'''
    s_mov_b64 exec, -1
    s_mov_b32 s84, {fh(1.0/448)}
    s_waitcnt lgkmcnt(0)
    ds_read_b64 v[16:17], v9
    s_waitcnt lgkmcnt(0)
    ''')
    for st in STAT_STEPS[:6]: a.e(st.format(m=16, v=17, t=18))
    a.e('v_cvt_pk_bf16_f32 v20, -v16, -v16')
    for st in STAT_STEPS[6:]: a.e(st.format(m=16, v=17, t=18))
    a.e(f'''
    v_mul_f32 v21, v17, v17
    v_mov_b32 v18, v17
    v_mul_f32 v19, {fh(448.0)}, v16
    s_add_u32 s84, s83, 8192
    ''')
    m2(a, 1, 2)
    a.e(f'''
    ds_write_b64 v9, v[18:19] offset:512
    v_mov_b32 v30, {RCNT}
    s_waitcnt lgkmcnt(0)
    ds_write_b32 v30, v22
    ''')
    vm.wait('l1')
    l1_check(a, 'dfs', 24, 23)
    vm.issue(f'buffer_store_dword v20, v4, s[52:55], s83 offen{SS}', 'st')
    vm.issue(f'buffer_store_dword v21, v4, s[52:55], s84 offen{SS}', 'st')
    a.e('s_setprio 0')
    m2(a, 3, 1)
    m2(a, 3, 2)
    a.e(f'''
    v_lshlrev_b32 v14, 7, v0
    s_lshl_b32 s67, s60, 2
    s_waitcnt vmcnt(0)
    ''')
    m2(a, 4, 1)
    a.e(f'''
    s_barrier
    buffer_atomic_add v22, v14, s[36:39], 0 offen sc1
    s_branch dft_tail
    ''')

def gen_v2(a, name):
    a.raw('.p2align 8')
    a.label(name)
    a.e(f'''
    s_cmp_ge_u32 s2, 256
    s_cbranch_scc1 f_end
    ''')
    diag_start(a)
    a.e(f'''
    s_load_dwordx16 s[4:19], s[0:1], 0
    s_load_dwordx4 s[20:23], s[0:1], 64
    ''')
    if opt('IPF', 1):
        a.raw('  s_getpc_b64 s[86:87]')
        a.raw('pc0:')
        a.raw('  v_lshlrev_b32 v252, 7, v0')
        a.raw('  v_min_u32 v252, f_end-pc0, v252')
        a.raw('  v_mov_b32 v253, s87')
        a.raw('  v_add_co_u32 v252, vcc, s86, v252')
        a.raw('  v_addc_co_u32 v253, vcc, 0, v253, vcc')
        a.raw('  global_load_dword v255, v[252:253], off')
    a.e(f'''
    v_lshrrev_b32 v1, 6, v0
    v_and_b32 v0, 63, v0
    v_readfirstlane_b32 s3, v1
    v_lshrrev_b32 v3, 3, v0              ; r
    v_and_b32 v4, 7, v0                  ; a
    v_lshrrev_b32 v5, 4, v0              ; r>>1
    v_xor_b32 v4, v4, v5
    v_mul_u32_u24 v12, 896, v3
    v_lshl_add_u32 v12, v4, 4, v12
    v_xor_b32 v13, 64, v12
    v_add_u32 v13, {8*896}, v13
    s_and_b32 s56, s2, 7
    s_lshr_b32 s57, s2, 3
    s_add_u32 s57, s57, 28
    s_and_b32 s57, s57, 31
    s_and_b32 s64, s3, 3
    s_cmp_ge_u32 s57, 28
    s_cbranch_scc1 dft_wg
    s_lshr_b32 s65, s56, 1
    s_mul_i32 s65, s65, 28
    s_add_u32 s65, s65, s57
    s_lshr_b32 s58, s65, 3               ; ct
    s_and_b32 s59, s65, 7
    s_and_b32 s65, s56, 1
    s_lshl_b32 s65, s65, 3
    s_add_u32 s59, s59, s65              ; rb
    ''')
    if opt('LOC', 0): a.e('''
    s_lshr_b32 s58, s57, 1
    s_and_b32 s59, s57, 1
    s_lshl_b32 s65, s56, 1
    s_add_u32 s59, s59, s65
    ''')
    a.e(f'''
    s_mul_i32 s60, s57, 37
    s_lshr_b32 s60, s60, 8               ; j/7
    s_mul_i32 s61, s60, 7
    s_sub_u32 s61, s57, s61              ; dt64
    s_lshl_b32 s65, s56, 2
    s_add_u32 s60, s60, s65              ; st64
    s_mul_i32 s62, s56, 28
    s_add_u32 s62, s62, s57              ; p
    s_mov_b32 s63, s62
    ''')
    gu(a)
    gemm2(a)
    dft(a)
    a.label('f_end')
    a.e('s_endpgm')
```

```python
from dsl import *
from c2 import *
import fused
from fused import VM, q, d2, m2, fft_consts, STAT_STEPS
from fused import C64R, C64I, C32R, C32I, TW1, TW2, XA, WV, DR, DI, ER, EI, PK, WU

SS = {0: ' sc0 sc1', 1: ' sc1', 2: ' sc0 sc1 nt', 3: ' sc1 nt'}[int(os.environ.get('SSM', '0'))]
MISC = 9 * 16384
XCH = MISC
XCNT = MISC + 8192
FLG = MISC + 8192 + 64
TMO = 20000
def acc(i, t): return 128 + 16 * (i * 4 + t)
def opt(name, dflt): return int(os.environ.get(name, str(dflt)))

ITEMS = []
for u in range(7): ITEMS += [('x', u), ('w', 2*u), ('w', 2*u+1)]
ITEMS += [('a', i) for i in range(4)] + [('b', i) for i in range(4)]
def schedule():
    la = opt('LA', 2)
    pre = opt('PRE', 5)
    free = list(range(9)); slot = {}; when = {}
    n = 0
    for _ in range(pre):
        slot[ITEMS[n]] = free.pop(0); when[ITEMS[n]] = -1; n += 1
    for c in range(15):
        if c >= 1: free.append(slot[('w', c-1)])
        if c >= 2 and c % 2 == 0: free.append(slot[('x', c//2 - 1)])
        k = 0
        while n < len(ITEMS) and free and (k < la or c == 14):
            slot[ITEMS[n]] = free.pop(0); when[ITEMS[n]] = c; n += 1; k += 1
    assert n == len(ITEMS)
    return slot, when
FFT_ISSUE = opt('FFT_ISSUE', 11)
LB = opt('LB', 11)
SLOT, WHEN = schedule()
assert all(WHEN[('a', i)] <= LB for i in range(4)), WHEN
RCNT = XCNT + 128
HOOK = {}

NOCLR = opt('NOCLR', 0)
HSS = '' if opt('FAST', 0) else SS
HPL = ' nt' if opt('FAST', 0) == 1 else ' sc1'
HS = ['', ' sc1', ' nt'][opt('HSM', 0)]
_iss = VM.issue
def _issue(self, text, tag):
    if tag in ('clr', 'cla') and NOCLR: return
    _iss(self, text, tag)
VM.issue = _issue
_cnt = VM.cnt
def _cnt2(self, tag):
    if tag not in self.ops: return None
    return _cnt(self, tag)
VM.cnt = _cnt2
def dbg_srd(a, d=40): srd(a, d, 20, 0, 256)
def fl_srd(a, d): srd(a, d, 22, OFF_FL, SZ_FL)
def poll1(a, tag, vd, va, slp, R=40, first=False, sc=' sc1', val=1):
    a.e(f's_mov_b32 s77, {TMO}')
    if first: a.e(f's_branch {tag}_ld')
    a.label(f'{tag}_pl'); a.fence()
    a.e(f'''
    v_cmp_ne_u32 vcc, {val}, v{vd}
    s_nop 1
    s_cbranch_vccz {tag}_ok
    s_sub_u32 s77, s77, 1
    s_cbranch_scc1 {tag}_ok
    s_sub_u32 s79, s79, {1 if DIAG else 0}
    s_sleep {slp}
    ''')
    a.label(f'{tag}_ld'); a.fence()
    a.e(f'''
    buffer_load_dword v{vd}, v{va}, s[{R}:{R+3}], 0 offen{sc}
    s_waitcnt vmcnt(0)
    s_branch {tag}_pl
    ''')
    a.label(f'{tag}_ok'); a.fence()
FPL = '' if opt('CPLAIN', 1) else ' sc1'
def l1_issue(vm, vd, vz, sc=FPL):
    vm.issue(f'buffer_load_dword v{vd}, v{vz}, s[40:43], 0 offen{sc}', 'l1')
def l1_check(a, tag, vd, vz, slp=8, sr=80):
    a.e(f's_mov_b32 s77, {TMO}')
    a.label(f'{tag}_l1'); a.fence()
    a.e(f'''
    v_readfirstlane_b32 s{sr}, v{vd}
    s_cmp_eq_u32 s{sr}, 32
    s_cbranch_scc1 {tag}_l1ok
    s_sub_u32 s77, s77, 1
    s_cbranch_scc1 {tag}_l1ok
    s_sleep {slp}
    buffer_load_dword v{vd}, v{vz}, s[40:43], 0 offen sc1
    s_waitcnt vmcnt(0)
    s_branch {tag}_l1
    ''')
    a.label(f'{tag}_l1ok'); a.fence()
def fl_loads(vd, va, R, offs, sc):
    return [f'buffer_load_dwordx4 {q(vd+4*i)}, v{va}, s[{R}:{R+3}], 0 offen offset:{o}{sc}' for i, o in enumerate(offs)]
def fl_check(a, tag, vd, va, R, offs, ves, slp=8, alt=None, sr=80):
    a.e(f's_mov_b32 s77, {TMO}')
    a.label(f'{tag}_fl'); a.fence()
    for i in range(len(offs)):
        a.e(f'v_and_b32 v{vd+4*i}, v{vd+4*i}, v{vd+4*i+2}')
        a.e(f'v_cmp_ne_u32 ' + ('vcc' if i == 0 else f's[{sr}:{sr+1}]') + f', {ves[i]}, v{vd+4*i}')
        if i: a.e(f's_or_b64 vcc, vcc, s[{sr}:{sr+1}]')
    a.e(f'''
    s_nop 1
    s_cbranch_vccz {tag}_flok
    s_sub_u32 s77, s77, 1
    s_cbranch_scc1 {tag}_flok
    s_sleep {slp}
    ''')
    if alt:
        a.e(f's_add_u32 s{sr}, s77, {alt}\ns_and_b32 s{sr}, s{sr}, 7\ns_cmp_eq_u32 s{sr}, 0\ns_cbranch_scc1 {tag}_fs')
        for l in fl_loads(vd, va, R, offs, ''): a.e(l)
        a.e(f's_waitcnt vmcnt(0)\ns_branch {tag}_fl')
        a.label(f'{tag}_fs'); a.fence()
    for l in fl_loads(vd, va, R, offs, ' sc1'): a.e(l)
    a.e(f's_waitcnt vmcnt(0)\ns_branch {tag}_fl')
    a.label(f'{tag}_flok'); a.fence()

def maxchain(regs, t0, t1):
    L = []; regs = list(regs)
    h = (len(regs) + 1) // 2
    for t, rs in ((t0, regs[:h]), (t1, regs[h:])):
        rs = list(rs)
        if len(rs) == 1: L.append(f'v_mov_b32 v{t}, v{rs[0]}'); continue
        if len(rs) == 2: L.append(f'v_max_u32 v{t}, v{rs[0]}, v{rs[1]}'); continue
        L.append(f'v_max3_u32 v{t}, v{rs[0]}, v{rs[1]}, v{rs[2]}'); rs = rs[3:]
        while len(rs) >= 2:
            L.append(f'v_max3_u32 v{t}, v{t}, v{rs[0]}, v{rs[1]}'); rs = rs[2:]
        if rs: L.append(f'v_max_u32 v{t}, v{t}, v{rs[0]}')
    L.append(f'v_max_u32 v{t0}, v{t0}, v{t1}')
    return L

STUBS = []
def check(a, tag, regs, t0, t1, reissue, nwait=0):
    a.label(f'{tag}_chk')
    for l in maxchain(regs, t0, t1): a.e(l)
    a.e(f'''
    v_cmp_eq_u32 vcc, -1, v{t0}
    s_nop 1
    s_cbranch_vccnz {tag}_stub
    ''')
    a.label(f'{tag}_ok')
    STUBS.append((tag, reissue, nwait))
def emit_stubs(a):
    for tag, reissue, nwait in STUBS:
        a.label(f'{tag}_stub'); a.fence()
        a.e(f'''
        s_cmp_eq_u32 s79, 0
        s_cbranch_scc1 {tag}_ok
        s_sub_u32 s79, s79, 1
        s_sleep {opt('RSLEEP', 6)}
        ''')
        for l in reissue: a.e(l)
        a.e(f's_waitcnt vmcnt({nwait})\ns_branch {tag}_chk')
    STUBS.clear()

def fft_loads():
    return [f'buffer_load_dwordx4 {q(XA+16*t+4*u)}, v6, s[44:47], s{69+(u>>1)} offen offset:{(u&1)*2048 + t*256}' for u in range(4) for t in range(2)]
def fd_addr(a, v, t0, t1):
    a.e(f'''
    s_and_b32 s{t0}, s63, 63
    s_lshl_b32 s{t0}, s{t0}, 7
    v_mov_b32 v{v}, s{t0}
    s_and_b32 s{t0}, s63, 3
    s_lshl_b32 s{t0}, s{t0}, 7
    s_add_u32 s{t0}, s{t0}, {FW}
    s_lshr_b32 s{t1}, s63, 5
    s_lshl_b32 s{t1}, s{t1}, 9
    s_add_u32 s{t1}, s{t1}, s{t0}
    v_writelane_b32 v{v}, s{t1}, 1
    s_add_u32 s{t1}, s63, 1
    s_lshr_b32 s{t1}, s{t1}, 5
    s_lshl_b32 s{t1}, s{t1}, 9
    s_add_u32 s{t1}, s{t1}, s{t0}
    s_add_u32 s{t1}, s{t1}, 4096
    v_writelane_b32 v{v}, s{t1}, 2
    ''')
def fft_setup(a):
    srd(a, 44, 22, OFF_Z1, SZ_Z1)
    srd(a, 48, 22, OFF_WT, SZ_WT)
    fl_srd(a, 40)
    a.e(f'''
    v_and_b32 v1, 15, v0                 ; l15
    v_lshrrev_b32 v2, 4, v0              ; q
    v_lshlrev_b32 v3, 4, v0              ; lane*16
    s_mul_i32 s69, s62, {ZS1}
    s_add_u32 s70, s69, 4096
    v_and_b32 v5, 1, v0
    v_lshlrev_b32 v5, 7, v5
    v_lshrrev_b32 v6, 1, v1
    v_lshl_add_u32 v5, v6, 4, v5
    v_lshl_add_u32 v5, v2, 10, v5        ; q*1024 + par*128 + (l15>>1)*16
    v_lshlrev_b32 v6, 4, v1
    v_lshl_add_u32 v6, v2, 9, v6         ; q*512 + l15*16
    s_mul_i32 s71, s63, {WS}
    s_lshl_b32 s72, s64, 8
    s_add_u32 s71, s71, s72
    s_add_u32 s71, s71, {WS}
    s_add_u32 s72, s71, 4096
    ''')
    fd_addr(a, 18, 65, 68)
    a.e(f'''
    s_lshl_b32 s65, s64, 13
    s_lshl_b32 s68, s63, 2
    s_add_u32 s65, s65, s68
    s_add_u32 s65, s65, {FZ}
    v_lshlrev_b32 v28, 10, v0
    v_add_u32 v28, s65, v28
    v_mov_b32 v19, 0x40000000
    v_cmp_gt_u32 vcc, 8, v0
    v_cndmask_b32 v28, v19, v28, vcc
    ''')
def fft_issue(a, vm):
    for l in fft_loads(): vm.issue(l, 'xa')
def wt_issue(a, vm):
    for tm in range(2):
        vm.issue(f'buffer_load_dwordx4 {q(WV+4*tm)}, v5, s[48:51], s{71+tm} offen', 'wv')

def fft_body(a, vm):
    a.label('fft_body'); a.fence()
    a.e(f'''
    s_lshl_b32 s65, s64, 2
    s_add_u32 s65, s65, {FLG}
    v_mov_b32 v8, s65
    v_mov_b32 v9, 1
    ''')
    def hook(pos):
        for c in HOOK.get(pos, []):
            a.e(f's_cmp_eq_u32 s76, 0\ns_cbranch_scc1 hk{c}')
            a.label(f'hk{c}_ret')
            for it in ITEMS:
                if WHEN[it] == c:
                    for _ in range(4): vm.note(it)
    m2(a, 3, 4)
    a.e('''
    s_waitcnt lgkmcnt(0)
    v_readfirstlane_b32 s73, v17
    s_cmp_eq_u32 s73, 0
    s_cbranch_scc1 fd_slow
    ''')
    a.label('fd_go'); a.fence()
    m2(a, 4, 4)
    fft_issue(a, vm)
    wt_issue(a, vm)
    a.e('s_waitcnt vmcnt(10)\nds_write_b32 v8, v9')
    hook(0)
    a.e(f's_cmp_eq_u32 s76, 0\ns_cbranch_scc1 w2_x\ns_waitcnt vmcnt(0)')
    a.label('w2_x')
    vm.wait('wv')
    if opt('FPRIO', 0): a.e('s_setprio 3')
    m2(a, 1, 2)
    srd(a, 44, 22, OFF_Z3, SZ_Z3)
    a.e(f's_cmp_lg_u32 s62, 0\ns_cbranch_scc1 fft_nofix')
    a.e(f's_cmp_eq_u32 s63, 224\ns_cselect_b32 s68, 16, 0')
    for r in range(XA, XA+32):
        a.e(f'v_lshrrev_b32 v{r}, s68, v{r}\nv_and_b32 v{r}, 0xffff, v{r}')
    a.e('s_nop 1')
    a.label('fft_nofix'); a.fence()
    def mm(d, A, B, first):
        c = '0' if first else q(d)
        a.e(f'v_mfma_f32_16x16x32_bf16 {q(d)}, {q(A)}, {q(B)}, {c}')
    for u in range(4):
        for t in range(2):
            mm(DR+4*t, XA+16*t+4*u, C64R+4*u, u == 0)
            mm(DI+4*t, XA+16*t+4*u, C64I+4*u, u == 0)
    def twiddle(R, I, TW, out):
        for t in range(2):
            for i in range(4):
                c = TW + 2*(4*t+i); s = c + 1
                r = R + 4*t + i; im = I + 4*t + i
                t0 = 8 + 2*i
                a.e(f'''
                v_mul_f32 v{t0}, v{r}, v{c}
                v_mul_f32 v{t0+1}, v{im}, v{c}
                v_fmac_f32 v{t0}, v{im}, v{s}
                v_fma_f32 v{t0+1}, -v{r}, v{s}, v{t0+1}
                v_cvt_pk_bf16_f32 v{out+4*t+i}, v{t0}, v{t0+1}
                ''')
    hook(1)
    twiddle(DR, DI, TW1, PK)
    hook(2)
    for t in range(2):
        for tm in range(2):
            mm(ER+4*tm, C32R+8*tm+4*t, PK+4*t, t == 0)
            mm(EI+4*tm, C32I+8*tm+4*t, PK+4*t, t == 0)
    hook(3)
    for tm in range(2):
        for i in range(4):
            n = 4*tm + i
            for c in range(2):
                src = WV + 4*tm + 2*c + (i >> 1)
                if i & 1: a.e(f'v_and_b32 v{WU+8*c+n}, 0xffff0000, v{src}')
                else: a.e(f'v_lshlrev_b32 v{WU+8*c+n}, 16, v{src}')
    for tm in range(2):
        for i in range(4):
            n = 4*tm + i
            xr_ = ER + n; xi = EI + n; wr = WU + n; wi = WU + 8 + n
            t0 = 8 + 2*i
            a.e(f'''
            v_mul_f32 v{t0}, v{xr_}, v{wr}
            v_mul_f32 v{t0+1}, v{xr_}, v{wi}
            v_fma_f32 v{t0}, -v{xi}, v{wi}, v{t0}
            v_fmac_f32 v{t0+1}, v{xi}, v{wr}
            v_cvt_pk_bf16_f32 v{PK+n}, v{t0}, -v{t0+1}
            ''')
    hook(4)
    for tm in range(2):
        for tn in range(2):
            mm(DR+4*tn, PK+4*tm, C32R+8*tn+4*tm, tm == 0)
            mm(DI+4*tn, PK+4*tm, C32I+8*tn+4*tm, tm == 0)
    a.e(f'''
    s_lshl_b32 s68, s64, 11
    s_add_u32 s65, s68, {XCH}
    v_add_u32 v16, s65, v3
    v_add_u32 v7, {XCH}, v3
    v_mov_b32 v4, {XCNT}
    v_mov_b32 v5, 1
    ''')
    hook(5)
    twiddle(DR, DI, TW2, PK)
    a.e(f'''
    ds_write_b128 v16, {q(PK)}
    ds_write_b128 v16, {q(PK+4)} offset:1024
    s_waitcnt lgkmcnt(0)
    s_mov_b64 exec, 1
    ds_add_u32 v4, v5
    s_mov_b64 exec, -1
    s_mul_i32 s69, s63, {ZS3}
    s_add_u32 s68, s68, s69
    ''')
    hook(6)
    a.e('s_mov_b32 s77, 400000')
    if opt('FPRIO', 0): a.e('s_setprio 0')
    a.label('fft_sp'); a.fence()
    a.e(f'''
    ds_read_b32 v5, v4
    s_waitcnt lgkmcnt(0)
    v_readfirstlane_b32 s65, v5
    s_sub_u32 s77, s77, 1
    s_cbranch_scc1 fft_spok
    s_cmp_lt_u32 s65, 4
    s_cbranch_scc1 fft_sp
    ''')
    a.label('fft_spok'); a.fence()
    if opt('FPRIO', 0): a.e('s_setprio 3')
    for u in range(4):
        for tn in range(2):
            a.e(f'ds_read_b128 {q(XA+16*tn+4*u)}, v7 offset:{(2*u+tn)*1024}')
    for u in range(4):
        a.e(f's_waitcnt lgkmcnt({6-2*u})')
        for tn in range(2):
            mm(ER+4*tn, C64R+4*u, XA+16*tn+4*u, u == 0)
            mm(EI+4*tn, C64I+4*u, XA+16*tn+4*u, u == 0)
    for n in range(8):
        a.e(f'v_cvt_pk_bf16_f32 v{PK+n}, v{ER+n}, v{EI+n}')
    for tn in range(2):
        vm.issue(f'buffer_store_dwordx4 {q(PK+4*tn)}, v6, s[44:47], s68 offen offset:{tn*256}{SS}', 'z3')
    hook(7)
    if opt('FPRIO', 0): a.e('s_setprio 0')
    m2(a, 2, 2)

ACC2, AF, HR, GF_ = 192, 128, 16, 72
NH = 7
ROT2 = opt('ROT2', 1)
def wd_addr(a, vr, t0, t1):
    a.e(f'''
    v_lshrrev_b32 v{t0}, 3, v0
    v_bfe_u32 v{t1}, v0, 4, 1
    v_lshlrev_b32 v{t1}, 2, v{t1}
    v_and_b32 v{vr}, 7, v0
    v_xor_b32 v{t1}, v{t1}, v{vr}
    v_mul_u32_u24 v{vr}, 896, v{t0}
    v_lshl_add_u32 v{vr}, v{t1}, 4, v{vr}
    ''')

def g_gen(a, mid=None, at=2):
    a.e(f'''
    s_mul_i32 s65, s64, 56
    v_lshlrev_b32 v8, 2, v5
    v_add_u32 v8, s65, v8                ; p0
    v_cmp_eq_u32 s[80:81], 0, v8
    v_cvt_f32_u32 v8, v8
    s_lshl_b32 s75, s61, 6
    v_add_u32 v9, s75, v4                ; d (b=0)
    v_lshlrev_b32 v12, 31, v9
    v_xor_b32 v12, 0.5, v12              ; +-0.5
    v_cvt_f32_u32 v9, v9
    ''')
    for b in range(2):
        if b == at: mid()
        if b: a.e(f'v_add_f32 v9, {fh(32.0)}, v9')
        a.e(f'v_mul_f32 v10, {fh(1/448)}, v9')
        for z in range(7):
            a.e(f'v_add_f32 v11, {fh(8.0*z)}, v8\nv_mul_f32 v11, v11, v10')
            for j in range(4):
                a.e(f'''
                v_cos_f32 v14, v11
                v_sin_f32 v15, v11
                v_add_f32 v11, v11, v10
                ''')
                if z == 0 and j == 0:
                    a.e(f'''
                    v_cndmask_b32 v14, v14, 0.5, s[80:81]
                    v_cndmask_b32 v15, v15, v12, s[80:81]
                    ''')
                a.e(f'v_cvt_pk_bf16_f32 v{GF_+8*z+4*b+j}, v14, v15')
    if at == 2: mid()

HK = opt('HK', 1)
FLG2, FLG3 = 16, 32
def lds_spin(a, tag, addr, off=0, val=1, va=14, vd=15, slp=0):
    a.e(f'v_mov_b32 v{va}, {addr}\ns_mov_b32 s77, 400000')
    if slp: a.e(f's_branch {tag}_1')
    a.label(tag); a.fence()
    if slp: a.e(f's_sleep {slp}'); a.label(f'{tag}_1')
    a.e(f"""
    ds_read_b32 v{vd}, v{va} offset:{off}
    s_waitcnt lgkmcnt(0)
    v_readfirstlane_b32 s73, v{vd}
    s_sub_u32 s77, s77, 1
    s_cbranch_scc1 {tag}_ok
    s_cmp_lt_u32 s73, {val}
    s_cbranch_scc1 {tag}
    """)
    a.label(f'{tag}_ok'); a.fence()

def probe(a, tag, reg):
    if DIAG != 8: return
    a.e('s_mov_b32 s77, 0')
    mark(a, 1)
    a.label(tag); a.fence()
    for i in range(200): a.e(f'v_add_u32 v{reg}, 0x12345, v{reg}')
    a.e('s_mov_b64 s[92:93], s[94:95]')
    mark(a, 3)
    a.e(f's_waitcnt lgkmcnt(0)\ns_add_u32 s77, s77, 1\ns_cmp_lt_u32 s77, 2\ns_cbranch_scc1 {tag}')

def gemm2(a):
    a.label('gemm2'); a.fence()
    vm = VM(a)
    PA = sum(SLOT[('a', i)] << (4*i) for i in range(4)); PB = sum(SLOT[('b', i)] << (4*i) for i in range(4))
    SP = [x for x in range(9) if x not in [SLOT[(k, i)] for k in 'ab' for i in range(4)]][0]
    LOCS = [SLOT[('a', i)] for i in (0, 1, 2, 3, 0, 1, 2)] + [SLOT[('b', i)] for i in range(4)] + [SLOT[('a', 3)], SP, SLOT[('a', 0)]]
    NH = 14; XR = 16; ZR = 128; T224 = 184
    def common():
        a.e(f"""
        s_lshl_b32 s87, s64, 12
        s_lshl_b32 s86, s64, 2
        s_add_u32 s86, s86, {FLG}
        v_lshrrev_b32 v5, 5, v0              ; h
        v_and_b32 v4, 31, v0                 ; l31
        v_lshlrev_b32 v3, 4, v0              ; lane*16
        """)
    def outaddr():
        srd(a, 48, 18, 0, SZ_X)
        a.e(f"""
        s_lshr_b32 s65, s3, 1
        s_and_b32 s76, s65, 1                ; aa
        s_lshl_b32 s76, s76, 2
        s_lshr_b32 s78, s60, 1
        s_lshl_b32 s78, s78, 3
        s_add_u32 s76, s76, s78
        s_and_b32 s78, s60, 1
        s_add_u32 s76, s76, s78              ; rows/16
        s_mul_i32 s76, s76, {16*896}
        s_lshr_b32 s65, s65, 1               ; b
        s_lshl_b32 s78, s61, 1
        s_add_u32 s78, s78, s65
        s_lshl_b32 s78, s78, 6
        s_add_u32 s76, s76, s78
        s_and_b32 s78, s3, 1
        s_lshl_b32 s78, s78, 5
        s_add_u32 s76, s76, s78
        v_and_b32 v12, 15, v0
        v_bfe_u32 v13, v0, 4, 1
        v_lshl_add_u32 v12, v13, 5, v12
        v_mul_u32_u24 v12, 896, v12
        v_lshrrev_b32 v14, 5, v0
        v_lshl_add_u32 v13, v14, 3, v12
        v_lshl_add_u32 v12, v14, 4, v12
        """)
    XL = [f'buffer_load_dwordx2 {d2(XR+2*g)}, v13, s[24:27], s76 offen offset:{16*g}' for g in range(2)]
    def mf(A, B, first):
        for aa in range(2):
            for b in range(2):
                d = ACC2 + 16 * (2*b + aa)
                c = '0' if first else f'v[{d}:{d+15}]'
                a.e(f'v_mfma_f32_32x32x16_bf16 v[{d}:{d+15}], {q(A+4*b)}, {q(B+4*aa)}, {c}')
    common()
    a.e(f"""
    v_bfe_u32 v1, v0, 2, 2               ; r
    v_lshl_add_u32 v2, v5, 2, v1         ; 4h + r
    v_lshlrev_b32 v2, 7, v2
    v_lshrrev_b32 v1, 1, v1
    v_lshl_add_u32 v2, v1, 6, v2
    v_bfe_u32 v1, v0, 4, 1
    v_lshl_add_u32 v2, v1, 5, v2
    v_and_b32 v1, 3, v0
    v_lshl_add_u32 v2, v1, 3, v2
    v_add_u32 v2, s87, v2
    """)
    def tr(k):
        sl = k % 8; L = []
        if k % 2 == 0: L += [f'v_add_u32 v1, {LOCS[k>>1]*16384}, v2', 'v_xor_b32 v5, 64, v1']
        for b in range(2):
            for rho in range(2):
                L.append(f'ds_read_b64_tr_b16 {d2(AF + 8*sl + 4*b + 2*rho)}, v{5 if b else 1} offset:{(k&1)*2048 + rho*1024}')
        return L
    for k in range(8):
        for l in tr(k): a.e(l)
    a.e(f"""
    s_mul_i32 s65, s3, 14
    s_mul_i32 s73, s60, 224
    s_add_u32 s73, s73, s65
    s_lshl_b32 s73, s73, 10
    s_add_u32 s65, s73, 114688
    """)
    assert OFF_HF == 0
    srd(a, 28, 22, 's73', 57344 + 14336)
    srd(a, 32, 22, 's65', 57344 + 14336)
    srd(a, 52, 22, OFF_ST, SZ_ST)
    fl_srd(a, 40)
    a.e(f"""
    s_mul_i32 s74, s3, {224*896}
    s_lshl_b32 s75, s61, 7
    s_add_u32 s74, s74, s75
    v_lshlrev_b32 v10, 2, v4
    s_lshl_b32 s85, s60, 8
    s_add_u32 s85, s85, 8192
    v_mov_b32 v8, v29
    v_add_u32 v9, 57344, v3
    v_mov_b32 v30, 1
    """)
    for qq in range(7):
        if ROT2: a.e(f's_add_u32 s{66+qq}, s61, {qq}\ns_cmp_ge_u32 s{66+qq}, 7\ns_cselect_b32 s75, 7, 0\ns_sub_u32 s{66+qq}, s{66+qq}, s75\ns_lshl_b32 s{66+qq}, s{66+qq}, 11')
        else: a.e(f's_mov_b32 s{66+qq}, {qq*2048}')
    def dma(P):
        a.e(f's_mul_i32 s73, s{66+P%7}, 14\ns_add_u32 s73, s73, s74')
        for i in range(4):
            a.e(f's_add_u32 s75, s73, {i*7168 + (P//7)*4*224*896}\ns_add_u32 m0, s87, {LOCS[P]*16384 + i*1024}')
            vm.issue(f'buffer_load_dwordx4 v8, s[36:39], s75 offen lds', ('wd', P))
    own = [4, 5, 6] + [7 + i for i in range(4) if WHEN[('b', i)] > LB + HK] + [11, 12]
    NPRE = opt('NPRE', 2); NMID = opt('NMID', 5)
    a.e('s_waitcnt lgkmcnt(0)')
    assert NPRE <= 3
    for P in own[:NPRE]: dma(P)
    a.e(f's_waitcnt vmcnt({4*NPRE})')
    vm.issue(f'buffer_store_dword v30, v28, s[40:43], 0 offen{HSS}', 'fl')
    m2(a, 3, 2)
    lds_spin(a, 'g2_rc', RCNT, 4*14, 4)
    RL = [f'buffer_load_dword v{6+aa}, v10, s[52:55], s85 offen offset:{aa*128} sc1' for aa in range(2)]
    for l in RL: vm.issue(l, 'r2')
    a.e(f"""
    s_lshr_b32 s65, s60, 1
    s_lshl_b32 s65, s65, 3
    s_add_u32 s65, s65, s3
    s_lshl_b32 s65, s65, 7
    s_add_u32 s65, s65, {FH}
    v_and_b32 v1, 7, v0
    v_min_u32 v1, 6, v1
    v_lshlrev_b32 v1, 2, v1
    v_bfe_u32 v11, v0, 3, 1
    v_lshl_add_u32 v1, v11, 9, v1
    v_add_u32 v1, s65, v1
    v_mov_b32 v11, 1
    """)
    NE = opt('NE', 0)
    mid = own[NPRE:NPRE+NMID]
    for n, P in enumerate(mid):
        e = n - (len(mid) - NE)
        if e >= 0: vm.issue(f'buffer_load_dword v{193+e}, v1, s[40:43], 0 offen sc1', ('fh', e))
        dma(P)
    late = own[NPRE+NMID:] + [13]
    vm.issue(f'buffer_load_dword v192, v1, s[40:43], 0 offen sc1', 'fhl')
    m2(a, 4, 2)
    vm2 = vm.copy()
    for e in range(NE):
        vm2.wait(('fh', e))
        a.e(f'v_cmp_ne_u32 vcc, 1, v{193+e}\ns_nop 1\ns_cbranch_vccz fh_ok')
    a.e('s_waitcnt vmcnt(0)')
    poll1(a, 'fh', 192, 1, opt('HSLP', 2))
    if NE: vm.cnt(('fh', 0))
    else: vm.all_done()
    m2(a, 1, 6)
    m2(a, 2, 7)
    def issue(k):
        r = HR + 8 * (k % NH); o = (k & 1) * 1024
        for j in range(2):
            vm.issue(f'buffer_load_dwordx4 {q(r+4*j)}, v{3 if k < 14 else 9}, s[{28+4*j}:{31+4*j}], s{66+(k>>1)%7} offen offset:{o}{HS}', ('h', k))
    HB = opt('HB', 1)
    for k in range(NH):
        if HB and k == HB - 1: lds_spin(a, 'g2_b', 's86', FLG3, slp=1)
        issue(k)
    m2(a, 1, 7)
    outaddr()
    LK = {}
    for n, P in enumerate(late): LK[max(2*n + 1, 9 if P == 13 else 0)] = P
    for k in range(28):
        vm.wait(('h', k))
        if k >= 8: a.e(f's_waitcnt lgkmcnt({4*min(3, 27-k)})')
        mf(AF + 8*(k % 8), HR + 8 * (k % NH), k == 0)
        if k + NH < 28: issue(k + NH)
        if k in LK: dma(LK[k])
        if k == 15:
            for l in XL: vm.issue(l, 'xr')
        if k == 0: m2(a, 3, 3)
        if k == 0: m2(a, 3, 7)
        if k == 1: m2(a, 4, 7)
        if k == 13: m2(a, 4, 3)
        if k in (3, 7, 20): m2(a, {3: 2, 7: 3, 20: 4}[k], 6)
        if k == 10 and HB == 0: lds_spin(a, 'g2_b', 's86', FLG3)
        if k == 22: a.e(f'v_mov_b32 v14, s86\nds_write_b32 v14, v11 offset:{FLG2}\ns_waitcnt lgkmcnt(0)')
        if 4 <= k < 24:
            if k % 2 == 0: vm.wait(('wd', (k + 4) >> 1))
            for l in tr(k + 4): a.e(l)
    check(a, 'g2_r2', [6, 7], 14, 15, RL, 0)
    a.e('s_nop 7')
    for tl in range(4):
        for i in range(16):
            a.e(f'v_mul_f32 v{ACC2+16*tl+i}, v{ACC2+16*tl+i}, v{6+(tl&1)}')
    for i in range(4): a.e(f's_add_u32 s{82+i}, s87, {SLOT[("a", i)]*16384}')
    a.e('s_branch g2_red')
    a.label('gemm2h'); a.fence()
    probe(a, 'pr2', 31)
    vm = VM(a)
    common()
    def zflag():
        a.e('v_mov_b32 v30, 1\ns_waitcnt vmcnt(0)')
        a.e(f'buffer_store_dword v30, v28, s[40:43], 0 offen{SS}')
        a.e(f'v_mov_b32 v14, s86\nds_write_b32 v14, v30 offset:{FLG3}')
        m2(a, 3, 2)
    g_gen(a, zflag, opt('GH', 0))
    outaddr()
    a.e(f"""
    v_and_b32 v10, 15, v0
    v_lshlrev_b32 v10, 4, v10            ; l15*16
    v_bfe_u32 v11, v0, 4, 1
    v_lshl_add_u32 v11, v5, 2, v11       ; 4h + b16
    v_mul_u32_u24 v8, {ZS3}, v11
    v_add_u32 v8, v8, v10
    v_add_u32 v9, {2*ZS3}, v8
    s_mul_i32 s74, s64, {56*ZS3}
    s_lshl_b32 s75, s60, 8
    s_add_u32 s74, s74, s75              ; z3 base
    s_add_u32 s75, s75, {224*ZS3}
    s_cmp_eq_u32 s64, 0
    s_cselect_b32 s75, s75, 0x40000000
    s_cselect_b32 s65, 16, 0
    v_cmp_gt_u32 vcc, s65, v0
    v_mov_b32 v11, 0x40000000
    v_cndmask_b32 v10, v11, v10, vcc
    v_mov_b32 v11, -1
    v_mov_b32 v14, 0xffff
    v_cndmask_b32 v11, v11, v14, vcc
    s_mul_i32 s65, s64, 224
    s_cmp_eq_u32 s64, 0
    s_cselect_b32 s73, 896, s65
    v_lshlrev_b32 v15, 2, v0
    v_add_u32 v15, s65, v15
    v_mov_b32 v14, s73
    v_cmp_gt_u32 vcc, 56, v0
    v_cndmask_b32 v15, v14, v15, vcc
    s_lshl_b32 s65, s60, 10
    s_add_u32 s65, s65, {FZ}
    v_add_u32 v15, s65, v15
    """)
    for i in range(4): a.e(f's_add_u32 s{82+i}, s87, {SLOT[("b", i)]*16384}')
    for l in XL: vm.issue(l, 'xr')
    m2(a, 4, 2)
    poll1(a, 'fz', 14, 15, opt('ZSLP', 4), first=True)
    vm.all_done()
    m2(a, 1, 6)
    for z in range(7):
        r = ZR + 8*z
        a.e(f's_add_u32 s65, s74, {z*8*ZS3}')
        vm.issue(f'buffer_load_dwordx4 {q(r)}, v8, s[44:47], s65 offen{HS}', ('z', z))
        vm.issue(f'buffer_load_dwordx4 {q(r+4)}, v9, s[44:47], s65 offen{HS}', ('z', z))
        if z == 0: vm.issue(f'buffer_load_dwordx4 {q(T224)}, v10, s[44:47], s75 offen{HS}', ('z', z))
    for z in range(7):
        r = ZR + 8*z
        vm.wait(('z', z))
        if z == 0:
            for t in range(4):
                a.e(f'v_and_b32 v{r+t}, v{r+t}, v11\nv_lshl_or_b32 v{r+t}, v{T224+t}, 16, v{r+t}')
        for t in (0, 2, 4, 6):
            a.e(f'v_permlane16_swap_b32 v{r+t}, v{r+t+1}')
        a.e(f'v_swap_b32 v{r+2}, v{r+4}\nv_swap_b32 v{r+3}, v{r+5}')
        mf(GF_ + 8*z, r, z == 0)
        if z == 0: m2(a, 3, 3)
    m2(a, 4, 3)
    lds_spin(a, 'g2_bf', 's86', FLG2, slp=1)
    a.e('s_nop 7')
    a.label('g2_red'); a.fence()
    m2(a, 1, 3)
    for tl in range(4):
        a.e(f'v_add_u32 v{8+tl}, s{82+tl}, v3')
    for tl in range(4):
        for c in range(4):
            a.e(f'ds_write_b128 v{8+tl}, {q(ACC2+16*tl+4*c)} offset:{c*1024}')
    a.e(f'''
    s_lshr_b32 s65, s3, 1
    s_lshl_b32 s65, s65, 2
    s_lshr_b32 s66, {PA}, s65
    s_and_b32 s66, s66, 15
    s_lshl_b32 s66, s66, 14
    s_lshr_b32 s67, {PB}, s65
    s_and_b32 s67, s67, 15
    s_lshl_b32 s67, s67, 14
    s_and_b32 s65, s3, 1
    s_lshl_b32 s65, s65, 11
    s_add_u32 s66, s66, s65
    s_add_u32 s67, s67, s65
    v_add_u32 v2, s66, v3
    v_add_u32 v7, s67, v3
    s_waitcnt vmcnt(0)
    ''')
    for g in range(2):
        for c in range(2):
            a.e(f'v_lshlrev_b32 v{96+4*g+2*c}, 16, v{XR+2*g+c}\nv_and_b32 v{96+4*g+2*c+1}, 0xffff0000, v{XR+2*g+c}')
    a.e('s_waitcnt lgkmcnt(0)\ns_barrier')
    m2(a, 2, 3)
    for sw in range(8):
        for c in range(2):
            a.e(f'ds_read_b128 {q(16+8*sw+4*c)}, v{2 if sw < 4 else 7} offset:{(sw&3)*4096 + c*1024}')
    for sw in range(8):
        a.e(f's_waitcnt lgkmcnt({14-2*sw})')
        for r in range(0, 8, 2):
            a.e(f'v_pk_add_f32 {d2(96+r)}, {d2(96+r)}, {d2(16+8*sw+r)}')
    for g in range(2):
        for c in range(2):
            a.e(f'v_cvt_pk_bf16_f32 v{112+2*g+c}, v{96+4*g+2*c}, v{96+4*g+2*c+1}')
    for c in range(2):
        a.e(f'v_permlane32_swap_b32 v{112+c}, v{114+c}')
    a.e(f'buffer_store_dwordx4 {q(112)}, v12, s[48:51], s76 offen' + ['', ' sc0 sc1', ' nt', ' sc1'][opt('OSM', 0)])
    endpgm(a, 0, 22)
    emit_stubs(a)

def emit(a, x):
    if callable(x): x()
    else: a.e(x)

def gu(a):
    vm = VM(a)
    a.e(f'''
    v_lshrrev_b32 v5, 4, v0
    v_lshlrev_b32 v6, 2, v5
    v_and_b32 v7, 15, v0
    v_xor_b32 v6, v6, v7
    v_mul_u32_u24 v11, 3584, v5
    v_lshl_add_u32 v11, v6, 4, v11
    s_lshl_b32 s69, s58, 8               ; ct*256
    s_sub_u32 s70, {SZ_WG}, s69
    s_lshl_b32 s65, s59, 3
    s_bfe_u32 s66, s3, {(1<<16)|1}
    s_lshl_b32 s66, s66, 2
    s_add_u32 s66, s66, s65
    s_lshr_b32 s67, s3, 2
    s_add_u32 s66, s66, s67
    s_and_b32 s67, s3, 1
    s_lshl_b32 s67, s67, 1
    s_add_u32 s66, s66, s67
    s_mul_i32 s66, s66, {16*896}
    s_mul_i32 s68, s3, 14336
    s_lshl_b32 s71, s3, 10
    s_lshl_b32 s72, s3, 11
    s_add_u32 s78, s59, s58
    s_mul_i32 s67, s78, 37
    s_lshr_b32 s67, s67, 8
    s_mul_i32 s67, s67, 7
    s_sub_u32 s78, s78, s67
    s_mul_i32 s78, s78, {128*opt('ROT1', 0)}
    s_add_u32 s66, s66, s78
    s_mul_i32 s67, s78, 1792
    s_add_u32 s68, s68, s67
    s_waitcnt lgkmcnt(0)
    ''')
    srd(a, 24, 4, 0, SZ_X)
    for jj in range(2):
        a.e(f's_add_u32 m0, s72, {SLOT[("x",0)]*16384 + jj*1024}')
        vm.issue(f'buffer_load_dwordx4 v{12+jj}, s[24:27], s66 offen lds', ('x', 0))
    srd(a, 28, 12, 's69', 's70')
    srd(a, 32, 14, 's69', 's70')
    for c in range(2):
        if c: a.e(f's_add_u32 s68, s68, 114688')
        for mat in range(2):
            a.e(f's_add_u32 m0, s71, {SLOT[("w",c)]*16384 + mat*8192}')
            vm.issue(f'buffer_load_dwordx4 v11, s[{28+4*mat}:{31+4*mat}], s68 offen lds', ('w', c))
    a.e(f's_mov_b32 s79, {TMO}')
    a.e('s_cmp_ge_u32 s3, 4\ns_cbranch_scc1 gu_helper')
    vmh = vm.copy()
    dbg_srd(a)
    a.e('''
    v_mov_b32 v30, 1
    v_lshlrev_b32 v31, 20, v0
    ''')
    srd(a, 28, 22, OFF_HF, SZ_HF)
    a.e(f'''
    s_mul_i32 s65, s59, {4*112}
    s_lshl_b32 s66, s58, 3
    s_add_u32 s65, s65, s66
    s_lshl_b32 s66, s64, 1
    s_add_u32 s65, s65, s66
    s_lshl_b32 s65, s65, 10
    s_add_u32 s66, s65, {112*1024}
    s_add_u32 s67, s65, {2*112*1024}
    s_add_u32 s68, s65, {3*112*1024}
    s_lshl_b32 s71, s58, 2
    s_add_u32 s71, s71, s64              ; pair P
    s_mul_i32 s72, s71, 37
    s_lshr_b32 s72, s72, 8               ; P / 7
    s_mul_i32 s73, s72, 7
    s_sub_u32 s71, s71, s73
    s_lshl_b32 s71, s71, 2
    s_lshl_b32 s73, s59, 3
    s_add_u32 s72, s72, s73
    s_lshl_b32 s72, s72, 7
    s_add_u32 s71, s71, s72
    s_add_u32 s71, s71, {FH}
    v_lshlrev_b32 v1, 4, v0
    ''')
    srd(a, 36, 16, 0, SZ_WG)
    srd(a, 52, 22, OFF_ST, SZ_ST)
    wd_addr(a, 29, 5, 6)
    a.e(f'''
    v_and_b32 v14, 31, v0                ; l31
    v_lshrrev_b32 v3, 5, v0              ; h
    v_bfe_u32 v9, v0, 1, 3
    v_xor_b32 v9, v9, v3
    v_lshlrev_b32 v9, 4, v9
    v_lshl_add_u32 v8, v14, 7, v9        ; X base0
    v_lshlrev_b32 v14, 2, v14
    v_bfe_u32 v9, v0, 2, 2               ; r
    v_lshl_add_u32 v10, v3, 3, v9        ; 8h + r
    v_lshlrev_b32 v2, 8, v10
    v_xor_b32 v9, s64, v9
    v_lshl_add_u32 v2, v9, 6, v2
    v_bfe_u32 v9, v0, 4, 1
    v_lshl_add_u32 v2, v9, 5, v2
    v_and_b32 v9, 3, v0
    v_lshl_add_u32 v2, v9, 3, v2
    v_add_u32 v3, 0x10000, v2
    v_add_u32 v4, 0x20000, v2
    v_mov_b32 v7, {RCNT}
    v_mov_b32 v16, 0
    v_mov_b32 v17, 0
    v_mov_b32 v18, 0
    v_mov_b32 v19, 0
    s_mov_b32 s85, 0xffff0000
    s_lshl_b32 s70, s59, 9
    ''')
    for r in range(84, 108): a.e(f'v_mov_b32 v{r}, 0')
    ML = [f'buffer_load_dword v{84+4*t}, v14, s[52:55], s70 offen offset:{t*128} sc1' for t in range(4)]
    extras = {}
    CLRA = opt('CLRA', 5)
    extras.setdefault(opt('L1K', 5), []).insert(0, lambda: l1_issue(vm, 28, 31))
    L1N = []
    TT = opt('TT', 0)
    if TT:
        assert WS == ZS3
        srd(a, 32, 22, OFF_Z1, SZ_Z1 + SZ_WT + SZ_Z3)
        srd(a, 44, 18, 0, SZ_X)
        a.e(f'''
        s_cmp_eq_u32 s64, 3
        s_cselect_b32 s74, 8192, 0x40000000
        v_mul_u32_u24 v9, {28*WS}, v0
        v_add_u32 v9, {SZ_Z1}, v9
        v_mul_u32_u24 v11, {14*ZS1}, v0
        v_lshlrev_b32 v10, 17, v0
        s_mov_b64 exec, 0xffff
        ''')
        vm.issue('buffer_load_dword v124, v9, s[32:35], s74 offen', 'tt')
        vm.issue('buffer_load_dword v127, v11, s[32:35], s74 offen', 'tt')
        vm.issue('buffer_load_dword v125, v10, s[44:47], s74 offen', 'tt')
        vm.issue('buffer_load_dword v126, v10, s[36:39], s74 offen', 'tt')
        if TT > 1:
            a.e('s_mov_b64 exec, 1')
            vm.issue(f'buffer_store_dword v30, v31, s[28:31], s65 offen{SS}', 'tt')
        a.e('s_mov_b64 exec, -1')
    srd(a, 32, 6, 0, SZ_WR)
    srd(a, 44, 8, 0, SZ_WR)
    srd(a, 48, 22, OFF_WT, SZ_WT)
    a.e(f'''
    s_mul_i32 s74, s64, 224
    s_add_u32 s74, s74, s62              ; task G
    s_lshr_b32 s75, s74, 6               ; (tm,q)
    s_lshl_b32 s75, s75, 8
    s_bfe_u32 s76, s74, {(2<<16)|4}      ; w
    s_lshl_b32 s76, s76, 4
    s_add_u32 s75, s75, s76
    s_bfe_u32 s76, s74, {(1<<16)|3}      ; par
    s_add_u32 s75, s75, s76              ; s0 (g = 0)
    s_mul_i32 s75, s75, 450
    s_and_b32 s75, s75, -4
    s_and_b32 s77, s74, 7                ; cb
    s_lshl_b32 s78, s77, 6
    s_add_u32 s75, s75, s78
    v_and_b32 v9, 7, v0
    v_lshrrev_b32 v10, 3, v0
    v_lshl_add_u32 v12, v9, 3, v10
    v_lshlrev_b32 v12, 2, v12
    v_mul_u32_u24 v11, 900, v10
    v_lshl_add_u32 v11, v9, 3, v11
    v_mul_u32_u24 v15, {4*WS}, v10
    v_lshl_add_u32 v15, v9, 4, v15
    s_lshl_b32 s77, s77, 5
    s_add_u32 s77, s77, 1
    s_sub_u32 s77, s77, s76
    s_mul_i32 s77, s77, {WS}
    s_and_b32 s76, s74, 15
    s_lshl_b32 s76, s76, 9
    s_add_u32 s76, s76, {FW}
    s_lshr_b32 s78, s74, 3
    s_lshl_b32 s78, s78, 7
    s_cmp_lt_u32 s74, 512
    s_cselect_b32 s74, s78, 0x40000000
    s_cselect_b32 s76, s76, 0x40000000
    s_add_u32 s74, s74, s77
    s_mov_b32 s82, 0x05040100
    s_mov_b32 s83, 0x07060302
    v_lshlrev_b32 v13, 7, v0
    v_cmp_gt_u32 vcc, 4, v0
    v_cndmask_b32 v13, v31, v13, vcc
    ''')
    def jl(i):
        for mat in range(2):
            vm.issue(f'buffer_load_dwordx2 {d2(108+8*mat+2*i)}, v11, s[{32+12*mat}:{35+12*mat}], s75 offen', 'ja')
        if i < 3: a.e(f's_add_u32 s75, s75, {64*450}')
        else: fl_srd(a, 44)
    JLK = opt('JLK', 0); JLS = opt('JLS', 1)
    for i in range(4):
        if JLK < 0: jl(i)
        else: extras.setdefault(JLK + (i * JLS) // 2, []).append(lambda i=i: jl(i))
    def jb(h):
        vm.wait('ja')
        for r in range(8*h, 8*h + 8): a.e(f'ds_bpermute_b32 v{108+r}, v12, v{108+r}')
    def js(c):
        for mat in range(2):
            for ip in range(2):
                r = 108 + 8*mat + 4*ip + (c >> 1)
                a.e(f'v_perm_b32 v{124+2*mat+ip}, v{r+2}, v{r}, s{82+(c&1)}')
        vm.issue(f'buffer_store_dwordx4 {q(124)}, v15, s[48:51], s74 offen{SS}', 'wt')
        if c < 3: a.e(f's_add_u32 s74, s74, {WS}')
    def jsig():
        vm.wait('wt')
        vm.issue('buffer_atomic_add v30, v13, s[44:47], s76 offen sc1', 'fw')
    fd_addr(a, 9, 77, 78)
    a.e('s_lshl_b32 s78, s64, 28')
    def fdchk():
        vm.wait('fd')
        a.e('''
        v_cmp_ne_u32 vcc, 32, v10
        s_nop 1
        s_cmp_eq_u64 vcc, 0
        s_cselect_b64 exec, 1, 0
        ds_write_b32 v7, v30 offset:4
        s_mov_b64 exec, -1
        ''')
    if opt('FDK', 17):
        extras.setdefault(opt('FDK', 17), []).append(lambda: vm.issue('buffer_load_dword v10, v9, s[44:47], s78 offen sc1', 'fd'))
        extras.setdefault(2*LB - 2, []).append(fdchk)
    JB = opt('JB', 5)
    for h in range(2): extras.setdefault(JB + h, []).append(lambda h=h: jb(h))
    for c in range(4): extras.setdefault(JB + 2 + c, []).append(lambda c=c: js(c))
    assert opt('JSK', 14) >= 2*CLRA + 2
    extras.setdefault(opt('JSK', 14), []).append(jsig)
    def flag(n):
        if n == 'a': L1N.append(len(vm.ops) - 1 - vm.ops.index('l1'))
        a.e(f's_cmp_eq_u32 s3, 0\ns_cbranch_scc1 gu_fl{n}')
        a.label(f'gu_fl{n}_ret')
    extras.setdefault(2*CLRA - 1, []).insert(0, lambda: flag('a'))
    for l in ML: extras.setdefault(opt('MLK', 20), []).append(lambda l=l: vm.issue(l, 'ml'))
    def preb(c):
        tag = {0: ('w', 0), 1: ('w', 1), }.get(c)
        if tag:
            n = vm.cnt(tag)
            if n is not None: return f' vmcnt({n})'
        return ''
    def reads(k):
        buf = k & 1; ksl = k & 3; u = k >> 2
        xb = 5 + (k & 1)
        XB = [f'ds_read_b128 {q(48+16*buf+4*t)}, v{xb} offset:{t*4096}' for t in range(4)]
        c = k >> 1; slot = SLOT[('w', c)]; kk = k & 1
        WA = []
        for i in range(2):
            for rho in range(2):
                d = 32 + 8*buf + 4*i + 2*rho
                off = (slot & 3)*16384 + i*8192 + kk*4096 + rho*1024
                WA.append(f'ds_read_b64_tr_b16 {d2(d)}, v{2 + (slot >> 2)} offset:{off}')
        return [WA[0], WA[1], XB[0], WA[2], WA[3], XB[1], XB[2], XB[3]]
    def xbase(k):
        return f'v_xor_b32 v{5 + (k & 1)}, {SLOT[("x", k >> 2)]*16384 + (k & 3)*32}, v8'
    def cs(k):
        buf = k & 1; L = []
        n = 0
        for i in range(2):
            for dd in range(4):
                r = 32 + 8*buf + 4*i + dd; t = 20 + 2*(n & 3); n += 1
                L += [f'v_lshlrev_b32 v{t}, 16, v{r}', f'v_and_b32 v{t+1}, s85, v{r}',
                      f'v_add_f32 v{16+2*i}, v{16+2*i}, v{t}', f'v_add_f32 v{17+2*i}, v{17+2*i}, v{t+1}']
        return L
    def mfmas(k):
        buf = k & 1
        return [f'v_mfma_f32_32x32x16_bf16 v[{acc(i,t)}:{acc(i,t)+15}], {q(32+8*buf+4*i)}, {q(48+16*buf+4*t)}, ' + ('0' if k == 0 else f'v[{acc(i,t)}:{acc(i,t)+15}]')
                for t in range(4) for i in range(2)]
    a.e(xbase(0)); a.e(xbase(1))
    a.e(f's_waitcnt lgkmcnt(0){preb(0)}')
    m2(a, 1, 1)
    a.e('s_barrier')
    m2(a, 2, 1)
    for l in reads(0): a.e(l)
    for k in range(28):
        M = mfmas(k)
        if k & 1:
            if k == 2*CLRA - 1: m2(a, 4, 5)
            a.e(f's_waitcnt lgkmcnt(0){preb((k+1)//2)}')
        else:
            a.e('s_waitcnt lgkmcnt(0)')
        R = reads(k+1) if k < 27 else []
        V = cs(k) if opt('CS', 1) else []
        if k + 2 < 28: V = V[:16] + [xbase(k+2)] + V[16:]
        X = extras.get(k, [])
        for g in range(8):
            a.e(M[g])
            if g == 0 and (k & 1):
                if (k+1)//2 <= LB: a.e('s_barrier')
                else: a.e(f's_mov_b64 exec, 1\nds_add_u32 v7, v30 offset:{4*((k+1)//2)}\ns_mov_b64 exec, -1')
                if (k+1)//2 in (3, 6, 9, 12): m2(a, (k+1)//6, 4)
            nr = 2 if g < 4 else 0
            nv = (3 if g < 4 else 6) if R else 5
            for l in R[2*g:2*g+nr]: a.e(l)
            for l in V[:nv]: a.e(l)
            V = V[nv:]
            if g >= 2 and X: emit(a, X.pop(0))
        for l in V: a.e(l)
        for l in X: emit(a, l)
    m2(a, 3, 1)
    for i in range(2):
        a.e(f'''
        v_add_f32 v{16+2*i}, v{16+2*i}, v{17+2*i}
        v_cvt_pk_bf16_f32 v{20+i}, v{16+2*i}, v{16+2*i}
        v_and_b32 v{20+i}, s85, v{20+i}
        v_sub_f32 v{20+i}, v{16+2*i}, v{20+i}
        v_cvt_pk_bf16_f32 v{100+4*i}, v{16+2*i}, v{20+i}
        ''')
    vm.wait('ml')
    check(a, 'gu_m', [84, 88, 92, 96], 20, 21, ML, 0)
    for t in range(4):
        for i in range(2):
            a.e(f'v_mfma_f32_32x32x16_bf16 v[{acc(i,t)}:{acc(i,t)+15}], {q(100+4*i)}, {q(84+4*t)}, v[{acc(i,t)}:{acc(i,t)+15}]')
    n = 0
    for t in range(4):
        for jp in range(2):
            o = 32 + 4 * n; n += 1
            for dd in range(4):
                g0 = acc(0, t) + 8*jp + 2*dd; u0 = acc(1, t) + 8*jp + 2*dd
                a.e(f'''
                v_max_f32 v{g0}, 0, v{g0}
                v_max_f32 v{g0+1}, 0, v{g0+1}
                v_mul_f32 v{g0}, v{g0}, v{u0}
                v_mul_f32 v{g0+1}, v{g0+1}, v{u0+1}
                v_cvt_pk_bf16_f32 v{o+dd}, v{g0}, v{g0+1}
                ''')
            vm.issue(f'buffer_store_dwordx4 {q(o)}, v1, s[28:31], s{65+t} offen offset:{jp*1024}{HSS}', 'hst')
    m2(a, 4, 1)
    a.e('v_add_u32 v28, s71, v31')
    m2(a, 1, 2)
    a.e(f'''
    s_lshl_b32 s65, s64, 2
    s_add_u32 s65, s65, {FLG}
    v_mov_b32 v4, s65
    s_mov_b32 s77, 400000
    ''')
    a.label('gu_sp'); a.fence()
    a.e(f'''
    ds_read_b32 v5, v4
    s_waitcnt lgkmcnt(0)
    v_readfirstlane_b32 s65, v5
    s_sub_u32 s77, s77, 1
    s_cbranch_scc1 gu_spok
    s_cmp_eq_u32 s65, 0
    s_cbranch_scc1 gu_sp
    ''')
    a.label('gu_spok'); a.fence()
    probe(a, 'pr3', 5)
    m2(a, 2, 2)
    a.e('s_branch gemm2')
    emit_stubs(a)
    a.label('gu_fla'); a.fence()
    m2(a, 1, 5)
    a.e(f's_waitcnt vmcnt({L1N[0]})')
    m2(a, 2, 5)
    l1_check(a, 'gua', 28, 31)
    m2(a, 3, 5)
    a.e('s_branch gu_fla_ret')
    a.label('gu_helper'); a.fence()
    vm = vmh
    a.e(f'''
    s_and_b32 s66, s64, 1
    s_lshl_b32 s66, s66, 2
    s_add_u32 s66, s66, s65
    s_lshr_b32 s67, s64, 1
    s_add_u32 s66, s66, s67
    s_mul_i32 s82, s66, {16*896}
    s_add_u32 s83, s82, {32*896}
    s_mul_i32 s84, s64, 28672
    s_lshl_b32 s86, s64, 11
    s_lshl_b32 s87, s64, 12
    ''')
    def item(it):
        L = []
        kind, n = it; sb = SLOT[it] * 16384
        if kind == 'x':
            for jj in range(4):
                def f(jj=jj):
                    if jj == 0:
                        a.e(f's_add_u32 s78, s78, 128\ns_cmp_eq_u32 s78, 896\ns_cselect_b32 s78, 0, s78\ns_mul_i32 s85, s78, 1792\ns_add_u32 s85, s85, s84')
                    if jj % 2 == 0: a.e(f's_add_u32 s73, s{82+(jj>>1)}, s78')
                    a.e(f's_add_u32 m0, s87, {sb + jj*1024}')
                    vm.issue(f'buffer_load_dwordx4 v{12+(jj&1)}, s[24:27], s73 offen lds', it)
                L.append(f)
        elif kind == 'w':
            for e in range(2):
                for mat in range(2):
                    def f(e=e, mat=mat):
                        if mat == 0: a.e(f's_add_u32 s73, s85, {(n&1)*114688 + e*14336}')
                        a.e(f's_add_u32 m0, s86, {sb + mat*8192 + e*1024}')
                        vm.issue(f'buffer_load_dwordx4 v11, s[{28+4*mat}:{31+4*mat}], s73 offen lds', it)
                    L.append(f)
        else:
            for i in range(4):
                def f(i=i):
                    if i == 0:
                        a.e(f's_add_u32 s85, s61, {n}\ns_cmp_ge_u32 s85, 7\ns_cselect_b32 s73, 7, 0\ns_sub_u32 s85, s85, s73' if ROT2 else f's_mov_b32 s85, {n}')
                        a.e(f's_mul_i32 s85, s85, 28672\ns_add_u32 s85, s85, s{74 if kind == "a" else 75}')
                    a.e(f's_add_u32 s73, s85, {i*7168}\ns_add_u32 m0, s87, {sb + i*1024}')
                    vm.issue(f'buffer_load_dwordx4 v29, s[36:39], s73 offen lds', it)
                L.append(f)
        return L
    for it in ITEMS[3:]:
        if WHEN[it] == -1:
            for f in item(it): f()
    srd(a, 36, 16, 0, SZ_WG)
    wd_addr(a, 29, 5, 6)
    a.e(f'''
    s_mul_i32 s74, s64, {224*896}
    s_lshl_b32 s75, s61, 7
    s_add_u32 s74, s74, s75
    s_add_u32 s75, s74, {4*224*896}
    v_lshlrev_b32 v30, 2, v0
    v_add_u32 v30, {XCNT}, v30
    v_mov_b32 v31, 0
    ds_write_b32 v30, v31
    ''')
    import re
    K = [re.sub(r'\bv28\b', 'v53', l) for l in fft_consts()]
    KPRE = opt('KPRE', 40)
    for l in K[:KPRE]: a.e(l)
    K = K[KPRE:]
    KS = [int(x) for x in os.environ.get('KS', '0,1,2,3,4,5,6,7').split(',')]
    kper = -(-len(K) // len(KS))
    for c in range(LB + 1):
        ns = [vm.cnt(t) for t in ([('w', c)] if c < LB else [('w', 13)]) + ([('x', c // 2)] if c % 2 == 0 and c <= 12 else [])]
        ns = [n for n in ns if n is not None]
        a.e('s_waitcnt lgkmcnt(0)' + (f' vmcnt({min(ns)})' if ns else ''))
        if c == 0: m2(a, 1, 1)
        a.e('s_barrier')
        if c == 0: m2(a, 2, 1)
        if c == 8: fft_setup(a)
        work = []
        for it in ITEMS:
            if WHEN[it] == c: work += item(it)
        if c == LB: work = [f's_mov_b32 s76, 0\nv_mov_b32 v30, {RCNT}\nds_read_b32 v17, v30 offset:4'] + work
        if c in KS: work += K[KS.index(c)*kper:(KS.index(c)+1)*kper]
        for w in work: emit(a, w)
        if c == 5: m2(a, 1, 4)
    m2(a, 2, 4)
    m2(a, 3, 1)
    for c in range(LB + 1, LB + 1 + HK): HOOK.setdefault(0 if c == LB + 1 else opt('HP2', 4), []).append(c)
    fft_body(a, vm)
    a.e('s_cmp_lg_u32 s76, 0\ns_cbranch_scc1 fft_end')
    a.e('s_branch gemm2h')
    vm = VM(a)
    for c in range(LB + 1, LB + 1 + HK):
        a.label(f'hk{c}'); a.fence()
        a.e('s_mov_b32 s77, 400000')
        a.label(f'hk{c}_sp'); a.fence()
        a.e(f'''
        ds_read_b32 v31, v30 offset:{4*c}
        s_waitcnt lgkmcnt(0)
        v_readfirstlane_b32 s73, v31
        s_sub_u32 s77, s77, 1
        s_cbranch_scc1 hk{c}_go
        s_cmp_lt_u32 s73, 4
        s_cbranch_scc1 hk{c}_sp
        ''')
        a.label(f'hk{c}_go'); a.fence()
        for it in ITEMS:
            if WHEN[it] == c:
                for f in item(it): f()
        a.e(f's_branch hk{c}_ret')
    a.label('fd_slow'); a.fence()
    a.e('s_waitcnt vmcnt(0)\nds_write_b32 v8, v9\ns_cmp_lg_u32 s64, 0\ns_cbranch_scc1 fd_w')
    poll1(a, 'fd', 17, 18, opt('WSLP', 4), val=32, first=True)
    a.e(f'v_mov_b32 v18, {RCNT}\nds_write_b32 v18, v9 offset:4\ns_branch fd_go')
    a.label('fd_w'); a.fence()
    lds_spin(a, 'fd_sp', RCNT + 4, va=18, vd=17, slp=1)
    a.e('s_branch fd_go')
    a.label('fft_end'); a.fence()
    a.e(f'v_mov_b32 v30, 1\ns_waitcnt vmcnt(0)\nbuffer_store_dword v30, v28, s[40:43], 0 offen{SS}')
    endpgm(a, 0, 22)
    emit_stubs(a)

WIMG = 57344
SSCR = WIMG + 65536
def dft(a):
    a.label('dft_wg'); a.fence()
    vm = VM(a)
    RAW, PM = 32, 16
    FPRE = opt('FPRE', 5); assert FPRE <= 5
    def FR(par, qq): return 176 + 8*(qq % (FPRE + 1)) + 4*par
    AC = 64
    WS_ = 64
    a.e(f'''
    s_sub_u32 s57, s57, 28
    s_lshr_b32 s59, s56, 1
    s_lshl_b32 s59, s59, 1
    s_and_b32 s65, s56, 1
    s_lshl_b32 s65, s65, 3
    s_add_u32 s59, s59, s65
    s_lshr_b32 s65, s57, 1
    s_add_u32 s59, s59, s65              ; g
    s_and_b32 s58, s57, 1                ; hf
    s_lshl_b32 s60, s56, 2
    s_add_u32 s60, s60, s57              ; di
    s_lshl_b32 s65, s59, 3
    s_and_b32 s66, s3, 6
    s_add_u32 s65, s65, s66
    s_add_u32 s65, s65, s58
    s_mul_i32 s65, s65, {16*896}
    s_and_b32 s66, s3, 1
    s_cmp_eq_u32 s66, 1
    s_cselect_b64 vcc, -1, 0
    v_cndmask_b32 v12, v12, v13, vcc
    s_lshl_b32 s71, s3, 10
    v_lshrrev_b32 v3, 5, v0              ; h
    v_and_b32 v1, 31, v0                 ; l31
    s_cmp_eq_u32 s3, 7
    s_waitcnt lgkmcnt(0)
    s_cbranch_scc1 l1_clr
    ''')
    a.label('l1_ret')
    srd(a, 24, 4, 0, SZ_X)
    a.e('s_mov_b32 s73, s65')
    def xdma(vm, u):
        a.e(f's_add_u32 s67, s73, {u*128}\ns_add_u32 m0, s71, {u*8192}')
        vm.issue(f'buffer_load_dwordx4 v12, s[24:27], s67 offen lds', ('x', u))
    for u in range(7): xdma(vm, u)
    srd(a, 44, 22, OFF_Z1, SZ_Z1)
    a.e(f's_mov_b32 s79, {TMO}')
    a.e(f'''
    s_lshl_b32 s83, s59, 9
    s_lshl_b32 s69, s58, 8
    s_add_u32 s83, s83, s69              ; g*512 + hf*256
    ''')
    a.e(f'''
    v_lshlrev_b32 v2, 5, v1
    v_lshl_add_u32 v2, v3, 13, v2
    v_bfe_u32 v6, v0, 3, 1
    v_lshl_add_u32 v2, v6, 4, v2
    v_add_u32 v2, s71, v2
    v_xor_b32 v6, 16, v2
    s_mov_b32 s70, 0x05040100
    s_mov_b32 s71, 0x07060302
    s_cmp_eq_u32 s3, 7
    s_cbranch_scc1 dft_stat
    ''')
    def prep(prs, regs):
        for pr, R in zip(prs, regs):
            if pr == 3: a.e('s_mov_b32 exec_hi, 0')
            a.e(f'ds_read_b128 {q(R)}, v2 offset:{pr*16384}\nds_read_b128 {q(R+4)}, v6 offset:{pr*16384}')
        if 3 in prs: a.e('s_mov_b64 exec, -1')
        for n, (pr, R) in enumerate(zip(prs, regs)):
            a.e(f's_waitcnt lgkmcnt({2*(len(prs) - 1)})')
            for par in range(2):
                for jj in range(4):
                    a.e(f'v_perm_b32 v{R+8+4*par+jj}, v{R+2*jj+1}, v{R+2*jj}, s{70+par}')
            if pr == 3: a.e('s_mov_b32 exec_hi, 0')
            a.e(f'ds_write_b128 v2, {q(R+8)} offset:{pr*16384}\nds_write_b128 v6, {q(R+12)} offset:{pr*16384}')
        if 3 in prs: a.e('s_mov_b64 exec, -1')
        a.e('s_waitcnt lgkmcnt(0)')
    vms = vm.copy()
    a.e(f'''
    v_and_b32 v8, 15, v0
    v_lshlrev_b32 v8, 4, v8              ; l15*16
    v_lshrrev_b32 v9, 4, v0              ; 2h + b16
    v_mul_u32_u24 v10, {ZS1}, v9
    v_add_u32 v10, v10, v8
    v_sub_u32 v11, 3, v9
    v_mul_u32_u24 v11, {ZS1}, v11
    v_add_u32 v11, v11, v8
    s_lshl_b32 s65, s3, 4                ; 16 i
    s_mul_i32 s84, s65, {ZS1}
    s_add_u32 s84, s84, s83
    s_sub_u32 s66, 221, s65
    s_mul_i32 s66, s66, {ZS1}
    s_add_u32 s86, s66, s83
    v_add_u32 v13, s66, v11
    v_add_u32 v8, {112*ZS1}, v8
    s_cmp_eq_u32 s3, 0
    s_cselect_b32 s80, -1, 0
    s_mov_b32 s81, 0                     ; s[80:81]: wave 0, h = 0
    s_cselect_b32 s66, 16, 0
    v_cmp_gt_u32 vcc, s66, v0
    v_cndmask_b32 v13, v13, v8, vcc
    ''')
    def z1st(kind, n, r, tag):
        if kind == 0:
            a.e(f's_add_u32 s67, s84, {4*n*ZS1}')
            vm.issue(f'buffer_store_dwordx4 {q(r)}, v10, s[44:47], s67 offen{SS}', tag)
        elif n == 0:
            vm.issue(f'buffer_store_dwordx4 {q(r)}, v13, s[44:47], s83 offen{SS}', tag)
        else:
            a.e(f's_sub_u32 s67, s86, {4*n*ZS1}')
            vm.issue(f'buffer_store_dwordx4 {q(r)}, v11, s[44:47], s67 offen{SS}', tag)
    a.e(f'''
    v_lshrrev_b32 v8, 1, v1
    v_add_u32 v8, s65, v8                ; p
    v_and_b32 v9, 1, v1
    v_cvt_f32_u32 v14, v9
    v_mul_f32 v14, 0x3e800000, v14       ; phase O
    v_cmp_eq_u32 vcc, 1, v1
    s_cmp_eq_u32 s3, 0
    s_cselect_b64 vcc, vcc, 0
    v_mov_b32 v9, 112
    v_cndmask_b32 v8, v8, v9, vcc
    v_cndmask_b32 v15, v14, 0, vcc       ; phase E
    v_cvt_f32_u32 v8, v8
    v_mul_f32 v8, {fh(1/448)}, v8        ; p/448
    v_mul_f32 v9, {fh(32.0)}, v8
    v_cos_f32 v4, v9
    v_add_f32 v4, v4, v4
    v_lshlrev_b32 v16, 4, v3
    v_cvt_f32_u32 v16, v16             ; 16 h
    v_fma_f32 v15, v16, v8, v15         ; arg E (j=0,q=0)
    v_fma_f32 v14, v16, v8, v14
    v_add_f32 v14, v14, v8               ; arg O
    v_add_f32 v16, v8, v8               ; 2 step
    s_mov_b32 s87, 0x05040100
    s_mov_b32 s78, 0x07060302
    ''')
    P0, P1 = 144, 160
    for par in range(2):
        ar = 15 - par
        for j in range(8):
            a.e(f'''
            v_sub_f32 v17, v{ar}, v9
            v_cos_f32 v{P0+8*par+j}, v{ar}
            v_cos_f32 v{P1+8*par+j}, v17
            v_add_f32 v{ar}, v{ar}, v16
            ''')
    a.e('v_mov_b32 v5, v4')
    def fgen(qq):
        cur, prv = (P0, P1) if qq % 2 == 0 else (P1, P0)
        L = []
        for par in range(2):
            for jj in range(4):
                L.append(f'v_cvt_pk_bf16_f32 v{FR(par, qq)+jj}, v{cur+8*par+2*jj}, v{cur+8*par+2*jj+1}')
        if qq < 13:
            if opt('PKF', 0):
                for r in range(0, 16, 2):
                    L.append(f'v_pk_fma_f32 {d2(prv+r)}, v[4:5], {d2(cur+r)}, {d2(prv+r)} neg_lo:[0,0,1] neg_hi:[0,0,1]')
            else:
                for r in range(16):
                    L.append(f'v_fma_f32 v{prv+r}, v4, v{cur+r}, -v{prv+r}')
        return L
    for qq in range(FPRE):
        for l in fgen(qq): a.e(l)
    a.e(f'''
    v_bfe_u32 v9, v0, 1, 3
    v_lshlrev_b32 v8, 1, v3
    v_xor_b32 v9, v9, v8
    v_lshlrev_b32 v9, 4, v9
    v_lshl_add_u32 v8, v1, 7, v9
    v_xor_b32 v9, 16, v8
    v_xor_b32 v14, 64, v8
    v_xor_b32 v15, 80, v8
    ''')
    m2(a, 1, 3)
    vm.wait(('x', 1))
    prep([0], [16])
    m2(a, 1, 1)
    a.e('s_barrier')
    m2(a, 2, 1)
    def rd(qq):
        b = RAW + 16 * (qq & 1)
        base = (8, 9) if qq % 2 == 0 else (14, 15)
        return [f'ds_read_b128 {q(b+8*tau+4*e)}, v{base[e]} offset:{(qq>>1)*8192 + tau*4096}' for tau in range(2) for e in range(2)]
    for l in rd(0): a.e(l)
    JR = 128
    for qq in range(14):
        b = RAW + 16 * (qq & 1)
        nxt = rd(qq+1) if qq < 13 else []
        a.e('s_waitcnt lgkmcnt(0)')
        if qq == 3:
            m2(a, 2, 3)
            vm.wait(('x', 6))
            prep([1, 2, 3], [16, 128, 240])
            a.e('s_barrier')
            m2(a, 3, 3)
        if qq == 5: m2(a, 1, 2)
        if qq == 10: m2(a, 4, 2)
        if qq == 12: m2(a, 1, 4)
        if qq == 7: m2(a, 2, 2)
        for l in nxt: a.e(l)
        G = fgen(qq + FPRE) if qq + FPRE < 14 else []
        def ge(l): vm.issue(l, 'wt') if l.startswith('buffer') else a.e(l)
        ng = (len(G) + 3) // 4
        for tau in range(2):
            for par in range(2):
                d = AC + 16*(2*par + tau)
                a.e(f'v_mfma_f32_32x32x16_bf16 v[{d}:{d+15}], {q(FR(par, qq))}, {q(b+8*tau+4*par)}, ' + ('0' if qq == 0 else f'v[{d}:{d+15}]'))
                for l in G[:ng]: ge(l)
                G = G[ng:]
        assert not G
    m2(a, 3, 1)
    a.e(f'''
    v_lshlrev_b32 v8, 3, v1
    v_add_u32 v8, {SSCR + 512}, v8
    ''')
    m2(a, 2, 4)
    a.e(f'v_mov_b32 v9, {RCNT}\ns_mov_b32 s77, 400000')
    a.label('df_sp'); a.fence()
    a.e(f'''
    ds_read_b32 v20, v9
    ds_read_b64 v[16:17], v8
    ds_read_b64 v[18:19], v8 offset:256
    s_waitcnt lgkmcnt(0)
    v_readfirstlane_b32 s67, v20
    s_sub_u32 s77, s77, 1
    s_cbranch_scc1 df_spok
    s_cmp_eq_u32 s67, 0
    s_cbranch_scc1 df_sp
    ''')
    a.label('df_spok'); a.fence()
    m2(a, 3, 4)
    m2(a, 4, 3)
    for n in range(4):
        LO = 144 + 8*n; HI = LO + 4
        for e in range(2):
            aa = 2*n + e
            for tau in range(2):
                E = AC + 16*tau + 2*aa; O = AC + 32 + 16*tau + 2*aa; r = 16 + 2*tau
                t = 20 + 6*tau
                a.e(f'''
                v_mul_f32 v{O}, v{O}, v{r}
                v_mul_f32 v{O+1}, v{O+1}, v{r}
                v_fma_f32 v{t}, v{E}, v{r}, v{O}
                v_fma_f32 v{t+1}, v{E+1}, v{r}, v{O+1}
                v_fma_f32 v{t+2}, v{E}, v{r}, -v{O}
                v_fma_f32 v{t+3}, -v{E+1}, v{r}, v{O+1}
                ''')
                if aa == 0:
                    a.e(f'''
                    v_mul_f32 v{t+4}, v{E+1}, v{r}
                    v_sub_f32 v{t+5}, v{t}, v{r+1}
                    v_cndmask_b32 v{t}, v{t}, v{t+5}, s[80:81]
                    v_cndmask_b32 v{t+1}, v{t+1}, v{t+2}, s[80:81]
                    v_cndmask_b32 v{t+2}, v{t+2}, v{t+4}, s[80:81]
                    v_cndmask_b32 v{t+3}, v{t+3}, v{O+1}, s[80:81]
                    ''')
                a.e(f'''
                v_cvt_pk_bf16_f32 v{LO+2*tau+e}, v{t}, v{t+1}
                v_cvt_pk_bf16_f32 v{HI+2*tau+e}, v{t+2}, v{t+3}
                ''')
        for r in (LO, LO+2, HI, HI+2):
            a.e(f'v_permlane16_swap_b32 v{r}, v{r+1}')
        z1st(0, n, LO, 'z1'); z1st(1, n, HI, 'z1')
    m2(a, 4, 1)
    a.e('s_waitcnt vmcnt(0)\ns_barrier')
    m2(a, 4, 4)
    a.label('dft_tail'); a.fence()
    a.e('s_cmp_lg_u32 s2, 0\ns_cbranch_scc1 dft_end\ns_cmp_lt_u32 s3, 4\ns_cbranch_scc1 dft_end')
    vm = VM(a)
    for l in fft_consts(): a.e(l)
    a.e(f's_mov_b32 s62, 0\ns_mov_b32 s63, 224\ns_mov_b32 s76, 1\nv_mov_b32 v29, 0\nv_mov_b32 v17, 0')
    fft_setup(a)
    a.e('s_branch fft_body')
    a.label('dft_end'); a.fence()
    if opt('WPF', 1):
        srd(a, 28, 16, 0, SZ_WG)
        a.e(f'''
        v_mul_u32_u24 v8, 896, v1
        s_and_b32 s65, s60, 3
        s_mul_i32 s65, s65, {224*896}
        s_lshl_b32 s66, s3, 7
        s_add_u32 s65, s65, s66
        s_cmp_eq_u32 s3, 7
        s_cselect_b32 s65, 0x40000000, s65
        ''')
        for n, P in enumerate([4, 5, 6, 9, 10, 11, 12, 13]):
            a.e(f'''
            s_add_u32 s66, s3, {P % 7}
            s_cmp_ge_u32 s66, 7
            s_cselect_b32 s67, 7, 0
            s_sub_u32 s66, s66, s67
            s_mul_i32 s66, s66, 28672
            s_add_u32 s66, s66, s65
            s_add_u32 s66, s66, {(P // 7) * 4 * 224 * 896}
            buffer_load_dword v{16+n}, v8, s[28:31], s66 offen
            ''')
        a.e('s_waitcnt vmcnt(0)')
    endpgm(a, 0, 22)
    a.label('l1_clr'); a.fence()
    assert OFF_FL == OFF_ST + SZ_ST and SZ_FL <= 24*3072
    srd(a, 48, 22, OFF_ST, SZ_ST + SZ_FL)
    a.e(f'''
    v_lshlrev_b32 v24, 4, v0
    s_lshl_b32 s80, s60, 11
    s_add_u32 s67, s80, 2048
    s_mul_i32 s81, s60, 3072
    s_sub_u32 s81, s81, {8*3072 - SZ_ST}
    s_cmp_lt_u32 s60, 8
    s_cselect_b32 s80, s80, s81
    s_cselect_b32 s50, s67, s50
    s_cselect_b32 s67, -1, 0
    ''')
    for i in range(4): a.e(f'v_mov_b32 v{16+i}, s67')
    for i in range(3): a.e(f'buffer_store_dwordx4 {q(16)}, v24, s[48:51], s80 offen offset:{i*1024}{SS}')
    a.e('s_branch l1_ret')
    a.label('dft_stat'); a.fence()
    vm = vms
    srd(a, 52, 22, OFF_ST, SZ_ST)
    dbg_srd(a)
    fl_srd(a, 36)
    a.e(f'''
    v_lshlrev_b32 v4, 2, v0
    v_lshlrev_b32 v23, 20, v0
    v_mov_b32 v22, 1
    ''')
    a.e(f'''
    v_add_u32 v30, {XCNT}, v4
    v_mov_b32 v31, 0
    ds_write_b32 v30, v31
    v_and_b32 v8, 15, v0                 ; n
    v_lshrrev_b32 v9, 4, v0              ; q4
    v_bfe_u32 v10, v0, 1, 3              ; f
    v_xor_b32 v10, v10, v9
    v_lshlrev_b32 v10, 4, v10
    v_lshl_add_u32 v10, v8, 7, v10       ; kk = 0
    v_xor_b32 v11, 64, v10               ; kk = 1
    v_mov_b32 v144, 0x3f803f80
    v_mov_b32 v145, 0x3f803f80
    v_mov_b32 v146, 0x3f803f80
    v_mov_b32 v147, 0x3f803f80
    v_lshlrev_b32 v8, 3, v8
    v_add_u32 v8, {SSCR}, v8
    v_lshlrev_b32 v9, 3, v0
    v_add_u32 v9, {SSCR}, v9
    v_and_b32 v13, 3, v0
    v_cmp_eq_u32 s[68:69], 1, v13
    v_cmp_eq_u32 s[86:87], 2, v13
    v_cmp_eq_u32 s[74:75], 3, v13
    s_mov_b32 s85, 0xffff0000
    s_waitcnt vmcnt(7)
    ''')
    vm.issue('buffer_atomic_add v22, v23, s[40:43], 0 offen sc1', 'l1s')
    m2(a, 1, 5)
    m2(a, 2, 5)
    vm.wait(('x', 1))
    a.e('s_waitcnt lgkmcnt(0)')
    prep([0], [96])
    m2(a, 1, 1)
    a.e('s_barrier')
    m2(a, 2, 1)
    a.e('s_setprio 2')
    QA, SA, RB = 160, 176, 32
    def srd_(u):
        b = RB + 32 * (u & 1)
        return [f'ds_read_b128 {q(b+16*kk+4*tt)}, v{10+kk} offset:{u*8192 + tt*2048}' for kk in range(2) for tt in range(4)]
    for l in srd_(0): a.e(l)
    for u in range(7):
        b = RB + 32 * (u & 1)
        a.e('s_waitcnt lgkmcnt(0)')
        if u == 1:
            vm.wait(('x', 6))
            prep([1, 2, 3], [96, 112, 128])
            a.e('s_barrier')
            l1_issue(vm, 24, 23)
        if u < 6:
            for l in srd_(u+1): a.e(l)
        for kk in range(2):
            for tt in range(4):
                r = b + 16*kk + 4*tt; first = (u == 0 and kk == 0)
                a.e(f'v_mfma_f32_16x16x32_bf16 {q(QA+4*tt)}, {q(r)}, {q(r)}, ' + ('0' if first else q(QA+4*tt)))
                a.e(f'v_mfma_f32_16x16x32_bf16 {q(SA+4*tt)}, {q(144)}, {q(r)}, ' + ('0' if first else q(SA+4*tt)))
    for tt in range(4):
        a.e(f'''
        v_cndmask_b32 v{SA+4*tt+1}, v{QA+4*tt}, v{QA+4*tt+1}, s[68:69]
        v_cndmask_b32 v{SA+4*tt+1}, v{SA+4*tt+1}, v{QA+4*tt+2}, s[86:87]
        v_cndmask_b32 v{SA+4*tt+1}, v{SA+4*tt+1}, v{QA+4*tt+3}, s[74:75]
        ''')
    a.e('s_mov_b32 exec_lo, 0x00f0000f\ns_mov_b32 exec_hi, 0xf0000f00')
    for tt in range(4):
        a.e(f'ds_write_b64 v8, {d2(SA+4*tt)} offset:{tt*128}')
    a.e(f'''
    s_mov_b64 exec, -1
    s_mov_b32 s84, {fh(1.0/448)}
    s_waitcnt lgkmcnt(0)
    ds_read_b64 v[16:17], v9
    s_waitcnt lgkmcnt(0)
    ''')
    for st in STAT_STEPS[:6]: a.e(st.format(m=16, v=17, t=18))
    a.e('v_cvt_pk_bf16_f32 v20, -v16, -v16')
    for st in STAT_STEPS[6:]: a.e(st.format(m=16, v=17, t=18))
    a.e(f'''
    v_mul_f32 v21, v17, v17
    v_mov_b32 v18, v17
    v_mul_f32 v19, {fh(448.0)}, v16
    s_add_u32 s84, s83, 8192
    ''')
    m2(a, 1, 2)
    a.e(f'''
    ds_write_b64 v9, v[18:19] offset:512
    v_mov_b32 v30, {RCNT}
    s_waitcnt lgkmcnt(0)
    ds_write_b32 v30, v22
    ''')
    vm.wait('l1')
    l1_check(a, 'dfs', 24, 23)
    vm.issue(f'buffer_store_dword v20, v4, s[52:55], s83 offen{SS}', 'st')
    vm.issue(f'buffer_store_dword v21, v4, s[52:55], s84 offen{SS}', 'st')
    a.e('s_setprio 0')
    m2(a, 3, 1)
    m2(a, 3, 2)
    a.e(f'''
    v_lshlrev_b32 v14, 7, v0
    s_lshl_b32 s67, s60, 2
    s_waitcnt vmcnt(0)
    ''')
    m2(a, 4, 1)
    a.e(f'''
    s_barrier
    buffer_atomic_add v22, v14, s[36:39], 0 offen sc1
    s_branch dft_tail
    ''')

def gen_v2(a, name):
    a.raw('.p2align 8')
    a.label(name)
    a.e(f'''
    s_cmp_ge_u32 s2, 256
    s_cbranch_scc1 f_end
    ''')
    diag_start(a)
    a.e(f'''
    s_load_dwordx16 s[4:19], s[0:1], 0
    s_load_dwordx4 s[20:23], s[0:1], 64
    ''')
    if opt('IPF', 1):
        a.raw('  s_getpc_b64 s[86:87]')
        a.raw('pc0:')
        a.raw('  v_lshlrev_b32 v252, 7, v0')
        a.raw('  v_min_u32 v252, f_end-pc0, v252')
        a.raw('  v_mov_b32 v253, s87')
        a.raw('  v_add_co_u32 v252, vcc, s86, v252')
        a.raw('  v_addc_co_u32 v253, vcc, 0, v253, vcc')
        a.raw('  global_load_dword v255, v[252:253], off')
    a.e(f'''
    v_lshrrev_b32 v1, 6, v0
    v_and_b32 v0, 63, v0
    v_readfirstlane_b32 s3, v1
    v_lshrrev_b32 v3, 3, v0              ; r
    v_and_b32 v4, 7, v0                  ; a
    v_lshrrev_b32 v5, 4, v0              ; r>>1
    v_xor_b32 v4, v4, v5
    v_mul_u32_u24 v12, 896, v3
    v_lshl_add_u32 v12, v4, 4, v12
    v_xor_b32 v13, 64, v12
    v_add_u32 v13, {8*896}, v13
    s_and_b32 s56, s2, 7
    s_lshr_b32 s57, s2, 3
    s_add_u32 s57, s57, 28
    s_and_b32 s57, s57, 31
    s_and_b32 s64, s3, 3
    s_cmp_ge_u32 s57, 28
    s_cbranch_scc1 dft_wg
    s_lshr_b32 s65, s56, 1
    s_mul_i32 s65, s65, 28
    s_add_u32 s65, s65, s57
    s_lshr_b32 s58, s65, 3               ; ct
    s_and_b32 s59, s65, 7
    s_and_b32 s65, s56, 1
    s_lshl_b32 s65, s65, 3
    s_add_u32 s59, s59, s65              ; rb
    ''')
    if opt('LOC', 0): a.e('''
    s_lshr_b32 s58, s57, 1
    s_and_b32 s59, s57, 1
    s_lshl_b32 s65, s56, 1
    s_add_u32 s59, s59, s65
    ''')
    a.e(f'''
    s_mul_i32 s60, s57, 37
    s_lshr_b32 s60, s60, 8               ; j/7
    s_mul_i32 s61, s60, 7
    s_sub_u32 s61, s57, s61              ; dt64
    s_lshl_b32 s65, s56, 2
    s_add_u32 s60, s60, s65              ; st64
    s_mul_i32 s62, s56, 28
    s_add_u32 s62, s62, s57              ; p
    s_mov_b32 s63, s62
    ''')
    gu(a)
    gemm2(a)
    dft(a)
    a.label('f_end')
    a.e('s_endpgm')
```

```python
from dsl import *
from c2 import *
import fused
from fused import VM, q, d2, m2, fft_consts, STAT_STEPS
from fused import C64R, C64I, C32R, C32I, TW1, TW2, XA, WV, DR, DI, ER, EI, PK, WU

SS = {0: ' sc0 sc1', 1: ' sc1', 2: ' sc0 sc1 nt', 3: ' sc1 nt'}[int(os.environ.get('SSM', '0'))]
MISC = 9 * 16384
XCH = MISC
XCNT = MISC + 8192
FLG = MISC + 8192 + 64
TMO = 20000
def acc(i, t): return 128 + 16 * (i * 4 + t)
def opt(name, dflt): return int(os.environ.get(name, str(dflt)))

ITEMS = []
for u in range(7): ITEMS += [('x', u), ('w', 2*u), ('w', 2*u+1)]
ITEMS += [('a', i) for i in range(4)] + [('b', i) for i in range(4)]
def schedule():
    la = opt('LA', 2)
    pre = opt('PRE', 5)
    free = list(range(9)); slot = {}; when = {}
    n = 0
    for _ in range(pre):
        slot[ITEMS[n]] = free.pop(0); when[ITEMS[n]] = -1; n += 1
    for c in range(15):
        if c >= 1: free.append(slot[('w', c-1)])
        if c >= 2 and c % 2 == 0: free.append(slot[('x', c//2 - 1)])
        k = 0
        while n < len(ITEMS) and free and (k < la or c == 14):
            slot[ITEMS[n]] = free.pop(0); when[ITEMS[n]] = c; n += 1; k += 1
    assert n == len(ITEMS)
    return slot, when
FFT_ISSUE = opt('FFT_ISSUE', 11)
LB = opt('LB', 11)
SLOT, WHEN = schedule()
assert all(WHEN[('a', i)] <= LB for i in range(4)), WHEN
RCNT = XCNT + 128
HOOK = {}

NOCLR = opt('NOCLR', 0)
HSS = '' if opt('FAST', 0) else SS
HPL = ' nt' if opt('FAST', 0) == 1 else ' sc1'
HS = ['', ' sc1', ' nt'][opt('HSM', 0)]
_iss = VM.issue
def _issue(self, text, tag):
    if tag in ('clr', 'cla') and NOCLR: return
    _iss(self, text, tag)
VM.issue = _issue
_cnt = VM.cnt
def _cnt2(self, tag):
    if tag not in self.ops: return None
    return _cnt(self, tag)
VM.cnt = _cnt2
def dbg_srd(a, d=40): srd(a, d, 20, 0, 256)
def fl_srd(a, d): srd(a, d, 22, OFF_FL, SZ_FL)
def poll1(a, tag, vd, va, slp, R=40, first=False, sc=' sc1', val=1):
    a.e(f's_mov_b32 s77, {TMO}')
    if first: a.e(f's_branch {tag}_ld')
    a.label(f'{tag}_pl'); a.fence()
    a.e(f'''
    v_cmp_ne_u32 vcc, {val}, v{vd}
    s_nop 1
    s_cbranch_vccz {tag}_ok
    s_sub_u32 s77, s77, 1
    s_cbranch_scc1 {tag}_ok
    s_sub_u32 s79, s79, {1 if DIAG else 0}
    s_sleep {slp}
    ''')
    a.label(f'{tag}_ld'); a.fence()
    a.e(f'''
    buffer_load_dword v{vd}, v{va}, s[{R}:{R+3}], 0 offen{sc}
    s_waitcnt vmcnt(0)
    s_branch {tag}_pl
    ''')
    a.label(f'{tag}_ok'); a.fence()
FPL = '' if opt('CPLAIN', 1) else ' sc1'
def l1_issue(vm, vd, vz, sc=FPL):
    vm.issue(f'buffer_load_dword v{vd}, v{vz}, s[40:43], 0 offen{sc}', 'l1')
def l1_check(a, tag, vd, vz, slp=8, sr=80):
    a.e(f's_mov_b32 s77, {TMO}')
    a.label(f'{tag}_l1'); a.fence()
    a.e(f'''
    v_readfirstlane_b32 s{sr}, v{vd}
    s_cmp_eq_u32 s{sr}, 32
    s_cbranch_scc1 {tag}_l1ok
    s_sub_u32 s77, s77, 1
    s_cbranch_scc1 {tag}_l1ok
    s_sleep {slp}
    buffer_load_dword v{vd}, v{vz}, s[40:43], 0 offen sc1
    s_waitcnt vmcnt(0)
    s_branch {tag}_l1
    ''')
    a.label(f'{tag}_l1ok'); a.fence()
def fl_loads(vd, va, R, offs, sc):
    return [f'buffer_load_dwordx4 {q(vd+4*i)}, v{va}, s[{R}:{R+3}], 0 offen offset:{o}{sc}' for i, o in enumerate(offs)]
def fl_check(a, tag, vd, va, R, offs, ves, slp=8, alt=None, sr=80):
    a.e(f's_mov_b32 s77, {TMO}')
    a.label(f'{tag}_fl'); a.fence()
    for i in range(len(offs)):
        a.e(f'v_and_b32 v{vd+4*i}, v{vd+4*i}, v{vd+4*i+2}')
        a.e(f'v_cmp_ne_u32 ' + ('vcc' if i == 0 else f's[{sr}:{sr+1}]') + f', {ves[i]}, v{vd+4*i}')
        if i: a.e(f's_or_b64 vcc, vcc, s[{sr}:{sr+1}]')
    a.e(f'''
    s_nop 1
    s_cbranch_vccz {tag}_flok
    s_sub_u32 s77, s77, 1
    s_cbranch_scc1 {tag}_flok
    s_sleep {slp}
    ''')
    if alt:
        a.e(f's_add_u32 s{sr}, s77, {alt}\ns_and_b32 s{sr}, s{sr}, 7\ns_cmp_eq_u32 s{sr}, 0\ns_cbranch_scc1 {tag}_fs')
        for l in fl_loads(vd, va, R, offs, ''): a.e(l)
        a.e(f's_waitcnt vmcnt(0)\ns_branch {tag}_fl')
        a.label(f'{tag}_fs'); a.fence()
    for l in fl_loads(vd, va, R, offs, ' sc1'): a.e(l)
    a.e(f's_waitcnt vmcnt(0)\ns_branch {tag}_fl')
    a.label(f'{tag}_flok'); a.fence()

def maxchain(regs, t0, t1):
    L = []; regs = list(regs)
    h = (len(regs) + 1) // 2
    for t, rs in ((t0, regs[:h]), (t1, regs[h:])):
        rs = list(rs)
        if len(rs) == 1: L.append(f'v_mov_b32 v{t}, v{rs[0]}'); continue
        if len(rs) == 2: L.append(f'v_max_u32 v{t}, v{rs[0]}, v{rs[1]}'); continue
        L.append(f'v_max3_u32 v{t}, v{rs[0]}, v{rs[1]}, v{rs[2]}'); rs = rs[3:]
        while len(rs) >= 2:
            L.append(f'v_max3_u32 v{t}, v{t}, v{rs[0]}, v{rs[1]}'); rs = rs[2:]
        if rs: L.append(f'v_max_u32 v{t}, v{t}, v{rs[0]}')
    L.append(f'v_max_u32 v{t0}, v{t0}, v{t1}')
    return L

STUBS = []
def check(a, tag, regs, t0, t1, reissue, nwait=0):
    a.label(f'{tag}_chk')
    for l in maxchain(regs, t0, t1): a.e(l)
    a.e(f'''
    v_cmp_eq_u32 vcc, -1, v{t0}
    s_nop 1
    s_cbranch_vccnz {tag}_stub
    ''')
    a.label(f'{tag}_ok')
    STUBS.append((tag, reissue, nwait))
def emit_stubs(a):
    for tag, reissue, nwait in STUBS:
        a.label(f'{tag}_stub'); a.fence()
        a.e(f'''
        s_cmp_eq_u32 s79, 0
        s_cbranch_scc1 {tag}_ok
        s_sub_u32 s79, s79, 1
        s_sleep {opt('RSLEEP', 6)}
        ''')
        for l in reissue: a.e(l)
        a.e(f's_waitcnt vmcnt({nwait})\ns_branch {tag}_chk')
    STUBS.clear()

def fft_loads():
    return [f'buffer_load_dwordx4 {q(XA+16*t+4*u)}, v6, s[44:47], s{69+(u>>1)} offen offset:{(u&1)*2048 + t*256}' for u in range(4) for t in range(2)]
def fd_addr(a, v, t0, t1):
    a.e(f'''
    s_and_b32 s{t0}, s63, 63
    s_lshl_b32 s{t0}, s{t0}, 7
    v_mov_b32 v{v}, s{t0}
    s_and_b32 s{t0}, s63, 3
    s_lshl_b32 s{t0}, s{t0}, 7
    s_add_u32 s{t0}, s{t0}, {FW}
    s_lshr_b32 s{t1}, s63, 5
    s_lshl_b32 s{t1}, s{t1}, 9
    s_add_u32 s{t1}, s{t1}, s{t0}
    v_writelane_b32 v{v}, s{t1}, 1
    s_add_u32 s{t1}, s63, 1
    s_lshr_b32 s{t1}, s{t1}, 5
    s_lshl_b32 s{t1}, s{t1}, 9
    s_add_u32 s{t1}, s{t1}, s{t0}
    s_add_u32 s{t1}, s{t1}, 4096
    v_writelane_b32 v{v}, s{t1}, 2
    ''')
def fft_setup(a):
    srd(a, 44, 22, OFF_Z1, SZ_Z1)
    srd(a, 48, 22, OFF_WT, SZ_WT)
    fl_srd(a, 40)
    a.e(f'''
    v_and_b32 v1, 15, v0                 ; l15
    v_lshrrev_b32 v2, 4, v0              ; q
    v_lshlrev_b32 v3, 4, v0              ; lane*16
    s_mul_i32 s69, s62, {ZS1}
    s_add_u32 s70, s69, 4096
    v_and_b32 v5, 1, v0
    v_lshlrev_b32 v5, 7, v5
    v_lshrrev_b32 v6, 1, v1
    v_lshl_add_u32 v5, v6, 4, v5
    v_lshl_add_u32 v5, v2, 10, v5        ; q*1024 + par*128 + (l15>>1)*16
    v_lshlrev_b32 v6, 4, v1
    v_lshl_add_u32 v6, v2, 9, v6         ; q*512 + l15*16
    s_mul_i32 s71, s63, {WS}
    s_lshl_b32 s72, s64, 8
    s_add_u32 s71, s71, s72
    s_add_u32 s71, s71, {WS}
    s_add_u32 s72, s71, 4096
    ''')
    fd_addr(a, 18, 65, 68)
    a.e(f'''
    s_lshl_b32 s65, s64, 13
    s_lshl_b32 s68, s63, 2
    s_add_u32 s65, s65, s68
    s_add_u32 s65, s65, {FZ}
    v_lshlrev_b32 v28, 10, v0
    v_add_u32 v28, s65, v28
    v_mov_b32 v19, 0x40000000
    v_cmp_gt_u32 vcc, 8, v0
    v_cndmask_b32 v28, v19, v28, vcc
    ''')
def fft_issue(a, vm):
    for l in fft_loads(): vm.issue(l, 'xa')
def wt_issue(a, vm):
    for tm in range(2):
        vm.issue(f'buffer_load_dwordx4 {q(WV+4*tm)}, v5, s[48:51], s{71+tm} offen', 'wv')

def fft_body(a, vm):
    a.label('fft_body'); a.fence()
    a.e(f'''
    s_lshl_b32 s65, s64, 2
    s_add_u32 s65, s65, {FLG}
    v_mov_b32 v8, s65
    v_mov_b32 v9, 1
    ''')
    def hook(pos):
        for c in HOOK.get(pos, []):
            a.e(f's_cmp_eq_u32 s76, 0\ns_cbranch_scc1 hk{c}')
            a.label(f'hk{c}_ret')
            for it in ITEMS:
                if WHEN[it] == c:
                    for _ in range(4): vm.note(it)
    m2(a, 3, 4)
    a.e('''
    s_waitcnt lgkmcnt(0)
    v_readfirstlane_b32 s73, v17
    s_cmp_eq_u32 s73, 0
    s_cbranch_scc1 fd_slow
    ''')
    a.label('fd_go'); a.fence()
    m2(a, 4, 4)
    fft_issue(a, vm)
    wt_issue(a, vm)
    a.e('s_waitcnt vmcnt(10)\nds_write_b32 v8, v9')
    hook(0)
    a.e(f's_cmp_eq_u32 s76, 0\ns_cbranch_scc1 w2_x\ns_waitcnt vmcnt(0)')
    a.label('w2_x')
    vm.wait('wv')
    if opt('FPRIO', 0): a.e('s_setprio 3')
    m2(a, 1, 2)
    srd(a, 44, 22, OFF_Z3, SZ_Z3)
    a.e(f's_cmp_lg_u32 s62, 0\ns_cbranch_scc1 fft_nofix')
    a.e(f's_cmp_eq_u32 s63, 224\ns_cselect_b32 s68, 16, 0')
    for r in range(XA, XA+32):
        a.e(f'v_lshrrev_b32 v{r}, s68, v{r}\nv_and_b32 v{r}, 0xffff, v{r}')
    a.e('s_nop 1')
    a.label('fft_nofix'); a.fence()
    def mm(d, A, B, first):
        c = '0' if first else q(d)
        a.e(f'v_mfma_f32_16x16x32_bf16 {q(d)}, {q(A)}, {q(B)}, {c}')
    for u in range(4):
        for t in range(2):
            mm(DR+4*t, XA+16*t+4*u, C64R+4*u, u == 0)
            mm(DI+4*t, XA+16*t+4*u, C64I+4*u, u == 0)
    def twiddle(R, I, TW, out):
        for t in range(2):
            for i in range(4):
                c = TW + 2*(4*t+i); s = c + 1
                r = R + 4*t + i; im = I + 4*t + i
                t0 = 8 + 2*i
                a.e(f'''
                v_mul_f32 v{t0}, v{r}, v{c}
                v_mul_f32 v{t0+1}, v{im}, v{c}
                v_fmac_f32 v{t0}, v{im}, v{s}
                v_fma_f32 v{t0+1}, -v{r}, v{s}, v{t0+1}
                v_cvt_pk_bf16_f32 v{out+4*t+i}, v{t0}, v{t0+1}
                ''')
    hook(1)
    twiddle(DR, DI, TW1, PK)
    hook(2)
    for t in range(2):
        for tm in range(2):
            mm(ER+4*tm, C32R+8*tm+4*t, PK+4*t, t == 0)
            mm(EI+4*tm, C32I+8*tm+4*t, PK+4*t, t == 0)
    hook(3)
    for tm in range(2):
        for i in range(4):
            n = 4*tm + i
            for c in range(2):
                src = WV + 4*tm + 2*c + (i >> 1)
                if i & 1: a.e(f'v_and_b32 v{WU+8*c+n}, 0xffff0000, v{src}')
                else: a.e(f'v_lshlrev_b32 v{WU+8*c+n}, 16, v{src}')
    for tm in range(2):
        for i in range(4):
            n = 4*tm + i
            xr_ = ER + n; xi = EI + n; wr = WU + n; wi = WU + 8 + n
            t0 = 8 + 2*i
            a.e(f'''
            v_mul_f32 v{t0}, v{xr_}, v{wr}
            v_mul_f32 v{t0+1}, v{xr_}, v{wi}
            v_fma_f32 v{t0}, -v{xi}, v{wi}, v{t0}
            v_fmac_f32 v{t0+1}, v{xi}, v{wr}
            v_cvt_pk_bf16_f32 v{PK+n}, v{t0}, -v{t0+1}
            ''')
    hook(4)
    for tm in range(2):
        for tn in range(2):
            mm(DR+4*tn, PK+4*tm, C32R+8*tn+4*tm, tm == 0)
            mm(DI+4*tn, PK+4*tm, C32I+8*tn+4*tm, tm == 0)
    a.e(f'''
    s_lshl_b32 s68, s64, 11
    s_add_u32 s65, s68, {XCH}
    v_add_u32 v16, s65, v3
    v_add_u32 v7, {XCH}, v3
    v_mov_b32 v4, {XCNT}
    v_mov_b32 v5, 1
    ''')
    hook(5)
    twiddle(DR, DI, TW2, PK)
    a.e(f'''
    ds_write_b128 v16, {q(PK)}
    ds_write_b128 v16, {q(PK+4)} offset:1024
    s_waitcnt lgkmcnt(0)
    s_mov_b64 exec, 1
    ds_add_u32 v4, v5
    s_mov_b64 exec, -1
    s_mul_i32 s69, s63, {ZS3}
    s_add_u32 s68, s68, s69
    ''')
    hook(6)
    a.e('s_mov_b32 s77, 400000')
    if opt('FPRIO', 0): a.e('s_setprio 0')
    a.label('fft_sp'); a.fence()
    a.e(f'''
    ds_read_b32 v5, v4
    s_waitcnt lgkmcnt(0)
    v_readfirstlane_b32 s65, v5
    s_sub_u32 s77, s77, 1
    s_cbranch_scc1 fft_spok
    s_cmp_lt_u32 s65, 4
    s_cbranch_scc1 fft_sp
    ''')
    a.label('fft_spok'); a.fence()
    if opt('FPRIO', 0): a.e('s_setprio 3')
    for u in range(4):
        for tn in range(2):
            a.e(f'ds_read_b128 {q(XA+16*tn+4*u)}, v7 offset:{(2*u+tn)*1024}')
    for u in range(4):
        a.e(f's_waitcnt lgkmcnt({6-2*u})')
        for tn in range(2):
            mm(ER+4*tn, C64R+4*u, XA+16*tn+4*u, u == 0)
            mm(EI+4*tn, C64I+4*u, XA+16*tn+4*u, u == 0)
    for n in range(8):
        a.e(f'v_cvt_pk_bf16_f32 v{PK+n}, v{ER+n}, v{EI+n}')
    for tn in range(2):
        vm.issue(f'buffer_store_dwordx4 {q(PK+4*tn)}, v6, s[44:47], s68 offen offset:{tn*256}{SS}', 'z3')
    hook(7)
    if opt('FPRIO', 0): a.e('s_setprio 0')
    m2(a, 2, 2)

ACC2, AF, HR, GF_ = 192, 128, 16, 72
NH = 7
ROT2 = opt('ROT2', 1)
def wd_addr(a, vr, t0, t1):
    a.e(f'''
    v_lshrrev_b32 v{t0}, 3, v0
    v_bfe_u32 v{t1}, v0, 4, 1
    v_lshlrev_b32 v{t1}, 2, v{t1}
    v_and_b32 v{vr}, 7, v0
    v_xor_b32 v{t1}, v{t1}, v{vr}
    v_mul_u32_u24 v{vr}, 896, v{t0}
    v_lshl_add_u32 v{vr}, v{t1}, 4, v{vr}
    ''')

def g_gen(a, mid=None, at=2):
    a.e(f'''
    s_mul_i32 s65, s64, 56
    v_lshlrev_b32 v8, 2, v5
    v_add_u32 v8, s65, v8                ; p0
    v_cmp_eq_u32 s[80:81], 0, v8
    v_cvt_f32_u32 v8, v8
    s_lshl_b32 s75, s61, 6
    v_add_u32 v9, s75, v4                ; d (b=0)
    v_lshlrev_b32 v12, 31, v9
    v_xor_b32 v12, 0.5, v12              ; +-0.5
    v_cvt_f32_u32 v9, v9
    ''')
    for b in range(2):
        if b == at: mid()
        if b: a.e(f'v_add_f32 v9, {fh(32.0)}, v9')
        a.e(f'v_mul_f32 v10, {fh(1/448)}, v9')
        for z in range(7):
            a.e(f'v_add_f32 v11, {fh(8.0*z)}, v8\nv_mul_f32 v11, v11, v10')
            for j in range(4):
                a.e(f'''
                v_cos_f32 v14, v11
                v_sin_f32 v15, v11
                v_add_f32 v11, v11, v10
                ''')
                if z == 0 and j == 0:
                    a.e(f'''
                    v_cndmask_b32 v14, v14, 0.5, s[80:81]
                    v_cndmask_b32 v15, v15, v12, s[80:81]
                    ''')
                a.e(f'v_cvt_pk_bf16_f32 v{GF_+8*z+4*b+j}, v14, v15')
    if at == 2: mid()

HK = opt('HK', 1)
FLG2, FLG3 = 16, 32
def lds_spin(a, tag, addr, off=0, val=1, va=14, vd=15, slp=0):
    a.e(f'v_mov_b32 v{va}, {addr}\ns_mov_b32 s77, 400000')
    if slp: a.e(f's_branch {tag}_1')
    a.label(tag); a.fence()
    if slp: a.e(f's_sleep {slp}'); a.label(f'{tag}_1')
    a.e(f"""
    ds_read_b32 v{vd}, v{va} offset:{off}
    s_waitcnt lgkmcnt(0)
    v_readfirstlane_b32 s73, v{vd}
    s_sub_u32 s77, s77, 1
    s_cbranch_scc1 {tag}_ok
    s_cmp_lt_u32 s73, {val}
    s_cbranch_scc1 {tag}
    """)
    a.label(f'{tag}_ok'); a.fence()

def probe(a, tag, reg):
    if DIAG != 8: return
    a.e('s_mov_b32 s77, 0')
    mark(a, 1)
    a.label(tag); a.fence()
    for i in range(200): a.e(f'v_add_u32 v{reg}, 0x12345, v{reg}')
    a.e('s_mov_b64 s[92:93], s[94:95]')
    mark(a, 3)
    a.e(f's_waitcnt lgkmcnt(0)\ns_add_u32 s77, s77, 1\ns_cmp_lt_u32 s77, 2\ns_cbranch_scc1 {tag}')

def gemm2(a):
    a.label('gemm2'); a.fence()
    vm = VM(a)
    PA = sum(SLOT[('a', i)] << (4*i) for i in range(4)); PB = sum(SLOT[('b', i)] << (4*i) for i in range(4))
    SP = [x for x in range(9) if x not in [SLOT[(k, i)] for k in 'ab' for i in range(4)]][0]
    LOCS = [SLOT[('a', i)] for i in (0, 1, 2, 3, 0, 1, 2)] + [SLOT[('b', i)] for i in range(4)] + [SLOT[('a', 3)], SP, SLOT[('a', 0)]]
    NH = 14; XR = 16; ZR = 128; T224 = 184
    def common():
        a.e(f"""
        s_lshl_b32 s87, s64, 12
        s_lshl_b32 s86, s64, 2
        s_add_u32 s86, s86, {FLG}
        v_lshrrev_b32 v5, 5, v0              ; h
        v_and_b32 v4, 31, v0                 ; l31
        v_lshlrev_b32 v3, 4, v0              ; lane*16
        """)
    def outaddr():
        srd(a, 48, 18, 0, SZ_X)
        a.e(f"""
        s_lshr_b32 s65, s3, 1
        s_and_b32 s76, s65, 1                ; aa
        s_lshl_b32 s76, s76, 2
        s_lshr_b32 s78, s60, 1
        s_lshl_b32 s78, s78, 3
        s_add_u32 s76, s76, s78
        s_and_b32 s78, s60, 1
        s_add_u32 s76, s76, s78              ; rows/16
        s_mul_i32 s76, s76, {16*896}
        s_lshr_b32 s65, s65, 1               ; b
        s_lshl_b32 s78, s61, 1
        s_add_u32 s78, s78, s65
        s_lshl_b32 s78, s78, 6
        s_add_u32 s76, s76, s78
        s_and_b32 s78, s3, 1
        s_lshl_b32 s78, s78, 5
        s_add_u32 s76, s76, s78
        v_and_b32 v12, 15, v0
        v_bfe_u32 v13, v0, 4, 1
        v_lshl_add_u32 v12, v13, 5, v12
        v_mul_u32_u24 v12, 896, v12
        v_lshrrev_b32 v14, 5, v0
        v_lshl_add_u32 v13, v14, 3, v12
        v_lshl_add_u32 v12, v14, 4, v12
        """)
    XL = [f'buffer_load_dwordx2 {d2(XR+2*g)}, v13, s[24:27], s76 offen offset:{16*g}' for g in range(2)]
    def mf(A, B, first):
        for aa in range(2):
            for b in range(2):
                d = ACC2 + 16 * (2*b + aa)
                c = '0' if first else f'v[{d}:{d+15}]'
                a.e(f'v_mfma_f32_32x32x16_bf16 v[{d}:{d+15}], {q(A+4*b)}, {q(B+4*aa)}, {c}')
    common()
    a.e(f"""
    v_bfe_u32 v1, v0, 2, 2               ; r
    v_lshl_add_u32 v2, v5, 2, v1         ; 4h + r
    v_lshlrev_b32 v2, 7, v2
    v_lshrrev_b32 v1, 1, v1
    v_lshl_add_u32 v2, v1, 6, v2
    v_bfe_u32 v1, v0, 4, 1
    v_lshl_add_u32 v2, v1, 5, v2
    v_and_b32 v1, 3, v0
    v_lshl_add_u32 v2, v1, 3, v2
    v_add_u32 v2, s87, v2
    """)
    def tr(k):
        sl = k % 8; L = []
        if k % 2 == 0: L += [f'v_add_u32 v1, {LOCS[k>>1]*16384}, v2', 'v_xor_b32 v5, 64, v1']
        for b in range(2):
            for rho in range(2):
                L.append(f'ds_read_b64_tr_b16 {d2(AF + 8*sl + 4*b + 2*rho)}, v{5 if b else 1} offset:{(k&1)*2048 + rho*1024}')
        return L
    for k in range(8):
        for l in tr(k): a.e(l)
    a.e(f"""
    s_mul_i32 s65, s3, 14
    s_mul_i32 s73, s60, {2*HK1}
    s_add_u32 s73, s73, s65
    s_lshl_b32 s73, s73, 10
    s_add_u32 s65, s73, {HK1*1024}
    """)
    assert OFF_HF == 0
    srd(a, 28, 22, 's73', 57344 + 14336)
    srd(a, 32, 22, 's65', 57344 + 14336)
    srd(a, 52, 22, OFF_ST, SZ_ST)
    fl_srd(a, 40)
    a.e(f"""
    s_mul_i32 s74, s3, {224*896}
    s_lshl_b32 s75, s61, 7
    s_add_u32 s74, s74, s75
    v_lshlrev_b32 v10, 2, v4
    s_lshl_b32 s85, s60, 8
    s_add_u32 s85, s85, 8192
    v_mov_b32 v8, v29
    v_add_u32 v9, 57344, v3
    v_mov_b32 v30, 1
    """)
    for qq in range(7):
        if ROT2: a.e(f's_add_u32 s{66+qq}, s61, {qq}\ns_cmp_ge_u32 s{66+qq}, 7\ns_cselect_b32 s75, 7, 0\ns_sub_u32 s{66+qq}, s{66+qq}, s75\ns_lshl_b32 s{66+qq}, s{66+qq}, 11')
        else: a.e(f's_mov_b32 s{66+qq}, {qq*2048}')
    def dma(P):
        a.e(f's_mul_i32 s73, s{66+P%7}, 14\ns_add_u32 s73, s73, s74')
        for i in range(4):
            a.e(f's_add_u32 s75, s73, {i*7168 + (P//7)*4*224*896}\ns_add_u32 m0, s87, {LOCS[P]*16384 + i*1024}')
            vm.issue(f'buffer_load_dwordx4 v8, s[36:39], s75 offen lds', ('wd', P))
    own = [4, 5, 6] + [7 + i for i in range(4) if WHEN[('b', i)] > LB + HK] + [11, 12]
    NPRE = opt('NPRE', 2); NMID = opt('NMID', 5)
    a.e('s_waitcnt lgkmcnt(0)')
    assert NPRE <= 3
    for P in own[:NPRE]: dma(P)
    a.e(f's_waitcnt vmcnt({4*NPRE})')
    vm.issue(f'buffer_store_dword v30, v28, s[40:43], 0 offen{HSS}', 'fl')
    m2(a, 3, 2)
    lds_spin(a, 'g2_rc', RCNT, 4*14, 4)
    RL = [f'buffer_load_dword v{6+aa}, v10, s[52:55], s85 offen offset:{aa*128} sc1' for aa in range(2)]
    for l in RL: vm.issue(l, 'r2')
    a.e(f"""
    s_lshr_b32 s65, s60, 1
    s_lshl_b32 s65, s65, 3
    s_add_u32 s65, s65, s3
    s_lshl_b32 s65, s65, 7
    s_add_u32 s65, s65, {FH}
    v_and_b32 v1, 7, v0
    v_min_u32 v1, 6, v1
    v_lshlrev_b32 v1, 2, v1
    v_bfe_u32 v11, v0, 3, 1
    v_lshl_add_u32 v1, v11, 9, v1
    v_add_u32 v1, s65, v1
    v_mov_b32 v11, 1
    """)
    NE = opt('NE', 0)
    mid = own[NPRE:NPRE+NMID]
    for n, P in enumerate(mid):
        e = n - (len(mid) - NE)
        if e >= 0: vm.issue(f'buffer_load_dword v{193+e}, v1, s[40:43], 0 offen sc1', ('fh', e))
        dma(P)
    late = own[NPRE+NMID:] + [13]
    vm.issue(f'buffer_load_dword v192, v1, s[40:43], 0 offen sc1', 'fhl')
    m2(a, 4, 2)
    vm2 = vm.copy()
    for e in range(NE):
        vm2.wait(('fh', e))
        a.e(f'v_cmp_ne_u32 vcc, 1, v{193+e}\ns_nop 1\ns_cbranch_vccz fh_ok')
    a.e('s_waitcnt vmcnt(0)')
    poll1(a, 'fh', 192, 1, opt('HSLP', 2))
    if NE: vm.cnt(('fh', 0))
    else: vm.all_done()
    m2(a, 1, 6)
    m2(a, 2, 7)
    def issue(k):
        r = HR + 8 * (k % NH); o = (k & 1) * 1024
        for j in range(2):
            vm.issue(f'buffer_load_dwordx4 {q(r+4*j)}, v{3 if k < 14 else 9}, s[{28+4*j}:{31+4*j}], s{66+(k>>1)%7} offen offset:{o}{HS}', ('h', k))
    HB = opt('HB', 1)
    for k in range(NH):
        if HB and k == HB - 1: lds_spin(a, 'g2_b', 's86', FLG3, slp=1)
        issue(k)
    m2(a, 1, 7)
    outaddr()
    LK = {}
    for n, P in enumerate(late): LK[max(2*n + 1, 9 if P == 13 else 0)] = P
    for k in range(28):
        vm.wait(('h', k))
        if k >= 8: a.e(f's_waitcnt lgkmcnt({4*min(3, 27-k)})')
        mf(AF + 8*(k % 8), HR + 8 * (k % NH), k == 0)
        if k + NH < 28: issue(k + NH)
        if k in LK: dma(LK[k])
        if k == 15:
            for l in XL: vm.issue(l, 'xr')
        if k == 0: m2(a, 3, 3)
        if k == 0: m2(a, 3, 7)
        if k == 1: m2(a, 4, 7)
        if k == 13: m2(a, 4, 3)
        if k in (3, 7, 20): m2(a, {3: 2, 7: 3, 20: 4}[k], 6)
        if k == 10 and HB == 0: lds_spin(a, 'g2_b', 's86', FLG3)
        if k == 22: a.e(f'v_mov_b32 v14, s86\nds_write_b32 v14, v11 offset:{FLG2}\ns_waitcnt lgkmcnt(0)')
        if 4 <= k < 24:
            if k % 2 == 0: vm.wait(('wd', (k + 4) >> 1))
            for l in tr(k + 4): a.e(l)
    check(a, 'g2_r2', [6, 7], 14, 15, RL, 0)
    a.e('s_nop 7')
    for tl in range(4):
        for i in range(16):
            a.e(f'v_mul_f32 v{ACC2+16*tl+i}, v{ACC2+16*tl+i}, v{6+(tl&1)}')
    for i in range(4): a.e(f's_add_u32 s{82+i}, s87, {SLOT[("a", i)]*16384}')
    a.e('s_branch g2_red')
    a.label('gemm2h'); a.fence()
    probe(a, 'pr2', 31)
    vm = VM(a)
    common()
    def zflag():
        a.e('v_mov_b32 v30, 1\ns_waitcnt vmcnt(0)')
        a.e(f'buffer_store_dword v30, v28, s[40:43], 0 offen{SS}')
        a.e(f'v_mov_b32 v14, s86\nds_write_b32 v14, v30 offset:{FLG3}')
        m2(a, 3, 2)
    g_gen(a, zflag, opt('GH', 0))
    outaddr()
    a.e(f"""
    v_and_b32 v10, 15, v0
    v_lshlrev_b32 v10, 4, v10            ; l15*16
    v_bfe_u32 v11, v0, 4, 1
    v_lshl_add_u32 v11, v5, 2, v11       ; 4h + b16
    v_mul_u32_u24 v8, {ZS3}, v11
    v_add_u32 v8, v8, v10
    v_add_u32 v9, {2*ZS3}, v8
    s_mul_i32 s74, s64, {56*ZS3}
    s_lshl_b32 s75, s60, 8
    s_add_u32 s74, s74, s75              ; z3 base
    s_add_u32 s75, s75, {224*ZS3}
    s_cmp_eq_u32 s64, 0
    s_cselect_b32 s75, s75, 0x40000000
    s_cselect_b32 s65, 16, 0
    v_cmp_gt_u32 vcc, s65, v0
    v_mov_b32 v11, 0x40000000
    v_cndmask_b32 v10, v11, v10, vcc
    v_mov_b32 v11, -1
    v_mov_b32 v14, 0xffff
    v_cndmask_b32 v11, v11, v14, vcc
    s_mul_i32 s65, s64, 224
    s_cmp_eq_u32 s64, 0
    s_cselect_b32 s73, 896, s65
    v_lshlrev_b32 v15, 2, v0
    v_add_u32 v15, s65, v15
    v_mov_b32 v14, s73
    v_cmp_gt_u32 vcc, 56, v0
    v_cndmask_b32 v15, v14, v15, vcc
    s_lshl_b32 s65, s60, 10
    s_add_u32 s65, s65, {FZ}
    v_add_u32 v15, s65, v15
    """)
    for i in range(4): a.e(f's_add_u32 s{82+i}, s87, {SLOT[("b", i)]*16384}')
    for l in XL: vm.issue(l, 'xr')
    m2(a, 4, 2)
    poll1(a, 'fz', 14, 15, opt('ZSLP', 4), first=True)
    vm.all_done()
    m2(a, 1, 6)
    for z in range(7):
        r = ZR + 8*z
        a.e(f's_add_u32 s65, s74, {z*8*ZS3}')
        vm.issue(f'buffer_load_dwordx4 {q(r)}, v8, s[44:47], s65 offen{HS}', ('z', z))
        vm.issue(f'buffer_load_dwordx4 {q(r+4)}, v9, s[44:47], s65 offen{HS}', ('z', z))
        if z == 0: vm.issue(f'buffer_load_dwordx4 {q(T224)}, v10, s[44:47], s75 offen{HS}', ('z', z))
    for z in range(7):
        r = ZR + 8*z
        vm.wait(('z', z))
        if z == 0:
            for t in range(4):
                a.e(f'v_and_b32 v{r+t}, v{r+t}, v11\nv_lshl_or_b32 v{r+t}, v{T224+t}, 16, v{r+t}')
        for t in (0, 2, 4, 6):
            a.e(f'v_permlane16_swap_b32 v{r+t}, v{r+t+1}')
        a.e(f'v_swap_b32 v{r+2}, v{r+4}\nv_swap_b32 v{r+3}, v{r+5}')
        mf(GF_ + 8*z, r, z == 0)
        if z == 0: m2(a, 3, 3)
    m2(a, 4, 3)
    lds_spin(a, 'g2_bf', 's86', FLG2, slp=1)
    a.e('s_nop 7')
    a.label('g2_red'); a.fence()
    m2(a, 1, 3)
    for tl in range(4):
        a.e(f'v_add_u32 v{8+tl}, s{82+tl}, v3')
    for tl in range(4):
        for c in range(4):
            a.e(f'ds_write_b128 v{8+tl}, {q(ACC2+16*tl+4*c)} offset:{c*1024}')
    a.e(f'''
    s_lshr_b32 s65, s3, 1
    s_lshl_b32 s65, s65, 2
    s_lshr_b32 s66, {PA}, s65
    s_and_b32 s66, s66, 15
    s_lshl_b32 s66, s66, 14
    s_lshr_b32 s67, {PB}, s65
    s_and_b32 s67, s67, 15
    s_lshl_b32 s67, s67, 14
    s_and_b32 s65, s3, 1
    s_lshl_b32 s65, s65, 11
    s_add_u32 s66, s66, s65
    s_add_u32 s67, s67, s65
    v_add_u32 v2, s66, v3
    v_add_u32 v7, s67, v3
    s_waitcnt vmcnt(0)
    ''')
    for g in range(2):
        for c in range(2):
            a.e(f'v_lshlrev_b32 v{96+4*g+2*c}, 16, v{XR+2*g+c}\nv_and_b32 v{96+4*g+2*c+1}, 0xffff0000, v{XR+2*g+c}')
    a.e('s_waitcnt lgkmcnt(0)\ns_barrier')
    m2(a, 2, 3)
    for sw in range(8):
        for c in range(2):
            a.e(f'ds_read_b128 {q(16+8*sw+4*c)}, v{2 if sw < 4 else 7} offset:{(sw&3)*4096 + c*1024}')
    for sw in range(8):
        a.e(f's_waitcnt lgkmcnt({14-2*sw})')
        for r in range(0, 8, 2):
            a.e(f'v_pk_add_f32 {d2(96+r)}, {d2(96+r)}, {d2(16+8*sw+r)}')
    for g in range(2):
        for c in range(2):
            a.e(f'v_cvt_pk_bf16_f32 v{112+2*g+c}, v{96+4*g+2*c}, v{96+4*g+2*c+1}')
    for c in range(2):
        a.e(f'v_permlane32_swap_b32 v{112+c}, v{114+c}')
    a.e(f'buffer_store_dwordx4 {q(112)}, v12, s[48:51], s76 offen' + ['', ' sc0 sc1', ' nt', ' sc1'][opt('OSM', 0)])
    endpgm(a, 0, 22)
    emit_stubs(a)

def emit(a, x):
    if callable(x): x()
    else: a.e(x)

def gu(a):
    vm = VM(a)
    a.e(f'''
    v_lshrrev_b32 v5, 4, v0
    v_lshlrev_b32 v6, 2, v5
    v_and_b32 v7, 15, v0
    v_xor_b32 v6, v6, v7
    v_mul_u32_u24 v11, 3584, v5
    v_lshl_add_u32 v11, v6, 4, v11
    s_lshl_b32 s69, s58, 8               ; ct*256
    s_sub_u32 s70, {SZ_WG}, s69
    s_lshl_b32 s65, s59, 3
    s_bfe_u32 s66, s3, {(1<<16)|1}
    s_lshl_b32 s66, s66, 2
    s_add_u32 s66, s66, s65
    s_lshr_b32 s67, s3, 2
    s_add_u32 s66, s66, s67
    s_and_b32 s67, s3, 1
    s_lshl_b32 s67, s67, 1
    s_add_u32 s66, s66, s67
    s_mul_i32 s66, s66, {16*896}
    s_mul_i32 s68, s3, 14336
    s_lshl_b32 s71, s3, 10
    s_lshl_b32 s72, s3, 11
    s_add_u32 s78, s59, s58
    s_mul_i32 s67, s78, 37
    s_lshr_b32 s67, s67, 8
    s_mul_i32 s67, s67, 7
    s_sub_u32 s78, s78, s67
    s_mul_i32 s78, s78, {128*opt('ROT1', 0)}
    s_add_u32 s66, s66, s78
    s_mul_i32 s67, s78, 1792
    s_add_u32 s68, s68, s67
    s_waitcnt lgkmcnt(0)
    ''')
    srd(a, 24, 4, 0, SZ_X)
    for jj in range(2):
        a.e(f's_add_u32 m0, s72, {SLOT[("x",0)]*16384 + jj*1024}')
        vm.issue(f'buffer_load_dwordx4 v{12+jj}, s[24:27], s66 offen lds', ('x', 0))
    srd(a, 28, 12, 's69', 's70')
    srd(a, 32, 14, 's69', 's70')
    for c in range(2):
        if c: a.e(f's_add_u32 s68, s68, 114688')
        for mat in range(2):
            a.e(f's_add_u32 m0, s71, {SLOT[("w",c)]*16384 + mat*8192}')
            vm.issue(f'buffer_load_dwordx4 v11, s[{28+4*mat}:{31+4*mat}], s68 offen lds', ('w', c))
    a.e(f's_mov_b32 s79, {TMO}')
    a.e('s_cmp_ge_u32 s3, 4\ns_cbranch_scc1 gu_helper')
    vmh = vm.copy()
    dbg_srd(a)
    a.e('''
    v_mov_b32 v30, 1
    v_lshlrev_b32 v31, 20, v0
    ''')
    srd(a, 28, 22, OFF_HF, SZ_HF)
    a.e(f'''
    s_mul_i32 s65, s59, {4*HK1}
    s_lshl_b32 s66, s58, 3
    s_add_u32 s65, s65, s66
    s_lshl_b32 s66, s64, 1
    s_add_u32 s65, s65, s66
    s_lshl_b32 s65, s65, 10
    s_add_u32 s66, s65, {HK1*1024}
    s_add_u32 s67, s65, {2*HK1*1024}
    s_add_u32 s68, s65, {3*HK1*1024}
    s_lshl_b32 s71, s58, 2
    s_add_u32 s71, s71, s64              ; pair P
    s_mul_i32 s72, s71, 37
    s_lshr_b32 s72, s72, 8               ; P / 7
    s_mul_i32 s73, s72, 7
    s_sub_u32 s71, s71, s73
    s_lshl_b32 s71, s71, 2
    s_lshl_b32 s73, s59, 3
    s_add_u32 s72, s72, s73
    s_lshl_b32 s72, s72, 7
    s_add_u32 s71, s71, s72
    s_add_u32 s71, s71, {FH}
    v_lshlrev_b32 v1, 4, v0
    ''')
    srd(a, 36, 16, 0, SZ_WG)
    srd(a, 52, 22, OFF_ST, SZ_ST)
    wd_addr(a, 29, 5, 6)
    a.e(f'''
    v_and_b32 v14, 31, v0                ; l31
    v_lshrrev_b32 v3, 5, v0              ; h
    v_bfe_u32 v9, v0, 1, 3
    v_xor_b32 v9, v9, v3
    v_lshlrev_b32 v9, 4, v9
    v_lshl_add_u32 v8, v14, 7, v9        ; X base0
    v_lshlrev_b32 v14, 2, v14
    v_bfe_u32 v9, v0, 2, 2               ; r
    v_lshl_add_u32 v10, v3, 3, v9        ; 8h + r
    v_lshlrev_b32 v2, 8, v10
    v_xor_b32 v9, s64, v9
    v_lshl_add_u32 v2, v9, 6, v2
    v_bfe_u32 v9, v0, 4, 1
    v_lshl_add_u32 v2, v9, 5, v2
    v_and_b32 v9, 3, v0
    v_lshl_add_u32 v2, v9, 3, v2
    v_add_u32 v3, 0x10000, v2
    v_add_u32 v4, 0x20000, v2
    v_mov_b32 v7, {RCNT}
    v_mov_b32 v16, 0
    v_mov_b32 v17, 0
    v_mov_b32 v18, 0
    v_mov_b32 v19, 0
    s_mov_b32 s85, 0xffff0000
    s_lshl_b32 s70, s59, 9
    ''')
    for r in range(84, 108): a.e(f'v_mov_b32 v{r}, 0')
    ML = [f'buffer_load_dword v{84+4*t}, v14, s[52:55], s70 offen offset:{t*128} sc1' for t in range(4)]
    extras = {}
    CLRA = opt('CLRA', 5)
    extras.setdefault(opt('L1K', 5), []).insert(0, lambda: l1_issue(vm, 28, 31))
    L1N = []
    TT = opt('TT', 0)
    if TT:
        assert WS == ZS3
        srd(a, 32, 22, OFF_Z1, SZ_Z1 + SZ_WT + SZ_Z3)
        srd(a, 44, 18, 0, SZ_X)
        a.e(f'''
        s_cmp_eq_u32 s64, 3
        s_cselect_b32 s74, 8192, 0x40000000
        v_mul_u32_u24 v9, {28*WS}, v0
        v_add_u32 v9, {SZ_Z1}, v9
        v_mul_u32_u24 v11, {14*ZS1}, v0
        v_lshlrev_b32 v10, 17, v0
        s_mov_b64 exec, 0xffff
        ''')
        vm.issue('buffer_load_dword v124, v9, s[32:35], s74 offen', 'tt')
        vm.issue('buffer_load_dword v127, v11, s[32:35], s74 offen', 'tt')
        vm.issue('buffer_load_dword v125, v10, s[44:47], s74 offen', 'tt')
        vm.issue('buffer_load_dword v126, v10, s[36:39], s74 offen', 'tt')
        if TT > 1:
            a.e(f's_cmp_eq_u32 s64, 2\ns_cselect_b32 s74, {112*1024}, 0x40000000\nv_mul_u32_u24 v9, {4*HK1*1024}, v0')
            vm.issue('buffer_load_dword v124, v9, s[28:31], s74 offen', 'tt')
        if TT > 2:
            srd(a, 32, 12, 0, SZ_WG)
            srd(a, 44, 14, 0, SZ_WG)
            vm.issue('buffer_load_dword v125, v10, s[32:35], s74 offen', 'tt')
            vm.issue('buffer_load_dword v126, v10, s[44:47], s74 offen', 'tt')
        a.e('s_mov_b64 exec, -1')
    srd(a, 32, 6, 0, SZ_WR)
    srd(a, 44, 8, 0, SZ_WR)
    srd(a, 48, 22, OFF_WT, SZ_WT)
    a.e(f'''
    s_mul_i32 s74, s64, 224
    s_add_u32 s74, s74, s62              ; task G
    s_lshr_b32 s75, s74, 6               ; (tm,q)
    s_lshl_b32 s75, s75, 8
    s_bfe_u32 s76, s74, {(2<<16)|4}      ; w
    s_lshl_b32 s76, s76, 4
    s_add_u32 s75, s75, s76
    s_bfe_u32 s76, s74, {(1<<16)|3}      ; par
    s_add_u32 s75, s75, s76              ; s0 (g = 0)
    s_mul_i32 s75, s75, 450
    s_and_b32 s75, s75, -4
    s_and_b32 s77, s74, 7                ; cb
    s_lshl_b32 s78, s77, 6
    s_add_u32 s75, s75, s78
    v_and_b32 v9, 7, v0
    v_lshrrev_b32 v10, 3, v0
    v_lshl_add_u32 v12, v9, 3, v10
    v_lshlrev_b32 v12, 2, v12
    v_mul_u32_u24 v11, 900, v10
    v_lshl_add_u32 v11, v9, 3, v11
    v_mul_u32_u24 v15, {4*WS}, v10
    v_lshl_add_u32 v15, v9, 4, v15
    s_lshl_b32 s77, s77, 5
    s_add_u32 s77, s77, 1
    s_sub_u32 s77, s77, s76
    s_mul_i32 s77, s77, {WS}
    s_and_b32 s76, s74, 15
    s_lshl_b32 s76, s76, 9
    s_add_u32 s76, s76, {FW}
    s_lshr_b32 s78, s74, 3
    s_lshl_b32 s78, s78, 7
    s_cmp_lt_u32 s74, 512
    s_cselect_b32 s74, s78, 0x40000000
    s_cselect_b32 s76, s76, 0x40000000
    s_add_u32 s74, s74, s77
    s_mov_b32 s82, 0x05040100
    s_mov_b32 s83, 0x07060302
    v_lshlrev_b32 v13, 7, v0
    v_cmp_gt_u32 vcc, 4, v0
    v_cndmask_b32 v13, v31, v13, vcc
    ''')
    def jl(i):
        for mat in range(2):
            vm.issue(f'buffer_load_dwordx2 {d2(108+8*mat+2*i)}, v11, s[{32+12*mat}:{35+12*mat}], s75 offen', 'ja')
        if i < 3: a.e(f's_add_u32 s75, s75, {64*450}')
        else: fl_srd(a, 44)
    JLK = opt('JLK', 0); JLS = opt('JLS', 1)
    for i in range(4):
        if JLK < 0: jl(i)
        else: extras.setdefault(JLK + (i * JLS) // 2, []).append(lambda i=i: jl(i))
    def jb(h):
        vm.wait('ja')
        for r in range(8*h, 8*h + 8): a.e(f'ds_bpermute_b32 v{108+r}, v12, v{108+r}')
    def js(c):
        for mat in range(2):
            for ip in range(2):
                r = 108 + 8*mat + 4*ip + (c >> 1)
                a.e(f'v_perm_b32 v{124+2*mat+ip}, v{r+2}, v{r}, s{82+(c&1)}')
        vm.issue(f'buffer_store_dwordx4 {q(124)}, v15, s[48:51], s74 offen{SS}', 'wt')
        if c < 3: a.e(f's_add_u32 s74, s74, {WS}')
    def jsig():
        vm.wait('wt')
        vm.issue('buffer_atomic_add v30, v13, s[44:47], s76 offen sc1', 'fw')
    fd_addr(a, 9, 77, 78)
    a.e('s_lshl_b32 s78, s64, 28')
    def fdchk():
        vm.wait('fd')
        a.e('''
        v_cmp_ne_u32 vcc, 32, v10
        s_nop 1
        s_cmp_eq_u64 vcc, 0
        s_cselect_b64 exec, 1, 0
        ds_write_b32 v7, v30 offset:4
        s_mov_b64 exec, -1
        ''')
    if opt('FDK', 17):
        extras.setdefault(opt('FDK', 17), []).append(lambda: vm.issue('buffer_load_dword v10, v9, s[44:47], s78 offen sc1', 'fd'))
        extras.setdefault(2*LB - 2, []).append(fdchk)
    JB = opt('JB', 5)
    for h in range(2): extras.setdefault(JB + h, []).append(lambda h=h: jb(h))
    for c in range(4): extras.setdefault(JB + 2 + c, []).append(lambda c=c: js(c))
    assert opt('JSK', 14) >= 2*CLRA + 2
    extras.setdefault(opt('JSK', 14), []).append(jsig)
    def flag(n):
        if n == 'a': L1N.append(len(vm.ops) - 1 - vm.ops.index('l1'))
        a.e(f's_cmp_eq_u32 s3, 0\ns_cbranch_scc1 gu_fl{n}')
        a.label(f'gu_fl{n}_ret')
    extras.setdefault(2*CLRA - 1, []).insert(0, lambda: flag('a'))
    for l in ML: extras.setdefault(opt('MLK', 18), []).append(lambda l=l: vm.issue(l, 'ml'))
    def preb(c):
        tag = {0: ('w', 0), 1: ('w', 1), }.get(c)
        if tag:
            n = vm.cnt(tag)
            if n is not None: return f' vmcnt({n})'
        return ''
    def reads(k):
        buf = k & 1; ksl = k & 3; u = k >> 2
        xb = 5 + (k & 1)
        XB = [f'ds_read_b128 {q(48+16*buf+4*t)}, v{xb} offset:{t*4096}' for t in range(4)]
        c = k >> 1; slot = SLOT[('w', c)]; kk = k & 1
        WA = []
        for i in range(2):
            for rho in range(2):
                d = 32 + 8*buf + 4*i + 2*rho
                off = (slot & 3)*16384 + i*8192 + kk*4096 + rho*1024
                WA.append(f'ds_read_b64_tr_b16 {d2(d)}, v{2 + (slot >> 2)} offset:{off}')
        return [WA[0], WA[1], XB[0], WA[2], WA[3], XB[1], XB[2], XB[3]]
    def xbase(k):
        return f'v_xor_b32 v{5 + (k & 1)}, {SLOT[("x", k >> 2)]*16384 + (k & 3)*32}, v8'
    def cs(k):
        buf = k & 1; L = []
        n = 0
        for i in range(2):
            for dd in range(4):
                r = 32 + 8*buf + 4*i + dd; t = 20 + 2*(n & 3); n += 1
                L += [f'v_lshlrev_b32 v{t}, 16, v{r}', f'v_and_b32 v{t+1}, s85, v{r}',
                      f'v_add_f32 v{16+2*i}, v{16+2*i}, v{t}', f'v_add_f32 v{17+2*i}, v{17+2*i}, v{t+1}']
        return L
    def mfmas(k):
        buf = k & 1
        return [f'v_mfma_f32_32x32x16_bf16 v[{acc(i,t)}:{acc(i,t)+15}], {q(32+8*buf+4*i)}, {q(48+16*buf+4*t)}, ' + ('0' if k == 0 else f'v[{acc(i,t)}:{acc(i,t)+15}]')
                for t in range(4) for i in range(2)]
    a.e(xbase(0)); a.e(xbase(1))
    a.e(f's_waitcnt lgkmcnt(0){preb(0)}')
    m2(a, 1, 1)
    a.e('s_barrier')
    m2(a, 2, 1)
    for l in reads(0): a.e(l)
    for k in range(28):
        M = mfmas(k)
        if k & 1:
            if k == 2*CLRA - 1: m2(a, 4, 5)
            a.e(f's_waitcnt lgkmcnt(0){preb((k+1)//2)}')
        else:
            a.e('s_waitcnt lgkmcnt(0)')
        R = reads(k+1) if k < 27 else []
        V = cs(k) if opt('CS', 1) else []
        if k + 2 < 28: V = V[:16] + [xbase(k+2)] + V[16:]
        X = extras.get(k, [])
        for g in range(8):
            a.e(M[g])
            if g == 0 and (k & 1):
                if (k+1)//2 <= LB: a.e('s_barrier')
                else: a.e(f's_mov_b64 exec, 1\nds_add_u32 v7, v30 offset:{4*((k+1)//2)}\ns_mov_b64 exec, -1')
                if (k+1)//2 in (3, 6, 9, 12): m2(a, (k+1)//6, 4)
            nr = 2 if g < 4 else 0
            nv = (3 if g < 4 else 6) if R else 5
            for l in R[2*g:2*g+nr]: a.e(l)
            for l in V[:nv]: a.e(l)
            V = V[nv:]
            if g >= 2 and X: emit(a, X.pop(0))
        for l in V: a.e(l)
        for l in X: emit(a, l)
    m2(a, 3, 1)
    for i in range(2):
        a.e(f'''
        v_add_f32 v{16+2*i}, v{16+2*i}, v{17+2*i}
        v_cvt_pk_bf16_f32 v{20+i}, v{16+2*i}, v{16+2*i}
        v_and_b32 v{20+i}, s85, v{20+i}
        v_sub_f32 v{20+i}, v{16+2*i}, v{20+i}
        v_cvt_pk_bf16_f32 v{100+4*i}, v{16+2*i}, v{20+i}
        ''')
    vm.wait('ml')
    check(a, 'gu_m', [84, 88, 92, 96], 20, 21, ML, 0)
    for t in range(4):
        for i in range(2):
            a.e(f'v_mfma_f32_32x32x16_bf16 v[{acc(i,t)}:{acc(i,t)+15}], {q(100+4*i)}, {q(84+4*t)}, v[{acc(i,t)}:{acc(i,t)+15}]')
    n = 0
    for t in range(4):
        for jp in range(2):
            o = 32 + 4 * n; n += 1
            for dd in range(4):
                g0 = acc(0, t) + 8*jp + 2*dd; u0 = acc(1, t) + 8*jp + 2*dd
                a.e(f'''
                v_max_f32 v{g0}, 0, v{g0}
                v_max_f32 v{g0+1}, 0, v{g0+1}
                v_mul_f32 v{g0}, v{g0}, v{u0}
                v_mul_f32 v{g0+1}, v{g0+1}, v{u0+1}
                v_cvt_pk_bf16_f32 v{o+dd}, v{g0}, v{g0+1}
                ''')
            vm.issue(f'buffer_store_dwordx4 {q(o)}, v1, s[28:31], s{65+t} offen offset:{jp*1024}{HSS}', 'hst')
    m2(a, 4, 1)
    a.e('v_add_u32 v28, s71, v31')
    m2(a, 1, 2)
    a.e(f'''
    s_lshl_b32 s65, s64, 2
    s_add_u32 s65, s65, {FLG}
    v_mov_b32 v4, s65
    s_mov_b32 s77, 400000
    ''')
    a.label('gu_sp'); a.fence()
    a.e(f'''
    ds_read_b32 v5, v4
    s_waitcnt lgkmcnt(0)
    v_readfirstlane_b32 s65, v5
    s_sub_u32 s77, s77, 1
    s_cbranch_scc1 gu_spok
    s_cmp_eq_u32 s65, 0
    s_cbranch_scc1 gu_sp
    ''')
    a.label('gu_spok'); a.fence()
    probe(a, 'pr3', 5)
    m2(a, 2, 2)
    a.e('s_branch gemm2')
    emit_stubs(a)
    a.label('gu_fla'); a.fence()
    m2(a, 1, 5)
    a.e(f's_waitcnt vmcnt({L1N[0]})')
    m2(a, 2, 5)
    l1_check(a, 'gua', 28, 31)
    m2(a, 3, 5)
    a.e('s_branch gu_fla_ret')
    a.label('gu_helper'); a.fence()
    vm = vmh
    a.e(f'''
    s_and_b32 s66, s64, 1
    s_lshl_b32 s66, s66, 2
    s_add_u32 s66, s66, s65
    s_lshr_b32 s67, s64, 1
    s_add_u32 s66, s66, s67
    s_mul_i32 s82, s66, {16*896}
    s_add_u32 s83, s82, {32*896}
    s_mul_i32 s84, s64, 28672
    s_lshl_b32 s86, s64, 11
    s_lshl_b32 s87, s64, 12
    ''')
    def item(it):
        L = []
        kind, n = it; sb = SLOT[it] * 16384
        if kind == 'x':
            for jj in range(4):
                def f(jj=jj):
                    if jj == 0:
                        a.e(f's_add_u32 s78, s78, 128\ns_cmp_eq_u32 s78, 896\ns_cselect_b32 s78, 0, s78\ns_mul_i32 s85, s78, 1792\ns_add_u32 s85, s85, s84')
                    if jj % 2 == 0: a.e(f's_add_u32 s73, s{82+(jj>>1)}, s78')
                    a.e(f's_add_u32 m0, s87, {sb + jj*1024}')
                    vm.issue(f'buffer_load_dwordx4 v{12+(jj&1)}, s[24:27], s73 offen lds', it)
                L.append(f)
        elif kind == 'w':
            for e in range(2):
                for mat in range(2):
                    def f(e=e, mat=mat):
                        if mat == 0: a.e(f's_add_u32 s73, s85, {(n&1)*114688 + e*14336}')
                        a.e(f's_add_u32 m0, s86, {sb + mat*8192 + e*1024}')
                        vm.issue(f'buffer_load_dwordx4 v11, s[{28+4*mat}:{31+4*mat}], s73 offen lds', it)
                    L.append(f)
        else:
            for i in range(4):
                def f(i=i):
                    if i == 0:
                        a.e(f's_add_u32 s85, s61, {n}\ns_cmp_ge_u32 s85, 7\ns_cselect_b32 s73, 7, 0\ns_sub_u32 s85, s85, s73' if ROT2 else f's_mov_b32 s85, {n}')
                        a.e(f's_mul_i32 s85, s85, 28672\ns_add_u32 s85, s85, s{74 if kind == "a" else 75}')
                    a.e(f's_add_u32 s73, s85, {i*7168}\ns_add_u32 m0, s87, {sb + i*1024}')
                    vm.issue(f'buffer_load_dwordx4 v29, s[36:39], s73 offen lds', it)
                L.append(f)
        return L
    for it in ITEMS[3:]:
        if WHEN[it] == -1:
            for f in item(it): f()
    srd(a, 36, 16, 0, SZ_WG)
    wd_addr(a, 29, 5, 6)
    a.e(f'''
    s_mul_i32 s74, s64, {224*896}
    s_lshl_b32 s75, s61, 7
    s_add_u32 s74, s74, s75
    s_add_u32 s75, s74, {4*224*896}
    v_lshlrev_b32 v30, 2, v0
    v_add_u32 v30, {XCNT}, v30
    v_mov_b32 v31, 0
    ds_write_b32 v30, v31
    ''')
    import re
    K = [re.sub(r'\bv28\b', 'v53', l) for l in fft_consts()]
    KPRE = opt('KPRE', 40)
    for l in K[:KPRE]: a.e(l)
    K = K[KPRE:]
    KS = [int(x) for x in os.environ.get('KS', '0,1,2,3,4,5,6,7').split(',')]
    kper = -(-len(K) // len(KS))
    for c in range(LB + 1):
        ns = [vm.cnt(t) for t in ([('w', c)] if c < LB else [('w', 13)]) + ([('x', c // 2)] if c % 2 == 0 and c <= 12 else [])]
        ns = [n for n in ns if n is not None]
        a.e('s_waitcnt lgkmcnt(0)' + (f' vmcnt({min(ns)})' if ns else ''))
        if c == 0: m2(a, 1, 1)
        a.e('s_barrier')
        if c == 0: m2(a, 2, 1)
        if c == 8: fft_setup(a)
        work = []
        for it in ITEMS:
            if WHEN[it] == c: work += item(it)
        if c == LB: work = [f's_mov_b32 s76, 0\nv_mov_b32 v30, {RCNT}\nds_read_b32 v17, v30 offset:4'] + work
        if c in KS: work += K[KS.index(c)*kper:(KS.index(c)+1)*kper]
        for w in work: emit(a, w)
        if c == 5: m2(a, 1, 4)
    m2(a, 2, 4)
    m2(a, 3, 1)
    for c in range(LB + 1, LB + 1 + HK): HOOK.setdefault(0 if c == LB + 1 else opt('HP2', 4), []).append(c)
    fft_body(a, vm)
    a.e('s_cmp_lg_u32 s76, 0\ns_cbranch_scc1 fft_end')
    a.e('s_branch gemm2h')
    vm = VM(a)
    for c in range(LB + 1, LB + 1 + HK):
        a.label(f'hk{c}'); a.fence()
        a.e('s_mov_b32 s77, 400000')
        a.label(f'hk{c}_sp'); a.fence()
        a.e(f'''
        ds_read_b32 v31, v30 offset:{4*c}
        s_waitcnt lgkmcnt(0)
        v_readfirstlane_b32 s73, v31
        s_sub_u32 s77, s77, 1
        s_cbranch_scc1 hk{c}_go
        s_cmp_lt_u32 s73, 4
        s_cbranch_scc1 hk{c}_sp
        ''')
        a.label(f'hk{c}_go'); a.fence()
        for it in ITEMS:
            if WHEN[it] == c:
                for f in item(it): f()
        a.e(f's_branch hk{c}_ret')
    a.label('fd_slow'); a.fence()
    a.e('s_waitcnt vmcnt(0)\nds_write_b32 v8, v9\ns_cmp_lg_u32 s64, 0\ns_cbranch_scc1 fd_w')
    poll1(a, 'fd', 17, 18, opt('WSLP', 4), val=32, first=True)
    a.e(f'v_mov_b32 v18, {RCNT}\nds_write_b32 v18, v9 offset:4\ns_branch fd_go')
    a.label('fd_w'); a.fence()
    lds_spin(a, 'fd_sp', RCNT + 4, va=18, vd=17, slp=1)
    a.e('s_branch fd_go')
    a.label('fft_end'); a.fence()
    a.e(f'v_mov_b32 v30, 1\ns_waitcnt vmcnt(0)\nbuffer_store_dword v30, v28, s[40:43], 0 offen{SS}')
    endpgm(a, 0, 22)
    emit_stubs(a)

WIMG = 57344
SSCR = WIMG + 65536
def dft(a):
    a.label('dft_wg'); a.fence()
    vm = VM(a)
    RAW, PM = 32, 16
    FPRE = opt('FPRE', 5); assert FPRE <= 5
    def FR(par, qq): return 176 + 8*(qq % (FPRE + 1)) + 4*par
    AC = 64
    WS_ = 64
    a.e(f'''
    s_sub_u32 s57, s57, 28
    s_lshr_b32 s59, s56, 1
    s_lshl_b32 s59, s59, 1
    s_and_b32 s65, s56, 1
    s_lshl_b32 s65, s65, 3
    s_add_u32 s59, s59, s65
    s_lshr_b32 s65, s57, 1
    s_add_u32 s59, s59, s65              ; g
    s_and_b32 s58, s57, 1                ; hf
    s_lshl_b32 s60, s56, 2
    s_add_u32 s60, s60, s57              ; di
    s_lshl_b32 s65, s59, 3
    s_and_b32 s66, s3, 6
    s_add_u32 s65, s65, s66
    s_add_u32 s65, s65, s58
    s_mul_i32 s65, s65, {16*896}
    s_and_b32 s66, s3, 1
    s_cmp_eq_u32 s66, 1
    s_cselect_b64 vcc, -1, 0
    v_cndmask_b32 v12, v12, v13, vcc
    s_lshl_b32 s71, s3, 10
    v_lshrrev_b32 v3, 5, v0              ; h
    v_and_b32 v1, 31, v0                 ; l31
    s_cmp_eq_u32 s3, 7
    s_waitcnt lgkmcnt(0)
    s_cbranch_scc1 l1_clr
    ''')
    a.label('l1_ret')
    srd(a, 24, 4, 0, SZ_X)
    a.e('s_mov_b32 s73, s65')
    def xdma(vm, u):
        a.e(f's_add_u32 s67, s73, {u*128}\ns_add_u32 m0, s71, {u*8192}')
        vm.issue(f'buffer_load_dwordx4 v12, s[24:27], s67 offen lds', ('x', u))
    for u in range(7): xdma(vm, u)
    srd(a, 44, 22, OFF_Z1, SZ_Z1)
    a.e(f's_mov_b32 s79, {TMO}')
    a.e(f'''
    s_lshl_b32 s83, s59, 9
    s_lshl_b32 s69, s58, 8
    s_add_u32 s83, s83, s69              ; g*512 + hf*256
    ''')
    a.e(f'''
    v_lshlrev_b32 v2, 5, v1
    v_lshl_add_u32 v2, v3, 13, v2
    v_bfe_u32 v6, v0, 3, 1
    v_lshl_add_u32 v2, v6, 4, v2
    v_add_u32 v2, s71, v2
    v_xor_b32 v6, 16, v2
    s_mov_b32 s70, 0x05040100
    s_mov_b32 s71, 0x07060302
    s_cmp_eq_u32 s3, 7
    s_cbranch_scc1 dft_stat
    ''')
    def prep(prs, regs):
        for pr, R in zip(prs, regs):
            if pr == 3: a.e('s_mov_b32 exec_hi, 0')
            a.e(f'ds_read_b128 {q(R)}, v2 offset:{pr*16384}\nds_read_b128 {q(R+4)}, v6 offset:{pr*16384}')
        if 3 in prs: a.e('s_mov_b64 exec, -1')
        for n, (pr, R) in enumerate(zip(prs, regs)):
            a.e(f's_waitcnt lgkmcnt({2*(len(prs) - 1)})')
            for par in range(2):
                for jj in range(4):
                    a.e(f'v_perm_b32 v{R+8+4*par+jj}, v{R+2*jj+1}, v{R+2*jj}, s{70+par}')
            if pr == 3: a.e('s_mov_b32 exec_hi, 0')
            a.e(f'ds_write_b128 v2, {q(R+8)} offset:{pr*16384}\nds_write_b128 v6, {q(R+12)} offset:{pr*16384}')
        if 3 in prs: a.e('s_mov_b64 exec, -1')
        a.e('s_waitcnt lgkmcnt(0)')
    vms = vm.copy()
    if opt('TD', 1):
        a.e(f's_cmp_eq_u32 s3, 6\ns_cselect_b32 s67, 8192, 0x40000000\nv_mul_u32_u24 v8, {14*ZS1}, v0')
        vm.issue('buffer_load_dword v224, v8, s[44:47], s67 offen', 'tt')
    a.e(f'''
    v_and_b32 v8, 15, v0
    v_lshlrev_b32 v8, 4, v8              ; l15*16
    v_lshrrev_b32 v9, 4, v0              ; 2h + b16
    v_mul_u32_u24 v10, {ZS1}, v9
    v_add_u32 v10, v10, v8
    v_sub_u32 v11, 3, v9
    v_mul_u32_u24 v11, {ZS1}, v11
    v_add_u32 v11, v11, v8
    s_lshl_b32 s65, s3, 4                ; 16 i
    s_mul_i32 s84, s65, {ZS1}
    s_add_u32 s84, s84, s83
    s_sub_u32 s66, 221, s65
    s_mul_i32 s66, s66, {ZS1}
    s_add_u32 s86, s66, s83
    v_add_u32 v13, s66, v11
    v_add_u32 v8, {112*ZS1}, v8
    s_cmp_eq_u32 s3, 0
    s_cselect_b32 s80, -1, 0
    s_mov_b32 s81, 0                     ; s[80:81]: wave 0, h = 0
    s_cselect_b32 s66, 16, 0
    v_cmp_gt_u32 vcc, s66, v0
    v_cndmask_b32 v13, v13, v8, vcc
    ''')
    def z1st(kind, n, r, tag):
        if kind == 0:
            a.e(f's_add_u32 s67, s84, {4*n*ZS1}')
            vm.issue(f'buffer_store_dwordx4 {q(r)}, v10, s[44:47], s67 offen{SS}', tag)
        elif n == 0:
            vm.issue(f'buffer_store_dwordx4 {q(r)}, v13, s[44:47], s83 offen{SS}', tag)
        else:
            a.e(f's_sub_u32 s67, s86, {4*n*ZS1}')
            vm.issue(f'buffer_store_dwordx4 {q(r)}, v11, s[44:47], s67 offen{SS}', tag)
    a.e(f'''
    v_lshrrev_b32 v8, 1, v1
    v_add_u32 v8, s65, v8                ; p
    v_and_b32 v9, 1, v1
    v_cvt_f32_u32 v14, v9
    v_mul_f32 v14, 0x3e800000, v14       ; phase O
    v_cmp_eq_u32 vcc, 1, v1
    s_cmp_eq_u32 s3, 0
    s_cselect_b64 vcc, vcc, 0
    v_mov_b32 v9, 112
    v_cndmask_b32 v8, v8, v9, vcc
    v_cndmask_b32 v15, v14, 0, vcc       ; phase E
    v_cvt_f32_u32 v8, v8
    v_mul_f32 v8, {fh(1/448)}, v8        ; p/448
    v_mul_f32 v9, {fh(32.0)}, v8
    v_cos_f32 v4, v9
    v_add_f32 v4, v4, v4
    v_lshlrev_b32 v16, 4, v3
    v_cvt_f32_u32 v16, v16             ; 16 h
    v_fma_f32 v15, v16, v8, v15         ; arg E (j=0,q=0)
    v_fma_f32 v14, v16, v8, v14
    v_add_f32 v14, v14, v8               ; arg O
    v_add_f32 v16, v8, v8               ; 2 step
    s_mov_b32 s87, 0x05040100
    s_mov_b32 s78, 0x07060302
    ''')
    P0, P1 = 144, 160
    for par in range(2):
        ar = 15 - par
        for j in range(8):
            a.e(f'''
            v_sub_f32 v17, v{ar}, v9
            v_cos_f32 v{P0+8*par+j}, v{ar}
            v_cos_f32 v{P1+8*par+j}, v17
            v_add_f32 v{ar}, v{ar}, v16
            ''')
    a.e('v_mov_b32 v5, v4')
    def fgen(qq):
        cur, prv = (P0, P1) if qq % 2 == 0 else (P1, P0)
        L = []
        for par in range(2):
            for jj in range(4):
                L.append(f'v_cvt_pk_bf16_f32 v{FR(par, qq)+jj}, v{cur+8*par+2*jj}, v{cur+8*par+2*jj+1}')
        if qq < 13:
            if opt('PKF', 0):
                for r in range(0, 16, 2):
                    L.append(f'v_pk_fma_f32 {d2(prv+r)}, v[4:5], {d2(cur+r)}, {d2(prv+r)} neg_lo:[0,0,1] neg_hi:[0,0,1]')
            else:
                for r in range(16):
                    L.append(f'v_fma_f32 v{prv+r}, v4, v{cur+r}, -v{prv+r}')
        return L
    for qq in range(FPRE):
        for l in fgen(qq): a.e(l)
    a.e(f'''
    v_bfe_u32 v9, v0, 1, 3
    v_lshlrev_b32 v8, 1, v3
    v_xor_b32 v9, v9, v8
    v_lshlrev_b32 v9, 4, v9
    v_lshl_add_u32 v8, v1, 7, v9
    v_xor_b32 v9, 16, v8
    v_xor_b32 v14, 64, v8
    v_xor_b32 v15, 80, v8
    ''')
    m2(a, 1, 3)
    vm.wait(('x', 1))
    prep([0], [16])
    m2(a, 1, 1)
    a.e('s_barrier')
    m2(a, 2, 1)
    def rd(qq):
        b = RAW + 16 * (qq & 1)
        base = (8, 9) if qq % 2 == 0 else (14, 15)
        return [f'ds_read_b128 {q(b+8*tau+4*e)}, v{base[e]} offset:{(qq>>1)*8192 + tau*4096}' for tau in range(2) for e in range(2)]
    for l in rd(0): a.e(l)
    JR = 128
    for qq in range(14):
        b = RAW + 16 * (qq & 1)
        nxt = rd(qq+1) if qq < 13 else []
        a.e('s_waitcnt lgkmcnt(0)')
        if qq == 3:
            m2(a, 2, 3)
            vm.wait(('x', 6))
            prep([1, 2, 3], [16, 128, 240])
            a.e('s_barrier')
            m2(a, 3, 3)
        if qq == 5: m2(a, 1, 2)
        if qq == 10: m2(a, 4, 2)
        if qq == 12: m2(a, 1, 4)
        if qq == 7: m2(a, 2, 2)
        for l in nxt: a.e(l)
        G = fgen(qq + FPRE) if qq + FPRE < 14 else []
        def ge(l): vm.issue(l, 'wt') if l.startswith('buffer') else a.e(l)
        ng = (len(G) + 3) // 4
        for tau in range(2):
            for par in range(2):
                d = AC + 16*(2*par + tau)
                a.e(f'v_mfma_f32_32x32x16_bf16 v[{d}:{d+15}], {q(FR(par, qq))}, {q(b+8*tau+4*par)}, ' + ('0' if qq == 0 else f'v[{d}:{d+15}]'))
                for l in G[:ng]: ge(l)
                G = G[ng:]
        assert not G
    m2(a, 3, 1)
    a.e(f'''
    v_lshlrev_b32 v8, 3, v1
    v_add_u32 v8, {SSCR + 512}, v8
    ''')
    m2(a, 2, 4)
    a.e(f'v_mov_b32 v9, {RCNT}\ns_mov_b32 s77, 400000')
    a.label('df_sp'); a.fence()
    a.e(f'''
    ds_read_b32 v20, v9
    ds_read_b64 v[16:17], v8
    ds_read_b64 v[18:19], v8 offset:256
    s_waitcnt lgkmcnt(0)
    v_readfirstlane_b32 s67, v20
    s_sub_u32 s77, s77, 1
    s_cbranch_scc1 df_spok
    s_cmp_eq_u32 s67, 0
    s_cbranch_scc1 df_sp
    ''')
    a.label('df_spok'); a.fence()
    m2(a, 3, 4)
    m2(a, 4, 3)
    for n in range(4):
        LO = 144 + 8*n; HI = LO + 4
        for e in range(2):
            aa = 2*n + e
            for tau in range(2):
                E = AC + 16*tau + 2*aa; O = AC + 32 + 16*tau + 2*aa; r = 16 + 2*tau
                t = 20 + 6*tau
                a.e(f'''
                v_mul_f32 v{O}, v{O}, v{r}
                v_mul_f32 v{O+1}, v{O+1}, v{r}
                v_fma_f32 v{t}, v{E}, v{r}, v{O}
                v_fma_f32 v{t+1}, v{E+1}, v{r}, v{O+1}
                v_fma_f32 v{t+2}, v{E}, v{r}, -v{O}
                v_fma_f32 v{t+3}, -v{E+1}, v{r}, v{O+1}
                ''')
                if aa == 0:
                    a.e(f'''
                    v_mul_f32 v{t+4}, v{E+1}, v{r}
                    v_sub_f32 v{t+5}, v{t}, v{r+1}
                    v_cndmask_b32 v{t}, v{t}, v{t+5}, s[80:81]
                    v_cndmask_b32 v{t+1}, v{t+1}, v{t+2}, s[80:81]
                    v_cndmask_b32 v{t+2}, v{t+2}, v{t+4}, s[80:81]
                    v_cndmask_b32 v{t+3}, v{t+3}, v{O+1}, s[80:81]
                    ''')
                a.e(f'''
                v_cvt_pk_bf16_f32 v{LO+2*tau+e}, v{t}, v{t+1}
                v_cvt_pk_bf16_f32 v{HI+2*tau+e}, v{t+2}, v{t+3}
                ''')
        for r in (LO, LO+2, HI, HI+2):
            a.e(f'v_permlane16_swap_b32 v{r}, v{r+1}')
        z1st(0, n, LO, 'z1'); z1st(1, n, HI, 'z1')
    m2(a, 4, 1)
    a.e('s_waitcnt vmcnt(0)\ns_barrier')
    m2(a, 4, 4)
    a.label('dft_tail'); a.fence()
    a.e('s_cmp_lg_u32 s2, 0\ns_cbranch_scc1 dft_end\ns_cmp_lt_u32 s3, 4\ns_cbranch_scc1 dft_end')
    vm = VM(a)
    for l in fft_consts(): a.e(l)
    a.e(f's_mov_b32 s62, 0\ns_mov_b32 s63, 224\ns_mov_b32 s76, 1\nv_mov_b32 v29, 0\nv_mov_b32 v17, 0')
    fft_setup(a)
    a.e('s_branch fft_body')
    a.label('dft_end'); a.fence()
    if opt('WPF', 1):
        srd(a, 28, 16, 0, SZ_WG)
        a.e(f'''
        v_mul_u32_u24 v8, 896, v1
        s_and_b32 s65, s60, 3
        s_mul_i32 s65, s65, {224*896}
        s_lshl_b32 s66, s3, 7
        s_add_u32 s65, s65, s66
        s_cmp_eq_u32 s3, 7
        s_cselect_b32 s65, 0x40000000, s65
        ''')
        for n, P in enumerate([4, 5, 6, 9, 10, 11, 12, 13]):
            a.e(f'''
            s_add_u32 s66, s3, {P % 7}
            s_cmp_ge_u32 s66, 7
            s_cselect_b32 s67, 7, 0
            s_sub_u32 s66, s66, s67
            s_mul_i32 s66, s66, 28672
            s_add_u32 s66, s66, s65
            s_add_u32 s66, s66, {(P // 7) * 4 * 224 * 896}
            buffer_load_dword v{16+n}, v8, s[28:31], s66 offen
            ''')
        a.e('s_waitcnt vmcnt(0)')
    endpgm(a, 0, 22)
    a.label('l1_clr'); a.fence()
    assert OFF_FL == OFF_ST + SZ_ST and SZ_FL <= 24*3072
    srd(a, 48, 22, OFF_ST, SZ_ST + SZ_FL)
    a.e(f'''
    v_lshlrev_b32 v24, 4, v0
    s_lshl_b32 s80, s60, 11
    s_add_u32 s67, s80, 2048
    s_mul_i32 s81, s60, 3072
    s_sub_u32 s81, s81, {8*3072 - SZ_ST}
    s_cmp_lt_u32 s60, 8
    s_cselect_b32 s80, s80, s81
    s_cselect_b32 s50, s67, s50
    s_cselect_b32 s67, -1, 0
    ''')
    for i in range(4): a.e(f'v_mov_b32 v{16+i}, s67')
    for i in range(3): a.e(f'buffer_store_dwordx4 {q(16)}, v24, s[48:51], s80 offen offset:{i*1024}{SS}')
    a.e('s_branch l1_ret')
    a.label('dft_stat'); a.fence()
    vm = vms
    srd(a, 52, 22, OFF_ST, SZ_ST)
    dbg_srd(a)
    fl_srd(a, 36)
    a.e(f'''
    v_lshlrev_b32 v4, 2, v0
    v_lshlrev_b32 v23, 20, v0
    v_mov_b32 v22, 1
    ''')
    a.e(f'''
    v_add_u32 v30, {XCNT}, v4
    v_mov_b32 v31, 0
    ds_write_b32 v30, v31
    v_and_b32 v8, 15, v0                 ; n
    v_lshrrev_b32 v9, 4, v0              ; q4
    v_bfe_u32 v10, v0, 1, 3              ; f
    v_xor_b32 v10, v10, v9
    v_lshlrev_b32 v10, 4, v10
    v_lshl_add_u32 v10, v8, 7, v10       ; kk = 0
    v_xor_b32 v11, 64, v10               ; kk = 1
    v_mov_b32 v144, 0x3f803f80
    v_mov_b32 v145, 0x3f803f80
    v_mov_b32 v146, 0x3f803f80
    v_mov_b32 v147, 0x3f803f80
    v_lshlrev_b32 v8, 3, v8
    v_add_u32 v8, {SSCR}, v8
    v_lshlrev_b32 v9, 3, v0
    v_add_u32 v9, {SSCR}, v9
    v_and_b32 v13, 3, v0
    v_cmp_eq_u32 s[68:69], 1, v13
    v_cmp_eq_u32 s[86:87], 2, v13
    v_cmp_eq_u32 s[74:75], 3, v13
    s_mov_b32 s85, 0xffff0000
    s_waitcnt vmcnt(7)
    ''')
    vm.issue('buffer_atomic_add v22, v23, s[40:43], 0 offen sc1', 'l1s')
    m2(a, 1, 5)
    m2(a, 2, 5)
    vm.wait(('x', 1))
    a.e('s_waitcnt lgkmcnt(0)')
    prep([0], [96])
    m2(a, 1, 1)
    a.e('s_barrier')
    m2(a, 2, 1)
    a.e('s_setprio 2')
    QA, SA, RB = 160, 176, 32
    def srd_(u):
        b = RB + 32 * (u & 1)
        return [f'ds_read_b128 {q(b+16*kk+4*tt)}, v{10+kk} offset:{u*8192 + tt*2048}' for kk in range(2) for tt in range(4)]
    for l in srd_(0): a.e(l)
    for u in range(7):
        b = RB + 32 * (u & 1)
        a.e('s_waitcnt lgkmcnt(0)')
        if u == 1:
            vm.wait(('x', 6))
            prep([1, 2, 3], [96, 112, 128])
            a.e('s_barrier')
            l1_issue(vm, 24, 23)
        if u < 6:
            for l in srd_(u+1): a.e(l)
        for kk in range(2):
            for tt in range(4):
                r = b + 16*kk + 4*tt; first = (u == 0 and kk == 0)
                a.e(f'v_mfma_f32_16x16x32_bf16 {q(QA+4*tt)}, {q(r)}, {q(r)}, ' + ('0' if first else q(QA+4*tt)))
                a.e(f'v_mfma_f32_16x16x32_bf16 {q(SA+4*tt)}, {q(144)}, {q(r)}, ' + ('0' if first else q(SA+4*tt)))
    for tt in range(4):
        a.e(f'''
        v_cndmask_b32 v{SA+4*tt+1}, v{QA+4*tt}, v{QA+4*tt+1}, s[68:69]
        v_cndmask_b32 v{SA+4*tt+1}, v{SA+4*tt+1}, v{QA+4*tt+2}, s[86:87]
        v_cndmask_b32 v{SA+4*tt+1}, v{SA+4*tt+1}, v{QA+4*tt+3}, s[74:75]
        ''')
    a.e('s_mov_b32 exec_lo, 0x00f0000f\ns_mov_b32 exec_hi, 0xf0000f00')
    for tt in range(4):
        a.e(f'ds_write_b64 v8, {d2(SA+4*tt)} offset:{tt*128}')
    a.e(f'''
    s_mov_b64 exec, -1
    s_mov_b32 s84, {fh(1.0/448)}
    s_waitcnt lgkmcnt(0)
    ds_read_b64 v[16:17], v9
    s_waitcnt lgkmcnt(0)
    ''')
    for st in STAT_STEPS[:6]: a.e(st.format(m=16, v=17, t=18))
    a.e('v_cvt_pk_bf16_f32 v20, -v16, -v16')
    for st in STAT_STEPS[6:]: a.e(st.format(m=16, v=17, t=18))
    a.e(f'''
    v_mul_f32 v21, v17, v17
    v_mov_b32 v18, v17
    v_mul_f32 v19, {fh(448.0)}, v16
    s_add_u32 s84, s83, 8192
    ''')
    m2(a, 1, 2)
    a.e(f'''
    ds_write_b64 v9, v[18:19] offset:512
    v_mov_b32 v30, {RCNT}
    s_waitcnt lgkmcnt(0)
    ds_write_b32 v30, v22
    ''')
    vm.wait('l1')
    l1_check(a, 'dfs', 24, 23)
    vm.issue(f'buffer_store_dword v20, v4, s[52:55], s83 offen{SS}', 'st')
    vm.issue(f'buffer_store_dword v21, v4, s[52:55], s84 offen{SS}', 'st')
    a.e('s_setprio 0')
    m2(a, 3, 1)
    m2(a, 3, 2)
    a.e(f'''
    v_lshlrev_b32 v14, 7, v0
    s_lshl_b32 s67, s60, 2
    s_waitcnt vmcnt(0)
    ''')
    m2(a, 4, 1)
    a.e(f'''
    s_barrier
    buffer_atomic_add v22, v14, s[36:39], 0 offen sc1
    s_branch dft_tail
    ''')

def gen_v2(a, name):
    a.raw('.p2align 8')
    a.label(name)
    a.e(f'''
    s_cmp_ge_u32 s2, 256
    s_cbranch_scc1 f_end
    ''')
    diag_start(a)
    a.e(f'''
    s_load_dwordx16 s[4:19], s[0:1], 0
    s_load_dwordx4 s[20:23], s[0:1], 64
    ''')
    if opt('IPF', 1):
        a.raw('  s_getpc_b64 s[86:87]')
        a.raw('pc0:')
        a.raw('  v_lshlrev_b32 v252, 7, v0')
        a.raw('  v_min_u32 v252, f_end-pc0, v252')
        a.raw('  v_mov_b32 v253, s87')
        a.raw('  v_add_co_u32 v252, vcc, s86, v252')
        a.raw('  v_addc_co_u32 v253, vcc, 0, v253, vcc')
        a.raw('  global_load_dword v255, v[252:253], off')
    a.e(f'''
    v_lshrrev_b32 v1, 6, v0
    v_and_b32 v0, 63, v0
    v_readfirstlane_b32 s3, v1
    v_lshrrev_b32 v3, 3, v0              ; r
    v_and_b32 v4, 7, v0                  ; a
    v_lshrrev_b32 v5, 4, v0              ; r>>1
    v_xor_b32 v4, v4, v5
    v_mul_u32_u24 v12, 896, v3
    v_lshl_add_u32 v12, v4, 4, v12
    v_xor_b32 v13, 64, v12
    v_add_u32 v13, {8*896}, v13
    s_and_b32 s56, s2, 7
    s_lshr_b32 s57, s2, 3
    s_add_u32 s57, s57, 28
    s_and_b32 s57, s57, 31
    s_and_b32 s64, s3, 3
    s_cmp_ge_u32 s57, 28
    s_cbranch_scc1 dft_wg
    s_lshr_b32 s65, s56, 1
    s_mul_i32 s65, s65, 28
    s_add_u32 s65, s65, s57
    s_lshr_b32 s58, s65, 3               ; ct
    s_and_b32 s59, s65, 7
    s_and_b32 s65, s56, 1
    s_lshl_b32 s65, s65, 3
    s_add_u32 s59, s59, s65              ; rb
    ''')
    if opt('LOC', 0): a.e('''
    s_lshr_b32 s58, s57, 1
    s_and_b32 s59, s57, 1
    s_lshl_b32 s65, s56, 1
    s_add_u32 s59, s59, s65
    ''')
    a.e(f'''
    s_mul_i32 s60, s57, 37
    s_lshr_b32 s60, s60, 8               ; j/7
    s_mul_i32 s61, s60, 7
    s_sub_u32 s61, s57, s61              ; dt64
    s_lshl_b32 s65, s56, 2
    s_add_u32 s60, s60, s65              ; st64
    s_mul_i32 s62, s56, 28
    s_add_u32 s62, s62, s57              ; p
    s_mov_b32 s63, s62
    ''')
    gu(a)
    gemm2(a)
    dft(a)
    a.label('f_end')
    a.e('s_endpgm')
```
